```python
import torch

def _softmax(x, axis=-1):
    return torch.softmax(x, dim=axis)
def _gelu(x):
    return torch.nn.functional.gelu(x, approximate="tanh")
def _silu(x):
    return torch.nn.functional.silu(x)
def _sigmoid(x):
    return torch.sigmoid(x)
def _layernorm(x, axis=-1, eps=1e-5):
    m = x.mean(dim=axis, keepdim=True)
    v = x.var(dim=axis, keepdim=True, unbiased=False)
    return (x - m) / torch.sqrt(v + eps)
def _scatter_add(tgt, idx, src, axis=0):
    return tgt.clone().index_add_(axis, idx, src)
def _segment_sum(src, seg, n):
    out = torch.zeros((n,) + src.shape[1:], dtype=src.dtype)
    return out.index_add_(0, seg, src)
def _pad(x, pw):
    flat = tuple(v for pair in reversed(pw) for v in pair)
    return torch.nn.functional.pad(x, flat)

kernel_name = 'parallel_sum__sliding_block__glu_gated_geglu__prompt'

def setup_inputs():

    _w = (lambda a: (lambda t: t.to(torch.bfloat16) if t.is_floating_point() else t)(torch.as_tensor(a)))
    def _A_setup():
        B, S, D = 1, 2048, 512
        return {
            "x": _w((lambda *s: torch.randn(*s, dtype=torch.bfloat16) * 0.05)(B, S, D)),
            "wqkv": _w((lambda *s: torch.randn(*s, dtype=torch.bfloat16) * 0.05)(D, 3 * D)),
            "wo": _w((lambda *s: torch.randn(*s, dtype=torch.bfloat16) * 0.05)(D, D)),
        }
    _A_in = _A_setup()

    def _B_setup():
        B, S, Dm, Df = 1, 2048, 512, 1792
        return {
            "x": _w((lambda *s: torch.randn(*s, dtype=torch.bfloat16) * 0.05)(B, S, Dm)),
            "w_gate": _w((lambda *s: torch.randn(*s, dtype=torch.bfloat16) * 0.8)(Dm, Df) * (Dm ** -0.5)),
            "w_up": _w((lambda *s: torch.randn(*s, dtype=torch.bfloat16) * 0.8)(Dm, Df) * (Dm ** -0.5)),
            "w_down": _w((lambda *s: torch.randn(*s, dtype=torch.bfloat16) * 0.8)(Df, Dm) * (Df ** -0.5)),
        }
    _B_in = _B_setup()

    return {
        "A_x": _A_in["x"],
        "A_wqkv": _A_in["wqkv"],
        "A_wo": _A_in["wo"],
        "B_x": _B_in["x"],
        "B_w_gate": _B_in["w_gate"],
        "B_w_up": _B_in["w_up"],
        "B_w_down": _B_in["w_down"],
    }

def reference(A_x, A_wqkv, A_wo, B_x, B_w_gate, B_w_up, B_w_down):
    def _A_ref(x, wqkv, wo):
        B, S, D = x.shape
        H = 32; Dh = D // H; W = 256
        qkv = (lambda x, *d: x.permute(*d))((x @ wqkv).reshape(B, S, 3, H, Dh), 2, 0, 3, 1, 4)
        q, k, v = qkv[0], qkv[1], qkv[2]
        scores = torch.einsum("bhqd,bhkd->bhqk", q, k) * (Dh ** -0.5)
        idx = torch.arange(S)
        mask = (idx[:, None] - idx[None, :] >= 0) & (idx[:, None] - idx[None, :] < W)
        scores = torch.where(mask[None, None], scores, -1e9)
        p = _softmax(scores, axis=-1)
        o = torch.einsum("bhqk,bhkd->bhqd", p, v)
        return (lambda x, *d: x.permute(*d))(o, 0, 2, 1, 3).reshape(B, S, D) @ wo

    def _B_ref(x, w_gate, w_up, w_down):
        g = torch.einsum("bsd,df->bsf", x, w_gate)
        u = torch.einsum("bsd,df->bsf", x, w_up)
        h = _gelu(g) * u
        return torch.einsum("bsf,fd->bsd", h, w_down)

    x = A_x
    xn = _layernorm(x, axis=-1)
    return x + _A_ref(xn, A_wqkv, A_wo) + _B_ref(xn, B_w_gate, B_w_up, B_w_down)
```

```python
import re

TRANS = ('v_exp_f32', 'v_log_f32', 'v_rcp_f32', 'v_rsq_f32', 'v_sqrt_f32', 'v_sin_f32', 'v_cos_f32')


def _regs(tok):
    tok = tok.strip()
    neg = tok.startswith('-')
    if neg:
        tok = tok[1:]
    if tok.startswith('abs(') and tok.endswith(')'):
        tok = tok[4:-1]
    if tok.startswith('|') and tok.endswith('|'):
        tok = tok[1:-1]
    m = re.fullmatch(r'([vsa])(\d+)', tok)
    if m:
        return {(m.group(1), int(m.group(2)))}
    m = re.fullmatch(r'([vsa])\[(\d+):(\d+)\]', tok)
    if m:
        return {(m.group(1), k) for k in range(int(m.group(2)), int(m.group(3)) + 1)}
    if tok in ('vcc', 'vcc_lo', 'vcc_hi'):
        return {('s', 'vcc')}
    if tok in ('exec', 'exec_lo', 'exec_hi'):
        return {('s', 'exec')}
    if tok == 'm0':
        return {('s', 'm0')}
    return set()


class Ins:
    __slots__ = ('text', 'op', 'cls', 'rd', 'wr', 'passes', 'srcA', 'srcB', 'srcC', 'trans', 'dot',
                 'states', 'wide_store', 'ldsdma', 'dpp', 'permlane', 'pos')

    def __init__(self, text):
        self.text = text
        t = text.split(';')[0].strip()
        parts = t.split(None, 1)
        op = parts[0]
        self.op = op
        rest = parts[1] if len(parts) > 1 else ''
        ops = [o.strip() for o in rest.split(',')] if rest else []
        mods = []
        if ops:
            last = ops[-1]
            sp = re.split(r'\s+', last)
            ops[-1] = sp[0]
            mods = sp[1:]
        self.rd = set()
        self.wr = set()
        self.passes = 0
        self.srcA = self.srcB = self.srcC = set()
        self.trans = False
        self.dot = False
        self.states = 1
        self.wide_store = None
        self.ldsdma = False
        self.dpp = ('row_' in t) or ('quad_perm' in t) or ('_dpp' in op)
        self.permlane = op.startswith('v_permlane')
        cut = None
        for k, o in enumerate(ops):
            if ' ' in o:
                ops[k] = o.split()[0]
                cut = k + 1
                break
        if cut is not None:
            ops = ops[:cut]
        R = [_regs(o) for o in ops]
        if op.startswith('v_mfma'):
            self.cls = 'mfma'
            self.passes = 8 if '32x32' in op else 4
            self.wr = R[0]
            self.srcA, self.srcB, self.srcC = R[1], R[2], R[3]
            self.rd = R[1] | R[2] | R[3]
        elif op.startswith('v_'):
            self.cls = 'valu'
            base = op.replace('_e32', '').replace('_e64', '')
            self.trans = base in TRANS
            self.dot = base.startswith('v_dot')
            if self.permlane:
                self.wr = R[0] | R[1]
                self.rd = R[0] | R[1]
            elif base.startswith('v_cmp'):
                self.wr = R[0]
                for r in R[1:]:
                    self.rd |= r
            elif base in ('v_add_co_u32', 'v_sub_co_u32', 'v_addc_co_u32'):
                self.wr = R[0] | R[1]
                for r in R[2:]:
                    self.rd |= r
            else:
                self.wr = R[0]
                for r in R[1:]:
                    self.rd |= r
                if base in ('v_fmac_f32', 'v_dot2c_f32_bf16', 'v_writelane_b32'):
                    self.rd |= R[0]
        elif op.startswith('ds_'):
            self.cls = 'ds'
            if op.startswith('ds_read') or op.startswith('ds_bpermute') or op.startswith('ds_swizzle'):
                self.wr = R[0]
                for r in R[1:]:
                    self.rd |= r
            else:
                for r in R:
                    self.rd |= r
        elif op.startswith('buffer_') or op.startswith('global_'):
            self.cls = 'vmem'
            islds = 'lds' in mods
            if op in ('buffer_wbl2', 'buffer_inv'):
                pass
            elif 'load' in op and islds:
                self.ldsdma = True
                for r in R:
                    self.rd |= r
                self.rd |= {('s', 'm0')}
            elif 'load' in op:
                self.wr = R[0]
                for r in R[1:]:
                    self.rd |= r
            elif 'atomic' in op:
                for r in R:
                    self.rd |= r
                if 'sc0' in mods:
                    self.wr = R[0] if op.startswith('buffer_') else R[0]
            else:
                for r in R:
                    self.rd |= r
                if 'x4' in op or 'x3' in op:
                    self.wide_store = R[0] if op.startswith('buffer_') else R[1]
        elif op.startswith('s_'):
            self.cls = 'salu'
            if op == 's_nop':
                self.states = int(ops[0], 0) + 1
            elif op.startswith('s_cmp') or op.startswith('s_cbranch') or op in (
                    's_branch', 's_waitcnt', 's_barrier', 's_endpgm', 's_sleep', 's_setprio'):
                for r in R:
                    self.rd |= r
            else:
                if R:
                    self.wr = R[0]
                for r in R[1:]:
                    self.rd |= r
                if 'saveexec' in op:
                    self.wr |= {('s', 'exec')}
        else:
            raise ValueError('unknown instruction: ' + text)


def _v(s):
    return {r for r in s if r[0] in 'va'}


def _s(s):
    return {r for r in s if r[0] == 's'}


def need(p, c):
    n = 0
    if p.cls == 'valu':
        wv = _v(p.wr)
        if wv:
            hit = wv & c.rd
            if hit:
                if c.cls == 'mfma':
                    n = max(n, 2)
                if c.permlane or c.dpp:
                    n = max(n, 2)
                if c.op.startswith('v_readlane') or c.op.startswith('v_readfirstlane'):
                    n = max(n, 1)
                if p.trans and c.cls in ('valu', 'mfma') and not c.trans:
                    n = max(n, 1)
            if p.dot and (wv & (c.rd | c.wr)):
                same = c.dot and c.op == p.op
                if same:
                    if c.op.startswith('v_dot2c'):
                        ab = set()
                        toks = c.text.split(';')[0].split(None, 1)[1].split(',')
                        for tk in toks[1:]:
                            ab |= _regs(tk.split()[0])
                        if wv & ab:
                            n = max(n, 3)
                    else:
                        n = max(n, 3)
                else:
                    n = max(n, 3)
        ws = _s(p.wr)
        if ws and (ws & c.rd):
            if c.cls == 'valu':
                n = max(n, 4 if c.op.startswith(('v_readlane', 'v_writelane')) else 2)
            elif c.cls == 'vmem':
                n = max(n, 5)
            elif c.cls == 'salu':
                n = max(n, 1)
    elif p.cls == 'mfma':
        D = p.wr
        P = p.passes
        if c.cls == 'mfma':
            if D & c.srcC:
                if not (D == c.srcC and c.op == p.op):
                    n = max(n, {4: 6, 8: 10}[P])
            if D & (c.srcA | c.srcB):
                n = max(n, {4: 8, 8: 12}[P])
            if (D & c.wr) and not (D == c.srcC and c.op == p.op):
                n = max(n, {4: 8, 8: 12}[P])
        elif c.cls in ('valu', 'vmem', 'ds'):
            if D & (c.rd | c.wr):
                n = max(n, {4: 8, 8: 12}[P])
        if c.cls in ('valu', 'vmem', 'ds') and (p.srcC & c.wr):
            n = max(n, {4: 3, 8: 7}[P])
    elif p.cls == 'salu':
        if ('s', 'm0') in p.wr and c.ldsdma:
            n = max(n, 1)
    if p.wide_store and (p.wide_store & c.wr):
        n = max(n, 2 if c.cls in ('valu', 'mfma') else 1)
    return n


class Asm:
    def __init__(self):
        self.out = []
        self.hist = []
        self.pos = 0
        self.vm = []
        self.lg = []
        self.nnop = 0

    def raw(self, text):
        self.out.append(text)

    def comment(self, text):
        self.out.append('    ; ' + text)

    def _push(self, ins):
        ins.pos = self.pos
        self.pos += ins.states
        self.hist.append(ins)
        if len(self.hist) > 40:
            self.hist = self.hist[-32:]
        self.out.append('    ' + ins.text)

    def nop(self, n):
        while n > 0:
            k = min(n, 16)
            self._push(Ins('s_nop %d' % (k - 1)))
            self.nnop += k
            n -= k

    def __call__(self, text, tag=None):
        ins = Ins(text)
        req = 0
        for p in self.hist:
            nd = need(p, ins)
            if nd:
                have = self.pos - (p.pos + p.states)
                req = max(req, nd - have)
        if req > 0:
            self.nop(req)
        self._push(ins)
        if ins.cls == 'vmem':
            self.vm.append(tag)
        elif ins.cls == 'ds':
            self.lg.append(tag)
        return ins

    def flush(self):
        req = 0
        for p in self.hist:
            if p.cls == 'mfma':
                nd = {4: 8, 8: 12}[p.passes]
            elif p.cls == 'valu':
                nd = 5 if _s(p.wr) else 3
            elif p.cls == 'salu' and ('s', 'm0') in p.wr:
                nd = 1
            elif p.wide_store:
                nd = 2
            else:
                nd = 0
            req = max(req, nd - (self.pos - (p.pos + p.states)))
        if req > 0:
            self.nop(req)
        self.hist = []

    def label(self, name):
        self.flush()
        self.out.append(name + ':')

    def branch(self, text):
        self.flush()
        self(text)
        self.hist = []

    def _cnt(self, q, tag, mx):
        idx = [k for k, t in enumerate(q) if t == tag]
        if not idx:
            return None
        return len(q) - 1 - idx[-1]

    def wait_vm(self, tag):
        n = self._cnt(self.vm, tag, 63)
        if n is None:
            return
        n2 = min(n, 63)
        self('s_waitcnt vmcnt(%d)' % n2)
        self.vm = self.vm[len(self.vm) - n2:] if n2 else []

    def wait_lg(self, tag):
        n = self._cnt(self.lg, tag, 15)
        if n is None:
            return
        n2 = min(n, 15)
        self('s_waitcnt lgkmcnt(%d)' % n2)
        self.lg = self.lg[len(self.lg) - n2:] if n2 else []

    def wait_vm0(self):
        self('s_waitcnt vmcnt(0)')
        self.vm = []

    def wait_lg0(self):
        self('s_waitcnt lgkmcnt(0)')
        self.lg = []

    def text(self):
        return '\n'.join(self.out) + '\n'


def vr(a, n=1):
    return 'v%d' % a if n == 1 else 'v[%d:%d]' % (a, a + n - 1)


def sr(a, n=1):
    return 's%d' % a if n == 1 else 's[%d:%d]' % (a, a + n - 1)
```

```python
import sys
import struct
from asmlib import Asm, vr, sr

NAME = 'parallel_sum__sliding_block__glu_gated_geglu__prompt'

T, D, F, H = 2048, 512, 1792, 32
WS_QKV = 0
WS_ACT = 6 << 20
WS_BYTES = WS_ACT + 64 * 144 * 1024
NACT = 144

S_X, S_WQKV, S_GATE, S_UP, S_DOWN, S_WO, S_OUT, S_WS, S_DBG = 4, 8, 12, 16, 20, 24, 28, 32, 36
sW, sMB, sQUAD, sI, sR, sC, sWB = 40, 41, 42, 43, 44, 45, 46
sCOL = 47
sST = 51
sT0, sT1, sT2, sT3 = 56, 57, 58, 59
sONES, sMASKHI, sK0, sK1, sK2 = 60, 61, 62, 63, 64
sTB, sNB, sKQ, sTH = 65, 66, 67, 68
sACT, sACTO, sWD, sWOo, sWB3 = 69, 70, 71, 72, 73
sQB, sHEAD = 74, 75
sM = 76


def f32(x):
    return '0x%08x' % struct.unpack('<I', struct.pack('<f', x))[0]


class Gen:
    def __init__(self, fused, sc1):
        self.a = Asm()
        self.fused = fused
        self.sc = ' sc1' if sc1 else ''
        self.uid = 0

    def lab(self, s):
        self.uid += 1
        return 'L_%s_%d' % (s, self.uid)

    def setup(self, endlabel):
        a = self.a
        a('s_cmp_ge_u32 s2, 256')
        a.branch('s_cbranch_scc1 ' + endlabel)
        a('s_load_dwordx16 s[40:55], s[0:1], 0')
        a('s_load_dwordx4 s[56:59], s[0:1], 64')
        a('v_lshrrev_b32 v1, 6, v0')
        a('v_and_b32 v0, 63, v0')
        a('s_waitcnt lgkmcnt(0)')
        sizes = {S_X: (40, T * D * 2), S_WQKV: (42, D * 3 * D * 2), S_WO: (44, D * D * 2),
                 S_GATE: (48, D * F * 2), S_UP: (50, D * F * 2), S_DOWN: (52, F * D * 2),
                 S_OUT: (54, T * D * 2), S_DBG: (56, 256), S_WS: (58, WS_BYTES)}
        for srd, (p, n) in sizes.items():
            a('s_mov_b32 s%d, s%d' % (srd, p))
            a('s_and_b32 s%d, s%d, 0xffff' % (srd + 1, p + 1))
            a('s_mov_b32 s%d, 0x%x' % (srd + 2, n))
            a('s_mov_b32 s%d, 0x00020000' % (srd + 3))
        a('v_readfirstlane_b32 s%d, v1' % sW)
        a('s_and_b32 s%d, s2, 7' % sT0)
        a('s_lshr_b32 s%d, s2, 3' % sT1)
        a('s_and_b32 s%d, s%d, 1' % (sT2, sT0))
        a('s_lshl_b32 s%d, s%d, 3' % (sT2, sT2))
        a('s_and_b32 s%d, s%d, 7' % (sT3, sT1))
        a('s_add_u32 s%d, s%d, s%d' % (sMB, sT2, sT3))
        a('s_lshr_b32 s%d, s%d, 1' % (sQUAD, sT0))
        a('s_lshr_b32 s%d, s%d, 3' % (sI, sT1))
        a('s_lshl_b32 s%d, s%d, 2' % (sT2, sT0))
        a('s_and_b32 s%d, s%d, 3' % (sT3, sT1))
        a('s_add_u32 s%d, s%d, s%d' % (sTB, sT2, sT3))
        a('s_lshr_b32 s%d, s%d, 2' % (sNB, sT1))
        a('s_and_b32 s%d, s%d, 3' % (sR, sW))
        a('s_lshr_b32 s%d, s%d, 2' % (sC, sW))
        a('s_lshl_b32 s%d, s%d, 10' % (sWB, sW))
        a('s_mov_b32 s%d, 0x3f803f80' % sONES)
        a('s_mov_b32 s%d, 0xffff0000' % sMASKHI)

    XB = 0
    ACC = (128, 160)
    POOL = 192
    NP = 10
    LA = 6
    TMP = 232
    vTR = 248
    vDQ, vDG = 252, 253
    vSQ, vSV = 254, 255

    def X(self, tt, s):
        return self.XB + 64 * tt + 4 * s

    def p1_lane_setup(self):
        a = self.a
        t = self.TMP
        L, I, G = t, t + 1, t + 2
        a('v_mov_b32 v%d, v0' % L)
        a('v_and_b32 v%d, 15, v%d' % (I, L))
        a('v_lshrrev_b32 v%d, 4, v%d' % (G, L))
        a('s_lshl_b32 s%d, s%d, 7' % (sT0, sMB))
        a('s_lshl_b32 s%d, s%d, 5' % (sT1, sR))
        a('s_add_u32 s%d, s%d, s%d' % (sT0, sT0, sT1))
        a('v_add_u32 v%d, s%d, v%d' % (t + 3, sT0, I))
        a('v_lshlrev_b32 v%d, 10, v%d' % (t + 3, t + 3))
        a('v_lshl_add_u32 v%d, v%d, 4, v%d' % (t + 3, G, t + 3))
        a('s_mov_b32 s%d, 16384' % sT2)
        for tt in range(2):
            for s in range(16):
                so = '0' if tt == 0 else 's%d' % sT2
                a('buffer_load_dwordx4 %s, v%d, %s, %s offen offset:%d' % (
                    vr(self.X(tt, s), 4), t + 3, sr(S_X, 4), so, 64 * s), tag=('x', tt, s))
        ROW, P_, S_ = t + 4, t + 5, t + 6
        a('v_lshrrev_b32 v%d, 3, v%d' % (ROW, L))
        a('v_and_b32 v%d, 7, v%d' % (P_, L))
        a('v_bfe_u32 v%d, v%d, 1, 1' % (S_, ROW))
        a('s_and_b32 s%d, s%d, 1' % (sT0, sW))
        a('s_lshl_b32 s%d, s%d, 1' % (sT0, sT0))
        a('v_add_u32 v%d, s%d, v%d' % (S_, sT0, S_))
        a('v_lshlrev_b32 v%d, 1, v%d' % (S_, S_))
        a('v_xor_b32 v%d, v%d, v%d' % (P_, P_, S_))
        a('v_lshlrev_b32 v%d, 4, v%d' % (P_, P_))
        a('s_lshl_b32 s%d, s%d, 3' % (sT0, sW))
        a('v_add_u32 v%d, s%d, v%d' % (ROW, sT0, ROW))
        a('s_movk_i32 s%d, 3072' % sT0)
        a('s_movk_i32 s%d, 3584' % sT1)
        a('v_mad_u32_u24 v%d, v%d, s%d, v%d' % (self.vDQ, ROW, sT0, P_))
        a('v_mad_u32_u24 v%d, v%d, s%d, v%d' % (self.vDG, ROW, sT1, P_))
        A_, B_ = t + 4, t + 5
        a('v_lshrrev_b32 v%d, 2, v%d' % (A_, I))
        a('v_lshl_add_u32 v%d, v%d, 3, v%d' % (A_, G, A_))
        a('v_lshlrev_b32 v%d, 7, v%d' % (A_, A_))
        a('v_and_b32 v%d, 3, v%d' % (B_, I))
        a('v_lshl_add_u32 v%d, v%d, 3, v%d' % (A_, B_, A_))
        a('v_bfe_u32 v%d, v%d, 3, 1' % (B_, I))
        a('v_and_b32 v%d, 1, v%d' % (S_, G))
        a('v_lshl_add_u32 v%d, v%d, 1, v%d' % (B_, S_, B_))
        a('s_lshl_b32 s%d, s%d, 1' % (sT0, sC))
        for tl in range(2):
            a('s_add_u32 s%d, s%d, %d' % (sT1, sT0, tl))
            a('v_xor_b32 v%d, s%d, v%d' % (S_, sT1, B_))
            a('v_lshl_add_u32 v%d, v%d, 5, v%d' % (self.vTR + tl, S_, A_))
            a('v_add_u32 v%d, 0x10000, v%d' % (self.vTR + 2 + tl, self.vTR + tl))
        a('v_lshrrev_b32 v%d, 1, v%d' % (A_, G))
        a('v_and_b32 v%d, 1, v%d' % (B_, G))
        a('v_lshlrev_b32 v%d, 4, v%d' % (S_, I))
        a('v_lshl_add_u32 v%d, v%d, 9, v%d' % (self.vSQ, A_, S_))
        a('v_lshl_add_u32 v%d, v%d, 8, v%d' % (self.vSQ, B_, self.vSQ))
        a('v_lshl_add_u32 v%d, v%d, 9, v%d' % (self.vSV, B_, S_))
        a('v_lshl_add_u32 v%d, v%d, 8, v%d' % (self.vSV, A_, self.vSV))

    def p1_scalar_setup(self, typ):
        a = self.a
        a('s_lshl_b32 s%d, s%d, 2' % (sT3, sMB))
        a('s_add_u32 s%d, s%d, s%d' % (sT3, sT3, sR))
        a('s_mul_i32 s%d, s%d, %d' % (sT2, sT3, NACT))
        a('s_lshl_b32 s%d, s%d, 1' % (sT1, sC))
        a('s_add_u32 s%d, s%d, s%d' % (sT2, sT2, sT1))
        a('s_mul_i32 s%d, s%d, 7' % (sT0, sQUAD))
        if typ == 'A':
            a('s_lshl_b32 s%d, s%d, 10' % (sCOL, sI))
            a('s_lshl_b32 s%d, s%d, 7' % (sM, sQUAD))
            a('s_add_u32 s%d, s%d, s%d' % (sCOL, sCOL, sM))
            a('s_add_u32 s%d, s%d, 512' % (sCOL, sCOL))
            a('s_lshl_b32 s%d, s%d, 5' % (sST, sI))
            a('s_lshl_b32 s%d, s%d, 2' % (sM, sQUAD))
            a('s_add_u32 s%d, s%d, s%d' % (sST, sST, sM))
            a('s_add_u32 s%d, s%d, 16' % (sST, sST))
            a('s_add_u32 s%d, s%d, s%d' % (sST, sST, sT1))
            a('s_lshl_b32 s%d, s%d, 6' % (sST, sST))
            a('s_add_u32 s%d, s%d, s%d' % (sST, sST, sT3))
            a('s_lshl_b32 s%d, s%d, 10' % (sST, sST))
            a('s_lshl_b32 s%d, s%d, 1' % (sM, sI))
            a('s_add_u32 s%d, s%d, s%d' % (sT0, sT0, sM))
            for k in range(2):
                a('s_add_u32 s%d, s%d, %d' % (sM, sT0, k))
                a('s_lshl_b32 s%d, s%d, 7' % (sCOL + 1 + k, sM))
                a('s_lshl_b32 s%d, s%d, 2' % (sM, sM))
                a('s_add_u32 s%d, s%d, s%d' % (sM, sM, sT2))
                a('s_lshl_b32 s%d, s%d, 10' % (sM, sM))
                a('s_add_u32 s%d, s%d, 0x%x' % (sST + 1 + k, sM, WS_ACT))
        else:
            for ty in range(3):
                a('s_lshl_b32 s%d, s%d, 7' % (sM, sQUAD))
                a('s_add_u32 s%d, s%d, %d' % (sCOL + ty, sM, 1024 * ty))
                a('s_lshl_b32 s%d, s%d, 2' % (sM, sQUAD))
                a('s_add_u32 s%d, s%d, %d' % (sM, sM, 32 * ty))
                a('s_add_u32 s%d, s%d, s%d' % (sM, sM, sT1))
                a('s_lshl_b32 s%d, s%d, 6' % (sM, sM))
                a('s_add_u32 s%d, s%d, s%d' % (sM, sM, sT3))
                a('s_lshl_b32 s%d, s%d, 10' % (sST + ty, sM))
            a('s_add_u32 s%d, s%d, 6' % (sM, sT0))
            a('s_lshl_b32 s%d, s%d, 7' % (sCOL + 3, sM))
            a('s_lshl_b32 s%d, s%d, 2' % (sM, sM))
            a('s_add_u32 s%d, s%d, s%d' % (sM, sM, sT2))
            a('s_lshl_b32 s%d, s%d, 10' % (sM, sM))
            a('s_add_u32 s%d, s%d, 0x%x' % (sST + 3, sM, WS_ACT))

    def dma_p1(self, pidx, st, slot, gs):
        out = []
        for j in range(4):
            out.append((['s_add_u32 s%d, s%d, 0x%x' % (sT0, sCOL + pidx, (256 * st + 64 * j) * 3072),
                         's_add_u32 m0, s%d, 0x%x' % (sWB, slot * 32768 + 8192 * j),
                         'buffer_load_dwordx4 v%d, %s, s%d offen lds' % (self.vDQ, sr(S_WQKV, 4), sT0)], ('dma', gs)))
        return out

    def dma_p2(self, pidx, st, slot, gs):
        out = []
        for pn, srd in enumerate((S_GATE, S_UP)):
            for j in range(2):
                out.append((['s_add_u32 s%d, s%d, 0x%x' % (sT0, sCOL + pidx, (128 * st + 64 * j) * 3584),
                             's_add_u32 m0, s%d, 0x%x' % (sWB, slot * 32768 + 16384 * pn + 8192 * j),
                             'buffer_load_dwordx4 v%d, %s, s%d offen lds' % (self.vDG, sr(srd, 4), sT0)], ('dma', gs)))
        return out

    def emit_group(self, grp):
        texts, tag = grp
        for t in texts[:-1]:
            self.a(t)
        self.a(texts[-1], tag=tag)

    def ln_stats(self):
        a = self.a
        base = self.ACC[0]
        for k in range(16):
            a('v_mov_b32 v%d, 0' % (base + k))
        for tt in range(2):
            for s in range(16):
                if s % 2 == 0:
                    a.wait_vm(('x', tt, s + 1))
                for d in range(4):
                    x = self.X(tt, s) + d
                    a('v_dot2c_f32_bf16 v%d, s%d, v%d' % (base + 8 * tt + d, sONES, x))
                    a('v_dot2c_f32_bf16 v%d, v%d, v%d' % (base + 8 * tt + 4 + d, x, x))
        R = base + 16
        for q in range(4):
            b = base + 4 * q
            a('v_add_f32 v%d, v%d, v%d' % (b, b, b + 1))
            a('v_add_f32 v%d, v%d, v%d' % (b + 2, b + 2, b + 3))
        for q in range(4):
            b = base + 4 * q
            a('v_add_f32 v%d, v%d, v%d' % (R + q, b, b + 2))
        for sw in ('v_permlane16_swap_b32', 'v_permlane32_swap_b32'):
            for q in range(4):
                a('v_mov_b32 v%d, v%d' % (R + 4 + q, R + q))
            for q in range(4):
                a('%s v%d, v%d' % (sw, R + q, R + 4 + q))
            for q in range(4):
                a('v_add_f32 v%d, v%d, v%d' % (R + q, R + q, R + 4 + q))
        a('s_mov_b32 s%d, %s' % (sT0, f32(1.0 / 512)))
        a('s_mov_b32 s%d, %s' % (sT1, f32(1e-5)))
        for tt in range(2):
            m, e2 = R + 2 * tt, R + 2 * tt + 1
            rs, nm = self.TMP + 12 + 2 * tt, self.TMP + 13 + 2 * tt
            t = R + 4 + 2 * tt
            a('v_mul_f32 v%d, s%d, v%d' % (m, sT0, m))
            a('v_mul_f32 v%d, s%d, v%d' % (e2, sT0, e2))
            a('v_fma_f32 v%d, -v%d, v%d, v%d' % (e2, m, m, e2))
            a('v_max_f32 v%d, 0, v%d' % (e2, e2))
            a('v_cvt_pk_bf16_f32 v%d, v%d, v%d' % (t, m, e2))
            a('v_lshlrev_b32 v%d, 16, v%d' % (m, t))
            a('v_and_b32 v%d, s%d, v%d' % (e2, sMASKHI, t))
            a('v_add_f32 v%d, s%d, v%d' % (e2, sT1, e2))
            a('v_cvt_pk_bf16_f32 v%d, v%d, v%d' % (t, e2, e2))
            a('v_lshlrev_b32 v%d, 16, v%d' % (e2, t))
            a('v_sqrt_f32 v%d, v%d' % (e2, e2))
            a('v_cvt_pk_bf16_f32 v%d, v%d, v%d' % (t, e2, e2))
            a('v_lshlrev_b32 v%d, 16, v%d' % (e2, t))
            a('v_rcp_f32 v%d, v%d' % (rs, e2))
            a('v_mul_f32 v%d, v%d, v%d' % (nm, m, rs))
            a('v_sub_f32 v%d, 0, v%d' % (nm, nm))

    def ln_norm(self, s):
        out = []
        k = 0
        for tt in range(2):
            rs = self.TMP + 12 + 2 * tt
            for d in range(4):
                x = self.X(tt, s) + d
                t = self.TMP + 2 * (k % 4)
                k += 1
                out.append('v_lshlrev_b32 v%d, 16, v%d' % (t, x))
                out.append('v_and_b32 v%d, s%d, v%d' % (t + 1, sMASKHI, x))
                out.append('v_pk_fma_f32 %s, %s, %s, %s op_sel:[0,0,1] op_sel_hi:[1,0,1]' % (
                    vr(t, 2), vr(t, 2), vr(rs, 2), vr(rs, 2)))
                out.append('v_cvt_pk_bf16_f32 v%d, v%d, v%d' % (x, t, t + 1))
        return out

    def epi_qkv(self, acc, pidx, isv):
        out = []
        for tl in range(2):
            q = self.TMP + 4 * tl
            for tt in range(2):
                c = acc + 8 * tl + 4 * tt
                out.append(('v_cvt_pk_bf16_f32 v%d, v%d, v%d' % (q + 2 * tt, c, c + 1), None))
                out.append(('v_cvt_pk_bf16_f32 v%d, v%d, v%d' % (q + 2 * tt + 1, c + 2, c + 3), None))
            sw = 'v_permlane32_swap_b32' if isv else 'v_permlane16_swap_b32'
            out.append(('%s v%d, v%d' % (sw, q, q + 2), None))
            out.append(('%s v%d, v%d' % (sw, q + 1, q + 3), None))
            so = 's%d' % (sST + pidx)
            if tl == 1:
                out.append(('s_add_u32 s%d, s%d, 0x10000' % (sT1, sST + pidx), None))
                so = 's%d' % sT1
            out.append(('buffer_store_dwordx4 %s, v%d, %s, %s offen%s' % (
                vr(q, 4), self.vSV if isv else self.vSQ, sr(S_WS, 4), so, self.sc), 'st'))
        return out

    def epi_geglu(self, acc, pidx):
        out = []
        for tl in range(2):
            q = self.TMP + 4 * tl
            for tt in range(2):
                g0 = acc + 8 * tl + 4 * tt
                u0 = g0 + 16
                t0 = self.TMP + 8
                blk = []
                for e in range(4):
                    blk.append('v_mul_f32 v%d, v%d, v%d' % (t0 + e, g0 + e, g0 + e))
                for e in range(4):
                    blk.append('v_fma_f32 v%d, v%d, s%d, v%d' % (t0 + e, t0 + e, sK1, self.TMP + 12))
                for e in range(4):
                    blk.append('v_mul_f32 v%d, v%d, v%d' % (t0 + e, t0 + e, g0 + e))
                for e in range(4):
                    blk.append('v_exp_f32 v%d, v%d' % (t0 + e, t0 + e))
                for e in range(4):
                    blk.append('v_add_f32 v%d, 1.0, v%d' % (t0 + e, t0 + e))
                for e in range(4):
                    blk.append('v_rcp_f32 v%d, v%d' % (t0 + e, t0 + e))
                for e in range(4):
                    blk.append('v_mul_f32 v%d, v%d, v%d' % (g0 + e, g0 + e, u0 + e))
                for e in range(4):
                    blk.append('v_mul_f32 v%d, v%d, v%d' % (g0 + e, g0 + e, t0 + e))
                blk.append('v_cvt_pk_bf16_f32 v%d, v%d, v%d' % (q + 2 * tt, g0, g0 + 1))
                blk.append('v_cvt_pk_bf16_f32 v%d, v%d, v%d' % (q + 2 * tt + 1, g0 + 2, g0 + 3))
                out += [(b, None) for b in blk]
            out.append(('v_permlane16_swap_b32 v%d, v%d' % (q, q + 2), None))
            out.append(('v_permlane16_swap_b32 v%d, v%d' % (q + 1, q + 3), None))
            out.append(('buffer_store_dwordx4 %s, v%d, %s, s%d offen offset:%d%s' % (
                vr(q, 4), self.vSQ, sr(S_WS, 4), sST + pidx, 1024 * tl, self.sc), 'st'))
        return out

    def phase1_body(self, typ, extra_stages, vsel_label=None):
        raise NotImplementedError

    def run_passes(self, passes, stages, first_stage_ready, tail_bg_ok=True):
        a = self.a
        items = []
        for p in passes:
            nst = 2 if p['kind'] == 'p1' else 4
            kper = 16 // nst
            for st in range(nst):
                gs = p['stages'][st]
                for ks in range(kper):
                    s = st * kper + ks
                    npan = 1 if p['kind'] == 'p1' else 2
                    for tl in range(2):
                        for pn in range(npan):
                            items.append(dict(gs=gs, p=p, s=s, ks=ks, pn=pn, tl=tl))
        n = len(items)
        bg = []

        def issue_reads(k):
            it = items[k]
            slot = it['gs'] % 4
            off = (slot & 1) * 32768 + it['pn'] * 16384 + it['ks'] * 4096
            addr = self.vTR + it['tl'] + (2 if slot >= 2 else 0)
            dst = self.POOL + 4 * (k % self.NP)
            a('ds_read_b64_tr_b16 %s, v%d offset:%d' % (vr(dst, 2), addr, off), tag=('f', k))
            a('ds_read_b64_tr_b16 %s, v%d offset:%d' % (vr(dst + 2, 2), addr, off + 512), tag=('f', k))

        def pop_bg(cnt):
            for _ in range(cnt):
                if not bg:
                    return
                t = bg.pop(0)
                if isinstance(t, tuple) and isinstance(t[0], list):
                    self.emit_group(t)
                else:
                    a(t[0], tag=t[1])

        cur_gs = None
        issued = 0
        nq = []
        later = None
        if passes[0].get('norm'):
            for t in self.ln_norm(0):
                a(t)
        for k in range(n):
            it = items[k]
            p = it['p']
            if it['gs'] != cur_gs:
                cur_gs = it['gs']
                if cur_gs != first_stage_ready:
                    if (cur_gs + 1) in stages:
                        a.wait_vm(('dma', cur_gs + 1))
                    a('s_barrier')
                    if (cur_gs + 3) in stages:
                        bg[0:0] = list(stages[cur_gs + 3])
            while issued < n and issued <= k + self.LA:
                issue_reads(issued)
                issued += 1
            if p.get('norm') and it['tl'] == 0 and it['pn'] == 0:
                for t in nq:
                    a(t)
                nq = self.ln_norm(it['s'] + 1) if it['s'] < 15 else []
            a.wait_lg(('f', k))
            w = self.POOL + 4 * (k % self.NP)
            for tt in range(2):
                acc = p['acc'] + 16 * it['pn'] + 8 * it['tl'] + 4 * tt
                x = self.X(tt, it['s'])
                c = '0' if it['s'] == 0 else vr(acc, 4)
                if p.get('isv'):
                    a('v_mfma_f32_16x16x32_bf16 %s, %s, %s, %s' % (vr(acc, 4), vr(x, 4), vr(w, 4), c))
                else:
                    a('v_mfma_f32_16x16x32_bf16 %s, %s, %s, %s' % (vr(acc, 4), vr(w, 4), vr(x, 4), c))
                for _ in range(8):
                    if nq:
                        a(nq.pop(0))
            if later is not None and k >= later[0]:
                bg.extend(later[1])
                later = None
            pop_bg(self.BGRATE)
            last_of_pass = (k == n - 1) or (items[k + 1]['p'] is not p)
            if last_of_pass:
                assert later is None
                pop_bg(10 ** 6)
                if p['kind'] == 'p1':
                    e = self.epi_qkv(p['acc'], p['pidx'], p.get('isv'))
                else:
                    e = self.epi_geglu(p['acc'], p['pidx'])
                later = (k + 2, e)
        bg.extend(later[1])
        return bg

    BGRATE = 5

    def phase1(self, p3_stages):
        a = self.a
        self.p1_lane_setup()
        LB, LJ = self.lab('typeB'), self.lab('p1join')
        a('s_cmp_eq_u32 s%d, 3' % sI)
        a.branch('s_cbranch_scc1 ' + LB)
        vm0 = list(a.vm)
        for typ in ('A', 'B'):
            a.vm = list(vm0)
            if typ == 'B':
                a.label(LB)
            self.p1_scalar_setup(typ)
            if typ == 'A':
                plist = [('p1', 0), ('p2', 1), ('p2', 2)]
            else:
                plist = [('p1', 0), ('p1', 1), ('p1', 2), ('p2', 3)]
            stages = {}
            passes = []
            gs = 0
            for k, (kind, pidx) in enumerate(plist):
                nst = 2 if kind == 'p1' else 4
                ids = list(range(gs, gs + nst))
                for st, g_ in enumerate(ids):
                    stages[g_] = (self.dma_p1 if kind == 'p1' else self.dma_p2)(pidx, st, g_ % 4, g_)
                gs += nst
                passes.append(dict(kind=kind, pidx=pidx, stages=ids, acc=self.ACC[(k + 1) % 2 if typ == 'A' else k % 2],
                                   isv=(typ == 'B' and k == 2), norm=(k == 0)))
            assert gs == 10
            for k, f in enumerate(p3_stages):
                stages[10 + k] = f((10 + k) % 4, 10 + k)
            for g_ in range(4):
                for grp in stages[g_]:
                    self.emit_group(grp)
            self.ln_stats()
            import math
            k0 = -2.0 * math.log2(math.e) * math.sqrt(2.0 / math.pi)
            a('s_mov_b32 s%d, %s' % (sK1, f32(k0 * 0.044715)))
            a('s_mov_b32 s%d, %s' % (sK0, f32(k0)))
            a.wait_vm(('dma', 1))
            a('s_barrier')
            if typ == 'A':
                LV, LA2 = self.lab('Av'), self.lab('Ajoin')
                a('s_cmp_eq_u32 s%d, 2' % sI)
                a.branch('s_cbranch_scc1 ' + LV)
                vm1, lg1 = list(a.vm), list(a.lg)
                for isv in (False, True):
                    a.vm, a.lg = list(vm1), list(lg1)
                    if isv:
                        a.label(LV)
                    passes[0]['isv'] = isv
                    bg = self.run_passes(passes[:1], stages, 0)
                    for t in bg:
                        a(t[0], tag=t[1])
                    if not isv:
                        a.branch('s_branch ' + LA2)
                a.label(LA2)
                a('v_mov_b32 v%d, s%d' % (self.TMP + 12, sK0))
                bg = self.run_passes(passes[1:], stages, None)
            else:
                bg = self.run_passes(passes[:3], stages, 0)
                for t in bg:
                    a(t[0], tag=t[1])
                a('v_mov_b32 v%d, s%d' % (self.TMP + 12, sK0))
                bg = self.run_passes(passes[3:], stages, None)
            for t in bg:
                a(t[0], tag=t[1])
            a.wait_vm0()
            if typ == 'A':
                a.branch('s_branch ' + LJ)
        a.label(LJ)

    def attention(self):
        a = self.a
        SB = 0
        KB = 144
        VB = 180
        QB = 216
        t = 220
        vL16 = t
        LANE = t + 1
        a('v_mbcnt_lo_u32_b32 v%d, -1, 0' % LANE)
        a('v_mbcnt_hi_u32_b32 v%d, -1, v%d' % (LANE, LANE))
        a('v_lshlrev_b32 v%d, 4, v%d' % (vL16, LANE))
        a('s_lshl_b32 s%d, s%d, 3' % (sHEAD, sQUAD))
        a('s_lshl_b32 s%d, s%d, 1' % (sT0, sI))
        a('s_add_u32 s%d, s%d, s%d' % (sHEAD, sHEAD, sT0))
        a('s_add_u32 s%d, s%d, s%d' % (sHEAD, sHEAD, sC))
        a('s_lshl_b32 s%d, s%d, 2' % (sQB, sMB))
        a('s_add_u32 s%d, s%d, s%d' % (sQB, sQB, sR))
        a('s_lshl_b32 s%d, s%d, 6' % (sT0, sHEAD))
        a('s_add_u32 s%d, s%d, s%d' % (sT1, sT0, sQB))
        a('s_lshl_b32 s%d, s%d, 10' % (sT1, sT1))
        a('buffer_load_dwordx4 %s, v%d, %s, s%d offen%s' % (vr(QB, 4), vL16, sr(S_WS, 4), sT1, self.sc), tag='q')
        for j in range(9):
            a('s_add_i32 s%d, s%d, %d' % (sT1, sQB, j - 8))
            a('s_max_i32 s%d, s%d, 0' % (sT1, sT1))
            a('s_add_u32 s%d, s%d, s%d' % (sT1, sT1, sT0))
            a('s_lshl_b32 s%d, s%d, 10' % (sT1, sT1))
            a('s_add_u32 s%d, s%d, 0x%x' % (sT2, sT1, 2 << 20))
            a('buffer_load_dwordx4 %s, v%d, %s, s%d offen%s' % (vr(KB + 4 * j, 4), vL16, sr(S_WS, 4), sT2, self.sc), tag=('k', j))
            a('s_add_u32 s%d, s%d, 0x%x' % (sM + j, sT1, 4 << 20))
        for j in range(9):
            a('buffer_load_dwordx4 %s, v%d, %s, s%d offen%s' % (vr(VB + 4 * j, 4), vL16, sr(S_WS, 4), sM + j, self.sc), tag=('v', j))
        TQ = t + 2
        a('v_and_b32 v%d, 31, v%d' % (TQ, LANE))
        a('v_lshrrev_b32 v%d, 5, v%d' % (t + 3, LANE))
        a('v_lshlrev_b32 v%d, 2, v%d' % (t + 3, t + 3))
        a('v_sub_u32 v%d, v%d, v%d' % (TQ, TQ, t + 3))
        NEG = t + 4
        a('v_mov_b32 v%d, %s' % (NEG, f32(-1e30)))
        import math
        a('s_mov_b32 s%d, %s' % (sK2, f32(0.25 * math.log2(math.e))))
        for j in range(9):
            a.wait_vm(('k', j))
            a('v_mfma_f32_32x32x16_bf16 %s, %s, %s, 0' % (vr(SB + 16 * j, 16), vr(KB + 4 * j, 4), vr(QB, 4)))
        for half in range(2):
            for r in range(8 * half, 8 * half + 8):
                cr = (r & 3) + 8 * (r >> 2)
                a('v_cmp_le_i32 %s, %d, v%d' % (sr(sM + 2 * (r % 8), 2), cr, TQ))
            for r in range(8 * half, 8 * half + 8):
                m = sr(sM + 2 * (r % 8), 2)
                a('v_cndmask_b32 v%d, v%d, v%d, %s' % (SB + r, SB + r, NEG, m))
                a('v_cndmask_b32 v%d, v%d, v%d, %s' % (SB + 128 + r, NEG, SB + 128 + r, m))
        LD = self.lab('valid')
        for j in range(8):
            a('s_cmp_ge_u32 s%d, %d' % (sQB, 8 - j))
            a.branch('s_cbranch_scc1 ' + LD)
            for r in range(16):
                a('v_mov_b32 v%d, v%d' % (SB + 16 * j + r, NEG))
        a.label(LD)
        M = t + 5
        vals = list(range(SB, SB + 144))
        for c in range(4):
            a('v_max3_f32 v%d, v%d, v%d, v%d' % (M + c, vals[0], vals[1], vals[2]))
            vals = vals[3:]
        c = 0
        while vals:
            a('v_max3_f32 v%d, v%d, v%d, v%d' % (M + c, M + c, vals[0], vals[1]))
            vals = vals[2:]
            c = (c + 1) % 4
        a('v_max3_f32 v%d, v%d, v%d, v%d' % (M, M, M + 1, M + 2))
        a('v_max_f32 v%d, v%d, v%d' % (M, M, M + 3))
        a('v_mov_b32 v%d, v%d' % (M + 1, M))
        a('v_permlane32_swap_b32 v%d, v%d' % (M, M + 1))
        a('v_max_f32 v%d, v%d, v%d' % (M, M, M + 1))
        a('v_mul_f32 v%d, s%d, v%d' % (M, sK2, M))
        LS = t + 9
        a('v_mov_b32 v%d, 0' % LS)
        a('v_mov_b32 v%d, 0' % (LS + 1))
        D1, D2 = KB, KB + 16
        for j in range(9):
            b = SB + 16 * j
            for r in range(16):
                a('v_fma_f32 v%d, v%d, s%d, -v%d' % (b + r, b + r, sK2, M))
            for r in range(16):
                a('v_exp_f32 v%d, v%d' % (b + r, b + r))
            for r in range(8):
                a('v_cvt_pk_bf16_f32 v%d, v%d, v%d' % (b + r, b + 2 * r, b + 2 * r + 1))
            for r in range(8):
                a('v_dot2c_f32_bf16 v%d, s%d, v%d' % (LS + (r & 1), sONES, b + r))
            a.wait_vm(('v', j))
            a('v_mfma_f32_32x32x16_bf16 %s, %s, %s, %s' % (vr(D1, 16), vr(VB + 4 * j, 4), vr(b, 4), '0' if j == 0 else vr(D1, 16)))
            a('v_mfma_f32_32x32x16_bf16 %s, %s, %s, %s' % (vr(D2, 16), vr(VB + 4 * j, 4), vr(b + 4, 4), '0' if j == 0 else vr(D2, 16)))
        a('v_add_f32 v%d, v%d, v%d' % (LS, LS, LS + 1))
        a('v_mov_b32 v%d, v%d' % (LS + 1, LS))
        a('v_permlane32_swap_b32 v%d, v%d' % (LS, LS + 1))
        a('v_add_f32 v%d, v%d, v%d' % (LS, LS, LS + 1))
        a('v_rcp_f32 v%d, v%d' % (LS, LS))
        for r in range(8):
            a('v_add_f32 v%d, v%d, v%d' % (D1 + r, D1 + r, D2 + 8 + r))
        for r in range(8):
            a('v_mul_f32 v%d, v%d, v%d' % (D1 + r, D1 + r, LS))
        O = t + 12
        assert O % 4 == 0
        for r in range(4):
            a('v_cvt_pk_bf16_f32 v%d, v%d, v%d' % (O + r, D1 + 2 * r, D1 + 2 * r + 1))
        a('s_mul_i32 s%d, s%d, %d' % (sT0, sQB, NACT))
        a('s_add_u32 s%d, s%d, s%d' % (sT0, sT0, sHEAD))
        a('s_add_u32 s%d, s%d, 112' % (sT0, sT0))
        a('s_lshl_b32 s%d, s%d, 10' % (sT0, sT0))
        a('s_add_u32 s%d, s%d, 0x%x' % (sT0, sT0, WS_ACT))
        a('buffer_store_dwordx4 %s, v%d, %s, s%d offen%s' % (vr(O, 4), vL16, sr(S_WS, 4), sT0, self.sc), tag='st')

    v3DW, v3DO = 244, 245
    def p3_setup_dma(self):
        a = self.a
        t = self.TMP
        L = t
        a('v_mbcnt_lo_u32_b32 v%d, -1, 0' % L)
        a('v_mbcnt_hi_u32_b32 v%d, -1, v%d' % (L, L))
        a('s_and_b32 s%d, s%d, 3' % (sKQ, sW))
        a('s_lshr_b32 s%d, s%d, 2' % (sTH, sW))
        ROW, P_, S_ = t + 1, t + 2, t + 3
        a('v_lshrrev_b32 v%d, 3, v%d' % (ROW, L))
        a('v_and_b32 v%d, 7, v%d' % (P_, L))
        a('v_bfe_u32 v%d, v%d, 1, 1' % (S_, ROW))
        a('v_lshlrev_b32 v%d, 2, v%d' % (S_, S_))
        a('v_xor_b32 v%d, v%d, v%d' % (P_, P_, S_))
        a('v_lshlrev_b32 v%d, 4, v%d' % (P_, P_))
        a('v_lshl_add_u32 v%d, v%d, 10, v%d' % (self.v3DW, ROW, P_))
        a('v_lshrrev_b32 v%d, 2, v%d' % (S_, ROW))
        a('v_and_b32 v%d, 3, v%d' % (ROW, ROW))
        a('v_lshl_add_u32 v%d, v%d, 3, v%d' % (ROW, S_, ROW))
        a('v_lshl_add_u32 v%d, v%d, 10, v%d' % (self.v3DO, ROW, P_))
        a('s_lshl_b32 s%d, s%d, 7' % (sT0, sNB))
        a('s_lshl_b32 s%d, s%d, 5' % (sT1, sTH))
        a('s_mul_i32 s%d, s%d, 448' % (sT2, sKQ))
        a('s_add_u32 s%d, s%d, s%d' % (sT2, sT2, sT1))
        a('s_lshl_b32 s%d, s%d, 10' % (sT2, sT2))
        a('s_add_u32 s%d, s%d, s%d' % (sWD, sT2, sT0))
        a('s_lshl_b32 s%d, s%d, 7' % (sT2, sKQ))
        a('s_add_u32 s%d, s%d, s%d' % (sT2, sT2, sT1))
        a('s_lshl_b32 s%d, s%d, 10' % (sT2, sT2))
        a('s_add_u32 s%d, s%d, s%d' % (sWOo, sT2, sT0))
        a('s_lshl_b32 s%d, s%d, 13' % (sT2, sKQ))
        a('s_lshl_b32 s%d, s%d, 12' % (sT1, sTH))
        a('s_add_u32 s%d, s%d, s%d' % (sWB3, sT2, sT1))

    def p3_stage_fn(self, st):
        def f(slot, gs):
            out = []
            for j in range(4):
                if st < 7:
                    so = (64 * st + 8 * j) * 1024
                    out.append((['s_add_u32 s%d, s%d, 0x%x' % (sT0, sWD, so),
                                 's_add_u32 m0, s%d, 0x%x' % (sWB3, slot * 32768 + 1024 * j),
                                 'buffer_load_dwordx4 v%d, %s, s%d offen lds' % (self.v3DW, sr(S_DOWN, 4), sT0)], ('dma', gs)))
                else:
                    so = (64 * (st - 7) + 16 * (j >> 1) + 4 * (j & 1)) * 1024
                    out.append((['s_add_u32 s%d, s%d, 0x%x' % (sT0, sWOo, so),
                                 's_add_u32 m0, s%d, 0x%x' % (sWB3, slot * 32768 + 1024 * j),
                                 'buffer_load_dwordx4 v%d, %s, s%d offen lds' % (self.v3DO, sr(S_WO, 4), sT0)], ('dma', gs)))
            return out
        return f

    def phase3(self, gs0, dma_issued):
        a = self.a
        ACC = 0
        AB = 32
        PB = 96
        NP, LA = 8, 5
        t = 128
        LANE, vL16, TRa = t, t + 1, t + 2
        XR = t + 8
        vO = t + 6
        a('v_mbcnt_lo_u32_b32 v%d, -1, 0' % LANE)
        a('v_mbcnt_hi_u32_b32 v%d, -1, v%d' % (LANE, LANE))
        a('v_lshlrev_b32 v%d, 4, v%d' % (vL16, LANE))
        a('s_lshl_b32 s%d, s%d, 1' % (sT0, sTB))
        a('s_add_u32 s%d, s%d, s%d' % (sT0, sT0, sTH))
        a('s_mul_i32 s%d, s%d, %d' % (sT1, sT0, NACT))
        a('s_mul_i32 s%d, s%d, 28' % (sT2, sKQ))
        a('s_add_u32 s%d, s%d, s%d' % (sT2, sT2, sT1))
        a('s_lshl_b32 s%d, s%d, 10' % (sT2, sT2))
        a('s_add_u32 s%d, s%d, 0x%x' % (sACT, sT2, WS_ACT))
        a('s_lshl_b32 s%d, s%d, 3' % (sT2, sKQ))
        a('s_add_u32 s%d, s%d, s%d' % (sT2, sT2, sT1))
        a('s_add_u32 s%d, s%d, 112' % (sT2, sT2))
        a('s_lshl_b32 s%d, s%d, 10' % (sT2, sT2))
        a('s_add_u32 s%d, s%d, 0x%x' % (sACTO, sT2, WS_ACT))

        def act_loads(st):
            base, off = (sACT, st * 4096) if st < 7 else (sACTO, (st - 7) * 4096)
            out = [('s_add_u32 s%d, s%d, 0x%x' % (sT1, base, off), None)]
            for j in range(4):
                out.append(('buffer_load_dwordx4 %s, v%d, %s, s%d offen offset:%d%s' % (
                    vr(AB + 16 * (st % 4) + 4 * j, 4), vL16, sr(S_WS, 4), sT1, 1024 * j, self.sc), ('act', st, j)))
            return out

        stages = {gs0 + st: self.p3_stage_fn(st)((gs0 + st) % 4, gs0 + st) for st in range(9)}
        for st in range(3):
            for tx, tg in act_loads(st):
                a(tx, tag=tg)
            if st >= dma_issued:
                for grp in stages[gs0 + st]:
                    self.emit_group(grp)
        if dma_issued <= 3:
            for grp in stages[gs0 + 3]:
                self.emit_group(grp)
        A_, B_, C_ = t + 12, t + 13, t + 14
        a('v_lshrrev_b32 v%d, 5, v%d' % (A_, LANE))
        a('v_bfe_u32 v%d, v%d, 2, 2' % (B_, LANE))
        a('v_lshl_add_u32 v%d, v%d, 3, v%d' % (B_, A_, B_))
        a('v_lshlrev_b32 v%d, 7, v%d' % (B_, B_))
        a('v_bfe_u32 v%d, v%d, 4, 1' % (C_, LANE))
        a('v_lshl_add_u32 v%d, v%d, 5, v%d' % (B_, C_, B_))
        a('v_and_b32 v%d, 3, v%d' % (C_, LANE))
        a('v_lshl_add_u32 v%d, v%d, 3, v%d' % (B_, C_, B_))
        a('s_lshl_b32 s%d, s%d, 13' % (sT0, sKQ))
        a('v_add_u32 v%d, s%d, v%d' % (B_, sT0, B_))
        a('v_bfe_u32 v%d, v%d, 3, 1' % (C_, LANE))
        a('v_lshl_add_u32 v%d, v%d, 6, v%d' % (TRa, C_, B_))
        a('v_xor_b32 v%d, 1, v%d' % (C_, C_))
        a('v_lshl_add_u32 v%d, v%d, 6, v%d' % (TRa + 1, C_, B_))
        a('v_add_u32 v%d, 0x10000, v%d' % (TRa + 2, TRa))
        a('v_add_u32 v%d, 0x10000, v%d' % (TRa + 3, TRa + 1))
        a('s_lshl_b32 s%d, s%d, 1' % (sT0, sTB))
        a('s_add_u32 s%d, s%d, s%d' % (sT0, sT0, sTH))
        a('s_lshl_b32 s%d, s%d, 5' % (sT0, sT0))
        a('v_and_b32 v%d, 31, v%d' % (B_, LANE))
        a('v_add_u32 v%d, s%d, v%d' % (B_, sT0, B_))
        a('v_lshlrev_b32 v%d, 10, v%d' % (B_, B_))
        a('v_lshl_add_u32 v%d, v%d, 4, v%d' % (B_, A_, B_))
        a('s_lshl_b32 s%d, s%d, 7' % (sT0, sNB))
        a('s_lshl_b32 s%d, s%d, 5' % (sT1, sKQ))
        a('s_add_u32 s%d, s%d, s%d' % (sT0, sT0, sT1))
        a('v_add_u32 v%d, s%d, v%d' % (vO, sT0, B_))

        items = [(st, j, ft) for st in range(9) for j in range(4) for ft in range(2)]
        n = len(items)
        bg = []

        def issue_reads(k):
            st, j, ft = items[k]
            slot = (gs0 + st) % 4
            off = (slot & 1) * 32768 + j * 2048
            addr = TRa + ft + (2 if slot >= 2 else 0)
            dst = PB + 4 * (k % NP)
            a('ds_read_b64_tr_b16 %s, v%d offset:%d' % (vr(dst, 2), addr, off), tag=('f', k))
            a('ds_read_b64_tr_b16 %s, v%d offset:%d' % (vr(dst + 2, 2), addr, off + 512), tag=('f', k))

        def pop_bg(cnt):
            for _ in range(cnt):
                if not bg:
                    return
                tt = bg.pop(0)
                if isinstance(tt[0], list):
                    self.emit_group(tt)
                else:
                    a(tt[0], tag=tt[1])

        a.wait_vm(('dma', gs0 + 1))
        a('s_barrier')
        issued = 0
        cur = 0
        for k in range(n):
            st, j, ft = items[k]
            if st != cur:
                cur = st
                if st + 1 < 9:
                    a.wait_vm(('dma', gs0 + st + 1))
                a('s_barrier')
                if st + 3 < 9:
                    bg.extend(stages[gs0 + st + 3])
                if st + 2 < 9:
                    bg.extend(act_loads(st + 2))
                if st == 6:
                    bg.append(('buffer_load_dwordx4 %s, v%d, %s, 0 offen' % (vr(XR, 4), vO, sr(S_X, 4)), 'xr'))
            while issued < n and issued <= k + LA:
                issue_reads(issued)
                issued += 1
            a.wait_vm(('act', st, j))
            a.wait_lg(('f', k))
            acc = ACC + 16 * ft
            c = '0' if (st == 0 and j == 0) else vr(acc, 16)
            a('v_mfma_f32_32x32x16_bf16 %s, %s, %s, %s' % (vr(acc, 16), vr(PB + 4 * (k % NP), 4),
                                                         vr(AB + 16 * (st % 4) + 4 * j, 4), c))
            pop_bg(2)
        pop_bg(10 ** 6)
        rb = (((gs0 + 8) % 4 + 1) % 4) * 32768
        assert rb + 49152 <= 131072 + 32768
        vW = A_
        a('s_mul_i32 s%d, s%d, 24576' % (sT0, sTH))
        a('s_add_u32 s%d, s%d, %d' % (sT0, sT0, rb))
        a('v_add_u32 v%d, s%d, v%d' % (vW, sT0, vL16))
        LBL = [self.lab('red%d' % q) for q in range(4)]
        LE = self.lab('rede')
        for q in range(1, 4):
            a('s_cmp_eq_u32 s%d, %d' % (sKQ, q))
            a.branch('s_cbranch_scc1 ' + LBL[q])
        RES = 64
        for q in range(4):
            if q:
                a.label(LBL[q])
            for o in range(4):
                if o == q:
                    continue
                sl = (q - o - 1) & 3
                off = o * 6144 + sl * 2048
                a('ds_write_b128 v%d, %s offset:%d' % (vW, vr(ACC + 8 * o, 4), off))
                a('ds_write_b128 v%d, %s offset:%d' % (vW, vr(ACC + 8 * o + 4, 4), off + 1024))
            for e in range(8):
                a('v_mov_b32 v%d, v%d' % (RES + e, ACC + 8 * q + e))
            if q < 3:
                a.branch('s_branch ' + LE)
        a.label(LE)
        a('s_mul_i32 s%d, s%d, 6144' % (sT0, sKQ))
        a('v_add_u32 v%d, s%d, v%d' % (vW, sT0, vW))
        a.wait_lg0()
        a('s_barrier')
        RB = 32
        for sl in range(3):
            a('ds_read_b128 %s, v%d offset:%d' % (vr(RB + 8 * sl, 4), vW, sl * 2048), tag=('r', sl))
            a('ds_read_b128 %s, v%d offset:%d' % (vr(RB + 8 * sl + 4, 4), vW, sl * 2048 + 1024), tag=('r', sl))
        for sl in range(3):
            a.wait_lg(('r', sl))
            for e in range(8):
                a('v_add_f32 v%d, v%d, v%d' % (RES + e, RES + e, RB + 8 * sl + e))
        for e in range(4):
            a('v_permlane32_swap_b32 v%d, v%d' % (RES + e, RES + 4 + e))
        a.wait_vm('xr')
        for e in range(4):
            a('v_lshlrev_b32 v%d, 16, v%d' % (RB + 2 * e, XR + e))
            a('v_and_b32 v%d, s%d, v%d' % (RB + 2 * e + 1, sMASKHI, XR + e))
        for e in range(8):
            a('v_add_f32 v%d, v%d, v%d' % (RES + e, RES + e, RB + e))
        for e in range(4):
            a('v_cvt_pk_bf16_f32 v%d, v%d, v%d' % (RB + 8 + e, RES + 2 * e, RES + 2 * e + 1))
        a('buffer_store_dwordx4 %s, v%d, %s, 0 offen' % (vr(RB + 8, 4), vO, sr(S_OUT, 4)), tag='st')


HEADER = open('cdna_kernels/%s.s.ref' % NAME).read().split('; Override launch geometry')[0]

KD = '''.section .rodata,"a"
.p2align 6
.amdhsa_kernel %s
  .amdhsa_next_free_vgpr 256
  .amdhsa_next_free_sgpr 102
  .amdhsa_accum_offset 256
  .amdhsa_group_segment_fixed_size 0
  .amdhsa_kernarg_size 80
  .amdhsa_user_sgpr_count 2
  .amdhsa_user_sgpr_kernarg_segment_ptr 1
  .amdhsa_system_sgpr_workgroup_id_x 1
.end_amdhsa_kernel
'''


def kernel(name, body):
    return ('.text\n.globl %s\n.p2align 8\n.type %s,@function\n%s:\n' % (name, name, name)) + body + KD % name


def build_split():
    ks = []
    g = Gen(False, False)
    g.uid = 100
    g.setup('L_end1')
    g.phase1([])
    g.a.label('L_end1')
    g.a('s_endpgm')
    ks.append(('p1_kernel', g.a.text()))
    g = Gen(False, False)
    g.uid = 200
    g.setup('L_end2')
    g.attention()
    g.a.label('L_end2')
    g.a('s_endpgm')
    ks.append(('p2_kernel', g.a.text()))
    g = Gen(False, False)
    g.uid = 300
    g.setup('L_end3')
    g.p3_setup_dma()
    g.phase3(0, 0)
    g.a.label('L_end3')
    g.a('s_endpgm')
    ks.append(('p3_kernel', g.a.text()))
    out = HEADER
    for n, _ in ks:
        out += '; @launch kernel=%s grid=(256,1,1) block=(512,1,1) lds=%d\n' % (n, 0 if n == 'p2_kernel' else 163840)
    out += '.amdgcn_target "amdgcn-amd-amdhsa--gfx950"\n'
    for n, b in ks:
        out += kernel(n, b)
    return out


if __name__ == '__main__':
    mode = sys.argv[1] if len(sys.argv) > 1 else 'split'
    dst = sys.argv[2] if len(sys.argv) > 2 else 'cdna_kernels/%s.s' % NAME
    txt = build_split()
    open(dst, 'w').write(txt)
    print('wrote', dst, len(txt), 'bytes')
```

```python
import re

TRANS = ('v_exp_f32', 'v_log_f32', 'v_rcp_f32', 'v_rsq_f32', 'v_sqrt_f32', 'v_sin_f32', 'v_cos_f32')


def _regs(tok):
    tok = tok.strip()
    neg = tok.startswith('-')
    if neg:
        tok = tok[1:]
    if tok.startswith('abs(') and tok.endswith(')'):
        tok = tok[4:-1]
    if tok.startswith('|') and tok.endswith('|'):
        tok = tok[1:-1]
    m = re.fullmatch(r'([vsa])(\d+)', tok)
    if m:
        return {(m.group(1), int(m.group(2)))}
    m = re.fullmatch(r'([vsa])\[(\d+):(\d+)\]', tok)
    if m:
        return {(m.group(1), k) for k in range(int(m.group(2)), int(m.group(3)) + 1)}
    if tok in ('vcc', 'vcc_lo', 'vcc_hi'):
        return {('s', 'vcc')}
    if tok in ('exec', 'exec_lo', 'exec_hi'):
        return {('s', 'exec')}
    if tok == 'm0':
        return {('s', 'm0')}
    return set()


class Ins:
    __slots__ = ('text', 'op', 'cls', 'rd', 'wr', 'passes', 'srcA', 'srcB', 'srcC', 'trans', 'dot',
                 'states', 'wide_store', 'ldsdma', 'dpp', 'permlane', 'pos')

    def __init__(self, text):
        self.text = text
        t = text.split(';')[0].strip()
        parts = t.split(None, 1)
        op = parts[0]
        self.op = op
        rest = parts[1] if len(parts) > 1 else ''
        ops = [o.strip() for o in rest.split(',')] if rest else []
        mods = []
        if ops:
            last = ops[-1]
            sp = re.split(r'\s+', last)
            ops[-1] = sp[0]
            mods = sp[1:]
        self.rd = set()
        self.wr = set()
        self.passes = 0
        self.srcA = self.srcB = self.srcC = set()
        self.trans = False
        self.dot = False
        self.states = 1
        self.wide_store = None
        self.ldsdma = False
        self.dpp = ('row_' in t) or ('quad_perm' in t) or ('_dpp' in op)
        self.permlane = op.startswith('v_permlane')
        cut = None
        for k, o in enumerate(ops):
            if ' ' in o:
                ops[k] = o.split()[0]
                cut = k + 1
                break
        if cut is not None:
            ops = ops[:cut]
        R = [_regs(o) for o in ops]
        if op.startswith('v_mfma'):
            self.cls = 'mfma'
            self.passes = 8 if '32x32' in op else 4
            self.wr = R[0]
            self.srcA, self.srcB, self.srcC = R[1], R[2], R[3]
            self.rd = R[1] | R[2] | R[3]
        elif op.startswith('v_'):
            self.cls = 'valu'
            base = op.replace('_e32', '').replace('_e64', '')
            self.trans = base in TRANS
            self.dot = base.startswith('v_dot')
            if self.permlane:
                self.wr = R[0] | R[1]
                self.rd = R[0] | R[1]
            elif base.startswith('v_cmp'):
                self.wr = R[0]
                for r in R[1:]:
                    self.rd |= r
            elif base in ('v_add_co_u32', 'v_sub_co_u32', 'v_addc_co_u32'):
                self.wr = R[0] | R[1]
                for r in R[2:]:
                    self.rd |= r
            else:
                self.wr = R[0]
                for r in R[1:]:
                    self.rd |= r
                if base in ('v_fmac_f32', 'v_dot2c_f32_bf16', 'v_writelane_b32'):
                    self.rd |= R[0]
        elif op.startswith('ds_'):
            self.cls = 'ds'
            if op.startswith('ds_read') or op.startswith('ds_bpermute') or op.startswith('ds_swizzle'):
                self.wr = R[0]
                for r in R[1:]:
                    self.rd |= r
            else:
                for r in R:
                    self.rd |= r
        elif op.startswith('buffer_') or op.startswith('global_'):
            self.cls = 'vmem'
            islds = 'lds' in mods
            if op in ('buffer_wbl2', 'buffer_inv'):
                pass
            elif 'load' in op and islds:
                self.ldsdma = True
                for r in R:
                    self.rd |= r
                self.rd |= {('s', 'm0')}
            elif 'load' in op:
                self.wr = R[0]
                for r in R[1:]:
                    self.rd |= r
            elif 'atomic' in op:
                for r in R:
                    self.rd |= r
                if 'sc0' in mods:
                    self.wr = R[0] if op.startswith('buffer_') else R[0]
            else:
                for r in R:
                    self.rd |= r
                if 'x4' in op or 'x3' in op:
                    self.wide_store = R[0] if op.startswith('buffer_') else R[1]
        elif op.startswith('s_'):
            self.cls = 'salu'
            if op == 's_nop':
                self.states = int(ops[0], 0) + 1
            elif op.startswith('s_cmp') or op.startswith('s_cbranch') or op in (
                    's_branch', 's_waitcnt', 's_barrier', 's_endpgm', 's_sleep', 's_setprio'):
                for r in R:
                    self.rd |= r
            else:
                if R:
                    self.wr = R[0]
                for r in R[1:]:
                    self.rd |= r
                if 'saveexec' in op:
                    self.wr |= {('s', 'exec')}
        else:
            raise ValueError('unknown instruction: ' + text)


def _v(s):
    return {r for r in s if r[0] in 'va'}


def _s(s):
    return {r for r in s if r[0] == 's'}


def need(p, c):
    n = 0
    if p.cls == 'valu':
        wv = _v(p.wr)
        if wv:
            hit = wv & c.rd
            if hit:
                if c.cls == 'mfma':
                    n = max(n, 2)
                if c.permlane or c.dpp:
                    n = max(n, 2)
                if c.op.startswith('v_readlane') or c.op.startswith('v_readfirstlane'):
                    n = max(n, 1)
                if p.trans and c.cls in ('valu', 'mfma') and not c.trans:
                    n = max(n, 1)
            if p.dot and (wv & (c.rd | c.wr)):
                same = c.dot and c.op == p.op
                if same:
                    if c.op.startswith('v_dot2c'):
                        ab = set()
                        toks = c.text.split(';')[0].split(None, 1)[1].split(',')
                        for tk in toks[1:]:
                            ab |= _regs(tk.split()[0])
                        if wv & ab:
                            n = max(n, 3)
                    else:
                        n = max(n, 3)
                else:
                    n = max(n, 3)
        ws = _s(p.wr)
        if ws and (ws & c.rd):
            if c.cls == 'valu':
                n = max(n, 4 if c.op.startswith(('v_readlane', 'v_writelane')) else 2)
            elif c.cls == 'vmem':
                n = max(n, 5)
            elif c.cls == 'salu':
                n = max(n, 1)
    elif p.cls == 'mfma':
        D = p.wr
        P = p.passes
        if c.cls == 'mfma':
            if D & c.srcC:
                if not (D == c.srcC and c.op == p.op):
                    n = max(n, {4: 6, 8: 10}[P])
            if D & (c.srcA | c.srcB):
                n = max(n, {4: 8, 8: 12}[P])
            if (D & c.wr) and not (D == c.srcC and c.op == p.op):
                n = max(n, {4: 8, 8: 12}[P])
        elif c.cls in ('valu', 'vmem', 'ds'):
            if D & (c.rd | c.wr):
                n = max(n, {4: 8, 8: 12}[P])
        if c.cls in ('valu', 'vmem', 'ds') and (p.srcC & c.wr):
            n = max(n, {4: 3, 8: 7}[P])
    elif p.cls == 'salu':
        if ('s', 'm0') in p.wr and c.ldsdma:
            n = max(n, 1)
    if p.wide_store and (p.wide_store & c.wr):
        n = max(n, 2 if c.cls in ('valu', 'mfma') else 1)
    return n


class Asm:
    def __init__(self):
        self.out = []
        self.hist = []
        self.pos = 0
        self.vm = []
        self.lg = []
        self.nnop = 0

    def raw(self, text):
        self.out.append(text)

    def comment(self, text):
        self.out.append('    ; ' + text)

    def _push(self, ins):
        ins.pos = self.pos
        self.pos += ins.states
        self.hist.append(ins)
        if len(self.hist) > 40:
            self.hist = self.hist[-32:]
        self.out.append('    ' + ins.text)

    def nop(self, n):
        while n > 0:
            k = min(n, 16)
            self._push(Ins('s_nop %d' % (k - 1)))
            self.nnop += k
            n -= k

    def __call__(self, text, tag=None):
        ins = Ins(text)
        req = 0
        for p in self.hist:
            nd = need(p, ins)
            if nd:
                have = self.pos - (p.pos + p.states)
                req = max(req, nd - have)
        if req > 0:
            self.nop(req)
        self._push(ins)
        if ins.cls == 'vmem':
            self.vm.append(tag)
        elif ins.cls == 'ds':
            self.lg.append(tag)
        return ins

    def flush(self):
        req = 0
        for p in self.hist:
            if p.cls == 'mfma':
                nd = {4: 8, 8: 12}[p.passes]
            elif p.cls == 'valu':
                nd = 5 if _s(p.wr) else 3
            elif p.cls == 'salu' and ('s', 'm0') in p.wr:
                nd = 1
            elif p.wide_store:
                nd = 2
            else:
                nd = 0
            req = max(req, nd - (self.pos - (p.pos + p.states)))
        if req > 0:
            self.nop(req)
        self.hist = []

    def label(self, name):
        self.flush()
        self.out.append(name + ':')

    def branch(self, text):
        self.flush()
        self(text)
        self.hist = []

    def _cnt(self, q, tag, mx):
        idx = [k for k, t in enumerate(q) if t == tag]
        if not idx:
            return None
        return len(q) - 1 - idx[-1]

    def wait_vm(self, tag):
        n = self._cnt(self.vm, tag, 63)
        if n is None:
            return
        import os
        if os.environ.get('STRICTVM'):
            cls = tag[0] if isinstance(tag, tuple) else tag
            younger = self.vm[len(self.vm) - n:] if n else []
            n = sum(1 for t in younger if (t[0] if isinstance(t, tuple) else t) == cls)
            self('s_waitcnt vmcnt(%d)' % min(n, 63))
            idx = [k for k, t in enumerate(self.vm) if t == tag][-1]
            self.vm = self.vm[idx + 1:]
            return
        n2 = min(n, 63)
        self('s_waitcnt vmcnt(%d)' % n2)
        self.vm = self.vm[len(self.vm) - n2:] if n2 else []

    def wait_lg(self, tag):
        n = self._cnt(self.lg, tag, 15)
        if n is None:
            return
        n2 = min(n, 15)
        self('s_waitcnt lgkmcnt(%d)' % n2)
        self.lg = self.lg[len(self.lg) - n2:] if n2 else []

    def wait_vm0(self):
        self('s_waitcnt vmcnt(0)')
        self.vm = []

    def wait_lg0(self):
        self('s_waitcnt lgkmcnt(0)')
        self.lg = []

    def text(self):
        return '\n'.join(self.out) + '\n'


def vr(a, n=1):
    return 'v%d' % a if n == 1 else 'v[%d:%d]' % (a, a + n - 1)


def sr(a, n=1):
    return 's%d' % a if n == 1 else 's[%d:%d]' % (a, a + n - 1)
```

```python
import sys
import struct
from asmlib import Asm, vr, sr

NAME = 'parallel_sum__sliding_block__glu_gated_geglu__prompt'

T, D, F, H = 2048, 512, 1792, 32
WS_QKV = 0
WS_ACT = 6 << 20
WS_FLAG = 16 << 20
WS_BYTES = WS_FLAG + 3 * 16 * 128
NACT = 144

S_X, S_WQKV, S_GATE, S_UP, S_DOWN, S_WO, S_OUT, S_WS, S_DBG = 4, 8, 12, 16, 20, 24, 28, 32, 36
sW, sMB, sQUAD, sI, sR, sC, sWB = 40, 41, 42, 43, 44, 45, 46
sCOL = 47
sST = 51
sT0, sT1, sT2, sT3 = 56, 57, 58, 59
sONES, sMASKHI, sK0, sK1, sK2 = 60, 61, 62, 63, 64
sTB, sNB, sKQ, sTH = 65, 66, 67, 68
sACT, sACTO, sWD, sWOo, sWB3 = 69, 70, 71, 72, 73
sQB, sHEAD = 74, 75
sLO, sHI = 92, 93
sEPOCH, sCG4, sCNT = 94, 95, 55
sM = 76


def f32(x):
    return '0x%08x' % struct.unpack('<I', struct.pack('<f', x))[0]


class Gen:
    def __init__(self, fused, sc1):
        self.a = Asm()
        self.fused = fused
        self.sc = ' sc1' if sc1 else ''
        self.uid = 0

    STAMPS = False
    STAMP2 = False
    KIDX = 0

    def stamp(self, i, vtmp):
        if not self.STAMPS:
            return
        a = self.a
        a('s_memrealtime s[98:99]')
        a('s_memtime s[96:97]')
        a('s_lshl_b32 s100, s2, 3')
        a('s_add_u32 s100, s100, s%d' % sW)
        a('s_lshl_b32 s100, s100, 8')
        a('s_add_u32 s100, s100, 0x%x' % ((32 << 20) + self.KIDX * (1 << 20)))
        a.wait_lg0()
        a('v_mov_b32 v%d, s98' % vtmp)
        a('buffer_store_dword v%d, off, %s, s100 offset:%d' % (vtmp, sr(S_WS, 4), 4 * i), tag='stamp')
        a('v_mov_b32 v%d, s96' % (vtmp + 1))
        a('buffer_store_dword v%d, off, %s, s100 offset:%d' % (vtmp + 1, sr(S_WS, 4), 128 + 4 * i), tag='stamp')

    def lab(self, s):
        self.uid += 1
        return 'L_%s_%d' % (s, self.uid)

    def setup(self, endlabel):
        a = self.a
        a('s_cmp_ge_u32 s2, 256')
        a.branch('s_cbranch_scc1 ' + endlabel)
        a('s_load_dwordx16 s[40:55], s[0:1], 0')
        a('s_load_dwordx4 s[56:59], s[0:1], 64')
        a('v_lshrrev_b32 v1, 6, v0')
        a('v_and_b32 v0, 63, v0')
        a('s_waitcnt lgkmcnt(0)')
        sizes = {S_X: (40, T * D * 2), S_WQKV: (42, D * 3 * D * 2), S_WO: (44, D * D * 2),
                 S_GATE: (48, D * F * 2), S_UP: (50, D * F * 2), S_DOWN: (52, F * D * 2),
                 S_OUT: (54, T * D * 2), S_DBG: (56, 256), S_WS: (58, (64 << 20) if self.STAMPS else WS_BYTES)}
        for srd, (p, n) in sizes.items():
            a('s_mov_b32 s%d, s%d' % (srd, p))
            a('s_and_b32 s%d, s%d, 0xffff' % (srd + 1, p + 1))
            a('s_mov_b32 s%d, 0x%x' % (srd + 2, n))
            a('s_mov_b32 s%d, 0x00020000' % (srd + 3))
        a('v_readfirstlane_b32 s%d, v1' % sW)
        a('s_and_b32 s%d, s2, 7' % sT0)
        a('s_lshr_b32 s%d, s2, 3' % sT1)
        a('s_and_b32 s%d, s%d, 1' % (sT2, sT0))
        a('s_lshl_b32 s%d, s%d, 3' % (sT2, sT2))
        a('s_and_b32 s%d, s%d, 7' % (sT3, sT1))
        a('s_add_u32 s%d, s%d, s%d' % (sMB, sT2, sT3))
        a('s_lshr_b32 s%d, s%d, 1' % (sQUAD, sT0))
        a('s_lshr_b32 s%d, s%d, 3' % (sI, sT1))
        a('s_lshl_b32 s%d, s%d, 2' % (sT2, sT0))
        a('s_and_b32 s%d, s%d, 3' % (sT3, sT1))
        a('s_add_u32 s%d, s%d, s%d' % (sTB, sT2, sT3))
        a('s_lshr_b32 s%d, s%d, 2' % (sNB, sT1))
        a('s_and_b32 s%d, s%d, 3' % (sR, sW))
        a('s_lshr_b32 s%d, s%d, 2' % (sC, sW))
        a('s_lshl_b32 s%d, s%d, 10' % (sWB, sW))
        a('s_mov_b32 s%d, 0x3f803f80' % sONES)
        a('s_mov_b32 s%d, 0xffff0000' % sMASKHI)

    def epoch_publish(self, vt):
        a = self.a
        L = self.lab('noep')
        a('s_or_b32 s%d, s2, s%d' % (sT0, sW))
        a('s_cmp_lg_u32 s%d, 0' % sT0)
        a.branch('s_cbranch_scc1 ' + L)
        a('s_memrealtime s[%d:%d]' % (sT2, sT3))
        a('s_waitcnt lgkmcnt(0)')
        a('s_or_b32 s%d, s%d, 1' % (sT2, sT2))
        a('v_mov_b32 v%d, s%d' % (vt, sT2))
        n = len(a.vm)
        a('buffer_store_dword v%d, off, %s, 0 sc0 sc1' % (vt, sr(S_DBG, 4)))
        del a.vm[n:]
        a.label(L)

    def epoch_issue(self, vt):
        self.a('buffer_load_dword v%d, off, %s, 0 sc0 sc1' % (vt, sr(S_DBG, 4)), tag='epoch')

    def epoch_get(self, vt):
        a = self.a
        Lr, Ld = self.lab('epr'), self.lab('epd')
        a.wait_vm('epoch')
        a('s_mov_b32 s%d, 0' % sCNT)
        a.label(Lr)
        a('v_readfirstlane_b32 s%d, v%d' % (sEPOCH, vt))
        a('s_cmp_lg_u32 s%d, 0' % sEPOCH)
        a.branch('s_cbranch_scc1 ' + Ld)
        a('s_sleep 4')
        n = len(a.vm)
        a('buffer_load_dword v%d, off, %s, 0 sc0 sc1' % (vt, sr(S_DBG, 4)))
        del a.vm[n:]
        a('s_waitcnt vmcnt(0)')
        a('s_add_u32 s%d, s%d, 1' % (sCNT, sCNT))
        a('s_cmp_lt_u32 s%d, 0x100000' % sCNT)
        a.branch('s_cbranch_scc1 ' + Lr)
        a.label(Ld)

    def publish(self, kind, vt):
        a = self.a
        L = self.lab('nopub')
        a('s_cmp_lg_u32 s%d, 0' % sW)
        a.branch('s_cbranch_scc1 ' + L)
        a('s_lshl_b32 s%d, s%d, 7' % (sT2, sMB))
        a('s_add_u32 s%d, s%d, s%d' % (sT2, sT2, sCG4))
        a('s_add_u32 s%d, s%d, 0x%x' % (sT2, sT2, WS_FLAG + kind * 2048))
        a('v_mov_b32 v%d, s%d' % (vt, sEPOCH))
        a('s_mov_b64 exec, 1')
        n = len(a.vm)
        a('buffer_store_dword v%d, off, %s, s%d sc0 sc1' % (vt, sr(S_WS, 4), sT2))
        del a.vm[n:]
        a('s_mov_b64 exec, -1')
        a.label(L)

    def flag_addr(self, kind, smb, va, nback):
        a = self.a
        a('v_mbcnt_lo_u32_b32 v%d, -1, 0' % va)
        a('v_mbcnt_hi_u32_b32 v%d, -1, v%d' % (va, va))
        a('v_lshrrev_b32 v%d, 4, v%d' % (va + 1, va))
        a('v_min_u32 v%d, %d, v%d' % (va + 1, nback, va + 1))
        a('v_sub_u32 v%d, s%d, v%d' % (va + 1, smb, va + 1))
        a('v_max_i32 v%d, 0, v%d' % (va + 1, va + 1))
        a('v_and_b32 v%d, 15, v%d' % (va, va))
        a('v_lshlrev_b32 v%d, 2, v%d' % (va, va))
        a('v_lshl_add_u32 v%d, v%d, 7, v%d' % (va, va + 1, va))
        a('v_add_u32 v%d, 0x%x, v%d' % (va, WS_FLAG + kind * 2048, va))

    def flag_issue(self, va, tag):
        self.a('buffer_load_dword v%d, v%d, %s, 0 offen sc0 sc1' % (va + 1, va, sr(S_WS, 4)), tag=tag)

    def flag_wait(self, va, tag):
        a = self.a
        Lr, Ld = self.lab('flr'), self.lab('fld')
        a.wait_vm(tag)
        a('s_mov_b32 s%d, 0' % sCNT)
        a.label(Lr)
        a('v_cmp_ne_u32 vcc, s%d, v%d' % (sEPOCH, va + 1))
        a.branch('s_cbranch_vccz ' + Ld)
        a('s_sleep 2')
        n = len(a.vm)
        a('buffer_load_dword v%d, v%d, %s, 0 offen sc0 sc1' % (va + 1, va, sr(S_WS, 4)))
        del a.vm[n:]
        a('s_waitcnt vmcnt(0)')
        a('s_add_u32 s%d, s%d, 1' % (sCNT, sCNT))
        a('s_cmp_lt_u32 s%d, 0x100000' % sCNT)
        a.branch('s_cbranch_scc1 ' + Lr)
        a.label(Ld)

    XB = 0
    ACC = (128, 160)
    POOL = 192
    NP = 8
    LA = 6
    TMP = 232
    vTR = 248
    vDQ, vDG = 252, 253
    vSQ, vSV = 254, 255
    vMEAN = 240
    vRSV = 224
    vK0 = 242

    XLDS = 32768

    def x_frag_reads(self):
        a = self.a
        XA = self.ACC[0] + 24
        a.wait_vm('xdma')
        a('s_barrier')
        for tt in range(2):
            for s in range(16):
                a('ds_read_b128 %s, v%d offset:%d' % (vr(self.X(tt, s), 4), XA + (s & 3), (s >> 2) * 256 + tt * 16384),
                  tag=('x', tt, s))

    def X(self, tt, s):
        return self.XB + 64 * tt + 4 * s

    def x_dma(self):
        a = self.a
        t = self.TMP
        L = t
        a('v_mov_b32 v%d, v0' % L)
        XL = self.XLDS
        a('v_lshlrev_b32 v%d, 4, v%d' % (t + 3, L))
        a('s_lshl_b32 s%d, s%d, 7' % (sT0, sMB))
        a('s_lshl_b32 s%d, s%d, 4' % (sT1, sW))
        a('s_add_u32 s%d, s%d, s%d' % (sT0, sT0, sT1))
        a('s_lshl_b32 s%d, s%d, 10' % (sT0, sT0))
        a('s_lshl_b32 s%d, s%d, 14' % (sT1, sW))
        for n in range(16):
            a('v_xor_b32 v%d, %d, v%d' % (t + 4 + (n & 1), 16 * n, t + 3))
            a('s_add_u32 s%d, s%d, %d' % (sT2, sT0, 1024 * n))
            a('s_add_u32 m0, s%d, %d' % (sT1, XL + 1024 * n))
            a('buffer_load_dwordx4 v%d, %s, s%d offen lds' % (t + 4 + (n & 1), sr(S_X, 4), sT2), tag='xdma')

    def p1_lane_setup(self):
        a = self.a
        t = self.TMP
        L, I, G = t, t + 1, t + 2
        XL = self.XLDS
        a('v_and_b32 v%d, 15, v%d' % (I, L))
        a('v_lshrrev_b32 v%d, 4, v%d' % (G, L))
        XA = self.ACC[0] + 24
        a('s_lshl_b32 s%d, s%d, 15' % (sT0, sR))
        a('s_add_u32 s%d, s%d, %d' % (sT0, sT0, XL))
        a('v_lshlrev_b32 v%d, 10, v%d' % (t + 3, I))
        a('v_add_u32 v%d, s%d, v%d' % (t + 3, sT0, t + 3))
        a('v_and_b32 v%d, 3, v%d' % (t + 4, I))
        a('v_xor_b32 v%d, v%d, v%d' % (t + 4, t + 4, G))
        a('v_lshl_add_u32 v%d, v%d, 4, v%d' % (t + 3, t + 4, t + 3))
        a('v_lshrrev_b32 v%d, 2, v%d' % (t + 4, I))
        for q in range(4):
            a('v_xor_b32 v%d, %d, v%d' % (t + 5, q, t + 4))
            a('v_lshl_add_u32 v%d, v%d, 6, v%d' % (XA + q, t + 5, t + 3))
        ROW, P_, S_ = t + 4, t + 5, t + 6
        a('v_lshrrev_b32 v%d, 3, v%d' % (ROW, L))
        a('v_and_b32 v%d, 7, v%d' % (P_, L))
        a('v_bfe_u32 v%d, v%d, 1, 1' % (S_, ROW))
        a('s_and_b32 s%d, s%d, 1' % (sT0, sW))
        a('s_lshl_b32 s%d, s%d, 1' % (sT0, sT0))
        a('v_add_u32 v%d, s%d, v%d' % (S_, sT0, S_))
        a('v_lshlrev_b32 v%d, 1, v%d' % (S_, S_))
        a('v_xor_b32 v%d, v%d, v%d' % (P_, P_, S_))
        a('v_lshlrev_b32 v%d, 4, v%d' % (P_, P_))
        a('s_lshl_b32 s%d, s%d, 3' % (sT0, sW))
        a('v_add_u32 v%d, s%d, v%d' % (ROW, sT0, ROW))
        a('s_movk_i32 s%d, 3072' % sT0)
        a('s_movk_i32 s%d, 3584' % sT1)
        a('v_mad_u32_u24 v%d, v%d, s%d, v%d' % (self.vDQ, ROW, sT0, P_))
        a('v_mad_u32_u24 v%d, v%d, s%d, v%d' % (self.vDG, ROW, sT1, P_))
        A_, B_ = t + 4, t + 5
        a('v_lshrrev_b32 v%d, 2, v%d' % (A_, I))
        a('v_lshl_add_u32 v%d, v%d, 3, v%d' % (A_, G, A_))
        a('v_lshlrev_b32 v%d, 7, v%d' % (A_, A_))
        a('v_and_b32 v%d, 3, v%d' % (B_, I))
        a('v_lshl_add_u32 v%d, v%d, 3, v%d' % (A_, B_, A_))
        a('v_bfe_u32 v%d, v%d, 3, 1' % (B_, I))
        a('v_and_b32 v%d, 1, v%d' % (S_, G))
        a('v_lshl_add_u32 v%d, v%d, 1, v%d' % (B_, S_, B_))
        a('s_lshl_b32 s%d, s%d, 1' % (sT0, sC))
        for tl in range(2):
            a('s_add_u32 s%d, s%d, %d' % (sT1, sT0, tl))
            a('v_xor_b32 v%d, s%d, v%d' % (S_, sT1, B_))
            a('v_lshl_add_u32 v%d, v%d, 5, v%d' % (self.vTR + tl, S_, A_))
            a('v_add_u32 v%d, 0x10000, v%d' % (self.vTR + 2 + tl, self.vTR + tl))
        a('v_lshrrev_b32 v%d, 1, v%d' % (A_, G))
        a('v_and_b32 v%d, 1, v%d' % (B_, G))
        a('v_lshlrev_b32 v%d, 4, v%d' % (S_, I))
        a('v_lshl_add_u32 v%d, v%d, 9, v%d' % (self.vSQ, A_, S_))
        a('v_lshl_add_u32 v%d, v%d, 8, v%d' % (self.vSQ, B_, self.vSQ))
        a('v_lshl_add_u32 v%d, v%d, 9, v%d' % (self.vSV, B_, S_))
        a('v_lshl_add_u32 v%d, v%d, 8, v%d' % (self.vSV, A_, self.vSV))

    def p1_scalar_setup(self, typ):
        a = self.a
        a('s_lshl_b32 s%d, s%d, 2' % (sT3, sMB))
        a('s_add_u32 s%d, s%d, s%d' % (sT3, sT3, sR))
        a('s_mul_i32 s%d, s%d, %d' % (sT2, sT3, NACT))
        a('s_lshl_b32 s%d, s%d, 1' % (sT1, sC))
        a('s_add_u32 s%d, s%d, s%d' % (sT2, sT2, sT1))
        a('s_mul_i32 s%d, s%d, 7' % (sT0, sQUAD))
        if typ == 'A':
            a('s_lshl_b32 s%d, s%d, 10' % (sCOL, sI))
            a('s_lshl_b32 s%d, s%d, 7' % (sM, sQUAD))
            a('s_add_u32 s%d, s%d, s%d' % (sCOL, sCOL, sM))
            a('s_add_u32 s%d, s%d, 512' % (sCOL, sCOL))
            a('s_lshl_b32 s%d, s%d, 5' % (sST, sI))
            a('s_lshl_b32 s%d, s%d, 2' % (sM, sQUAD))
            a('s_add_u32 s%d, s%d, s%d' % (sST, sST, sM))
            a('s_add_u32 s%d, s%d, 16' % (sST, sST))
            a('s_add_u32 s%d, s%d, s%d' % (sST, sST, sT1))
            a('s_lshl_b32 s%d, s%d, 6' % (sST, sST))
            a('s_add_u32 s%d, s%d, s%d' % (sST, sST, sT3))
            a('s_lshl_b32 s%d, s%d, 10' % (sST, sST))
            a('s_lshl_b32 s%d, s%d, 1' % (sM, sI))
            a('s_add_u32 s%d, s%d, s%d' % (sT0, sT0, sM))
            for k in range(2):
                a('s_add_u32 s%d, s%d, %d' % (sM, sT0, k))
                a('s_lshl_b32 s%d, s%d, 7' % (sCOL + 1 + k, sM))
                a('s_lshl_b32 s%d, s%d, 2' % (sM, sM))
                a('s_add_u32 s%d, s%d, s%d' % (sM, sM, sT2))
                a('s_lshl_b32 s%d, s%d, 10' % (sM, sM))
                a('s_add_u32 s%d, s%d, 0x%x' % (sST + 1 + k, sM, WS_ACT))
        else:
            for ty in range(3):
                a('s_lshl_b32 s%d, s%d, 7' % (sM, sQUAD))
                a('s_add_u32 s%d, s%d, %d' % (sCOL + ty, sM, 1024 * ty))
                a('s_lshl_b32 s%d, s%d, 2' % (sM, sQUAD))
                a('s_add_u32 s%d, s%d, %d' % (sM, sM, 32 * ty))
                a('s_add_u32 s%d, s%d, s%d' % (sM, sM, sT1))
                a('s_lshl_b32 s%d, s%d, 6' % (sM, sM))
                a('s_add_u32 s%d, s%d, s%d' % (sM, sM, sT3))
                a('s_lshl_b32 s%d, s%d, 10' % (sST + ty, sM))
            a('s_add_u32 s%d, s%d, 6' % (sM, sT0))
            a('s_lshl_b32 s%d, s%d, 7' % (sCOL + 3, sM))
            a('s_lshl_b32 s%d, s%d, 2' % (sM, sM))
            a('s_add_u32 s%d, s%d, s%d' % (sM, sM, sT2))
            a('s_lshl_b32 s%d, s%d, 10' % (sM, sM))
            a('s_add_u32 s%d, s%d, 0x%x' % (sST + 3, sM, WS_ACT))

    def warm_p1(self, typ):
        a = self.a
        t = self.TMP
        L = t
        D0 = self.ACC[0] + 28
        R, U = t + 4, t + 5
        a('s_bfe_u32 s%d, s2, 0x30003' % sT0)
        a('s_lshl_b32 s%d, s%d, 3' % (sT0, sT0))
        a('s_add_u32 s%d, s%d, s%d' % (sT0, sT0, sW))
        a('s_lshl_b32 s%d, s%d, 3' % (sT0, sT0))
        a('v_and_b32 v%d, 7, v%d' % (R, L))
        a('v_add_u32 v%d, s%d, v%d' % (R, sT0, R))
        a('v_lshrrev_b32 v%d, 3, v%d' % (U, L))
        a('s_movk_i32 s%d, 3072' % sT0)
        a('s_movk_i32 s%d, 3584' % sT1)
        nq, ng = (1, 2) if typ == 'A' else (3, 1)
        cg_ = sCOL + 1 if typ == 'A' else sCOL + 3
        a('v_lshlrev_b32 v%d, 10, v%d' % (t + 6, U))
        a('v_mad_u32_u24 v%d, v%d, s%d, v%d' % (t + 6, R, sT0, t + 6))
        a('v_lshlrev_b32 v%d, 7, v%d' % (t + 7, U))
        a('v_mad_u32_u24 v%d, v%d, s%d, v%d' % (t + 7, R, sT1, t + 7))
        a('s_mov_b64 exec, 0x%x' % ((1 << (8 * nq)) - 1))
        a('buffer_load_dword v%d, v%d, %s, s%d offen' % (D0, t + 6, sr(S_WQKV, 4), sCOL), tag='warm')
        a('s_mov_b64 exec, 0x%x' % ((1 << (8 * ng)) - 1))
        a('buffer_load_dword v%d, v%d, %s, s%d offen' % (D0 + 1, t + 7, sr(S_GATE, 4), cg_), tag='warm')
        a('buffer_load_dword v%d, v%d, %s, s%d offen' % (D0 + 2, t + 7, sr(S_UP, 4), cg_), tag='warm')
        a('s_mov_b64 exec, -1')
        if self.CODEPF:
            a('s_getpc_b64 s[%d:%d]' % (sT2, sT3))
            a.raw('L_pc_%s:' % typ)
            a('s_sub_u32 s%d, s%d, L_pc_%s-%s' % (sT2, sT2, typ, self.KNAME))
            a('s_subb_u32 s%d, s%d, 0' % (sT3, sT3))
            a('s_lshl_b32 s%d, s%d, 13' % (sT0, sW))
            a('v_lshlrev_b32 v%d, 7, v%d' % (t + 6, L))
            a('v_add_u32 v%d, s%d, v%d' % (t + 6, sT0, t + 6))
            a('v_min_u32 v%d, L_kend-%s-4, v%d' % (t + 6, self.KNAME, t + 6))
            a('global_load_dword v%d, v%d, s[%d:%d]' % (D0 + 3, t + 6, sT2, sT3), tag='warm')

    def warm_p3(self):
        a = self.a
        t0, t1 = self.vMEAN, self.vMEAN + 1
        a('v_mbcnt_lo_u32_b32 v%d, -1, 0' % t0)
        a('v_mbcnt_hi_u32_b32 v%d, -1, v%d' % (t0, t0))
        a('v_lshlrev_b32 v%d, 7, v%d' % (t0, t0))
        a('s_lshr_b32 s%d, s2, 3' % sT2)
        a('s_mul_i32 s%d, s%d, 57344' % (sT3, sT2))
        a('s_mul_i32 s%d, s%d, 7168' % (sM, sW))
        a('s_add_u32 s%d, s%d, s%d' % (sT3, sT3, sM))
        a('s_mov_b32 exec_hi, 0x00ffffff')
        a('buffer_load_dword v%d, v%d, %s, s%d offen' % (t1, t0, sr(S_DOWN, 4), sT3), tag='warm')
        a('s_lshl_b32 s%d, s%d, 14' % (sT3, sT2))
        a('s_lshl_b32 s%d, s%d, 11' % (sM, sW))
        a('s_add_u32 s%d, s%d, s%d' % (sT3, sT3, sM))
        a('s_mov_b64 exec, 0xffff')
        a('buffer_load_dword v%d, v%d, %s, s%d offen' % (t1, t0, sr(S_WO, 4), sT3), tag='warm')
        a('s_mov_b64 exec, -1')

    CODEPF = True
    KNAME = NAME + '_kernel'

    def dma_p1(self, pidx, st, slot, gs):
        out = []
        for j in range(4):
            out.append((['s_add_u32 s%d, s%d, 0x%x' % (sT0, sCOL + pidx, (256 * st + 64 * j) * 3072),
                         's_add_u32 m0, s%d, 0x%x' % (sWB, slot * 32768 + 8192 * j),
                         'buffer_load_dwordx4 v%d, %s, s%d offen lds' % (self.vDQ, sr(S_WQKV, 4), sT0)], ('dma', gs)))
        return out

    def dma_p2(self, pidx, st, slot, gs):
        out = []
        for pn, srd in enumerate((S_GATE, S_UP)):
            for j in range(2):
                out.append((['s_add_u32 s%d, s%d, 0x%x' % (sT0, sCOL + pidx, (128 * st + 64 * j) * 3584),
                             's_add_u32 m0, s%d, 0x%x' % (sWB, slot * 32768 + 16384 * pn + 8192 * j),
                             'buffer_load_dwordx4 v%d, %s, s%d offen lds' % (self.vDG, sr(srd, 4), sT0)], ('dma', gs)))
        return out

    def emit_group(self, grp):
        texts, tag = grp
        for t in texts[:-1]:
            self.a(t)
        self.a(texts[-1], tag=tag)

    def ln_sums(self, after_reads):
        a = self.a
        base = self.ACC[0]
        for k in range(8):
            a('v_mov_b32 v%d, 0' % (base + k))
        a('v_mov_b32 v%d, 0' % (self.TMP + 14))
        a('v_mov_b32 v%d, 0' % (self.TMP + 15))
        a('s_mov_b32 s%d, 0x00003f80' % sLO)
        a('s_mov_b32 s%d, 0x3f800000' % sHI)
        for tt in range(2):
            for s in range(16):
                if s % 4 == 0:
                    a.wait_lg(('x', tt, s + 3))
                    if tt == 1 and s == 12:
                        after_reads()
                for d in range(4):
                    a('v_dot2c_f32_bf16 v%d, s%d, v%d' % (base + 4 * tt + d, sONES, self.X(tt, s) + d))
        R = base + 8
        for tt in range(2):
            b = base + 4 * tt
            a('v_add_f32 v%d, v%d, v%d' % (b, b, b + 1))
            a('v_add_f32 v%d, v%d, v%d' % (b + 2, b + 2, b + 3))
        for tt in range(2):
            b = base + 4 * tt
            a('v_add_f32 v%d, v%d, v%d' % (R + tt, b, b + 2))
        self.xreduce(R, R + 2)
        a('s_mov_b32 s%d, %s' % (sT0, f32(1.0 / 512)))
        for tt in range(2):
            a('v_mul_f32 v%d, s%d, v%d' % (R + tt, sT0, R + tt))
        a('v_cvt_pk_bf16_f32 v%d, v%d, v%d' % (R + 2, R, R + 1))
        a('v_lshlrev_b32 v%d, 16, v%d' % (R + 3, R + 2))
        a('v_and_b32 v%d, s%d, v%d' % (R + 4, sMASKHI, R + 2))
        a('v_sub_f32 v%d, 0, v%d' % (self.TMP + 12, R + 3))
        a('v_sub_f32 v%d, 0, v%d' % (self.TMP + 13, R + 4))
        a('v_mov_b32 v%d, v%d' % (self.vMEAN, R))
        a('v_mov_b32 v%d, v%d' % (self.vMEAN + 1, R + 1))

    def xreduce(self, R, Tm):
        a = self.a
        for sw in ('v_permlane16_swap_b32', 'v_permlane32_swap_b32'):
            for q in range(2):
                a('v_mov_b32 v%d, v%d' % (Tm + q, R + q))
            for q in range(2):
                a('%s v%d, v%d' % (sw, R + q, Tm + q))
            for q in range(2):
                a('v_add_f32 v%d, v%d, v%d' % (R + q, R + q, Tm + q))

    def ln_finish(self, need_v):
        a = self.a
        Q = self.TMP + 14
        t = self.TMP
        self.xreduce(Q, t)
        a('s_mov_b32 s%d, %s' % (sT0, f32(1.0 / 512)))
        a('s_mov_b32 s%d, %s' % (sT1, f32(1e-5)))
        for tt in range(2):
            a('v_mul_f32 v%d, s%d, v%d' % (Q + tt, sT0, Q + tt))
            a('v_fma_f32 v%d, -v%d, v%d, v%d' % (Q + tt, self.vMEAN + tt, self.vMEAN + tt, Q + tt))
            a('v_max_f32 v%d, 0, v%d' % (Q + tt, Q + tt))
        a('v_cvt_pk_bf16_f32 v%d, v%d, v%d' % (t, Q, Q + 1))
        a('v_lshlrev_b32 v%d, 16, v%d' % (Q, t))
        a('v_and_b32 v%d, s%d, v%d' % (Q + 1, sMASKHI, t))
        for tt in range(2):
            a('v_add_f32 v%d, s%d, v%d' % (Q + tt, sT1, Q + tt))
        a('v_cvt_pk_bf16_f32 v%d, v%d, v%d' % (t, Q, Q + 1))
        a('v_lshlrev_b32 v%d, 16, v%d' % (Q, t))
        a('v_and_b32 v%d, s%d, v%d' % (Q + 1, sMASKHI, t))
        for tt in range(2):
            a('v_sqrt_f32 v%d, v%d' % (Q + tt, Q + tt))
        a('v_cvt_pk_bf16_f32 v%d, v%d, v%d' % (t, Q, Q + 1))
        a('v_lshlrev_b32 v%d, 16, v%d' % (Q, t))
        a('v_and_b32 v%d, s%d, v%d' % (Q + 1, sMASKHI, t))
        for tt in range(2):
            a('v_rcp_f32 v%d, v%d' % (Q + tt, Q + tt))
        if need_v:
            a('v_mbcnt_lo_u32_b32 v%d, -1, 0' % t)
            a('v_mbcnt_hi_u32_b32 v%d, -1, v%d' % (t, t))
            a('v_lshrrev_b32 v%d, 4, v%d' % (t, t))
            a('v_lshlrev_b32 v%d, 4, v%d' % (t, t))
            for tt in range(2):
                for r in range(4):
                    a('ds_bpermute_b32 v%d, v%d, v%d offset:%d' % (self.vRSV + 4 * tt + r, t, Q + tt, 4 * r), tag='rsv')
            a.wait_lg('rsv')

    def ln_norm(self, s):
        groups = []
        k = 0
        for tt in range(2):
            nm = self.TMP + 12 + tt
            sq = self.TMP + 14 + tt
            for d in range(4):
                x = self.X(tt, s) + d
                t = self.TMP + 2 * (k % 4)
                k += 1
                groups.append(([
                    'v_dot2c_f32_bf16 v%d, v%d, v%d' % (sq, x, x),
                    'v_dot2_f32_bf16 v%d, v%d, s%d, v%d' % (t, x, sLO, nm),
                    'v_dot2_f32_bf16 v%d, v%d, s%d, v%d' % (t + 1, x, sHI, nm)],
                    'v_cvt_pk_bf16_f32 v%d, v%d, v%d' % (x, t, t + 1)))
        out = []
        for k, (dots, cvt) in enumerate(groups):
            out += dots
            if k >= 1:
                out.append(groups[k - 1][1])
        out.append(groups[-1][1])
        return out

    def epi_qkv(self, acc, pidx, isv):
        out = []
        for tl in range(2):
            q = self.TMP + 4 * tl
            for tt in range(2):
                c = acc + 8 * tl + 4 * tt
                for e in range(4):
                    sc = (self.vRSV + 4 * tt + e) if isv else (self.TMP + 14 + tt)
                    out.append(('v_mul_f32 v%d, v%d, v%d' % (c + e, c + e, sc), None))
                out.append(('v_cvt_pk_bf16_f32 v%d, v%d, v%d' % (q + 2 * tt, c, c + 1), None))
                out.append(('v_cvt_pk_bf16_f32 v%d, v%d, v%d' % (q + 2 * tt + 1, c + 2, c + 3), None))
            sw = 'v_permlane32_swap_b32' if isv else 'v_permlane16_swap_b32'
            out.append(('%s v%d, v%d' % (sw, q, q + 2), None))
            out.append(('%s v%d, v%d' % (sw, q + 1, q + 3), None))
            so = 's%d' % (sST + pidx)
            if tl == 1:
                out.append(('s_add_u32 s%d, s%d, 0x10000' % (sT1, sST + pidx), None))
                so = 's%d' % sT1
            out.append(('buffer_store_dwordx4 %s, v%d, %s, %s offen%s' % (
                vr(q, 4), self.vSV if isv else self.vSQ, sr(S_WS, 4), so, self.sc), 'st'))
        return out

    def epi_geglu(self, acc, pidx):
        out = []
        for tl in range(2):
            q = self.TMP + 4 * tl
            for tt in range(2):
                g0 = acc + 8 * tl + 4 * tt
                u0 = g0 + 16
                rs = self.TMP + 14 + tt
                t0 = self.vRSV
                blk = []
                for e in range(4):
                    blk.append('v_mul_f32 v%d, v%d, v%d' % (g0 + e, g0 + e, rs))
                for e in range(4):
                    blk.append('v_mul_f32 v%d, v%d, v%d' % (u0 + e, u0 + e, rs))
                for e in range(4):
                    blk.append('v_mul_f32 v%d, v%d, v%d' % (t0 + e, g0 + e, g0 + e))
                for e in range(4):
                    blk.append('v_fma_f32 v%d, v%d, s%d, v%d' % (t0 + e, t0 + e, sK1, self.vK0))
                for e in range(4):
                    blk.append('v_mul_f32 v%d, v%d, v%d' % (t0 + e, t0 + e, g0 + e))
                for e in range(4):
                    blk.append('v_exp_f32 v%d, v%d' % (t0 + e, t0 + e))
                for e in range(4):
                    blk.append('v_mul_f32 v%d, v%d, v%d' % (g0 + e, g0 + e, u0 + e))
                for e in range(4):
                    blk.append('v_add_f32 v%d, 1.0, v%d' % (t0 + e, t0 + e))
                for e in range(4):
                    blk.append('v_rcp_f32 v%d, v%d' % (t0 + e, t0 + e))
                for e in range(4):
                    blk.append('v_mul_f32 v%d, v%d, v%d' % (g0 + e, g0 + e, t0 + e))
                blk.append('v_cvt_pk_bf16_f32 v%d, v%d, v%d' % (q + 2 * tt, g0, g0 + 1))
                blk.append('v_cvt_pk_bf16_f32 v%d, v%d, v%d' % (q + 2 * tt + 1, g0 + 2, g0 + 3))
                out += [(b, None) for b in blk]
            out.append(('v_permlane16_swap_b32 v%d, v%d' % (q, q + 2), None))
            out.append(('v_permlane16_swap_b32 v%d, v%d' % (q + 1, q + 3), None))
            out.append(('buffer_store_dwordx4 %s, v%d, %s, s%d offen offset:%d%s' % (
                vr(q, 4), self.vSQ, sr(S_WS, 4), sST + pidx, 1024 * tl, self.sc), 'st'))
        return out

    def phase1_body(self, typ, extra_stages, vsel_label=None):
        raise NotImplementedError

    def run_passes(self, passes, stages, first_stage_ready, pre_ev={}, post_ev={}):
        a = self.a
        items = []
        for p in passes:
            nst = 2 if p['kind'] == 'p1' else 4
            kper = 16 // nst
            for st in range(nst):
                gs = p['stages'][st]
                for ks in range(kper):
                    s = st * kper + ks
                    npan = 1 if p['kind'] == 'p1' else 2
                    for tl in range(2):
                        for pn in range(npan):
                            items.append(dict(gs=gs, p=p, s=s, ks=ks, pn=pn, tl=tl))
        n = len(items)
        bg = []

        def issue_reads(k):
            it = items[k]
            if it['gs'] > self.covered:
                a.wait_vm(('dma', it['gs']))
                a('s_barrier')
                self.covered = it['gs']
            slot = it['gs'] % 4
            off = (slot & 1) * 32768 + it['pn'] * 16384 + it['ks'] * 4096
            addr = self.vTR + it['tl'] + (2 if slot >= 2 else 0)
            dst = self.POOL + 4 * (k % self.NP)
            a('ds_read_b64_tr_b16 %s, v%d offset:%d' % (vr(dst, 2), addr, off), tag=('f', k))
            a('ds_read_b64_tr_b16 %s, v%d offset:%d' % (vr(dst + 2, 2), addr, off + 512), tag=('f', k))

        def pop_bg(cnt):
            for _ in range(cnt):
                if not bg:
                    return
                t = bg.pop(0)
                if isinstance(t, tuple) and isinstance(t[0], list):
                    self.emit_group(t)
                else:
                    a(t[0], tag=t[1])

        cur_gs = None
        issued = 0
        nq = []
        later = None
        NOJIT = True
        for k in range(n):
            it = items[k]
            p = it['p']
            if it['gs'] != cur_gs:
                cur_gs = it['gs']
                if cur_gs != first_stage_ready:
                    if (cur_gs + 1) in stages:
                        a.wait_vm(('dma', cur_gs + 1))
                        self.covered = cur_gs + 1
                    for f in pre_ev.get(cur_gs, []):
                        f()
                    if self.STAMP2:
                        self.stamp(8 + 2 * cur_gs, 230)
                    a('s_barrier')
                    if self.STAMP2:
                        self.stamp(9 + 2 * cur_gs, 230)
                    for f in post_ev.get(cur_gs, []):
                        f()
                    if (cur_gs + 3) in stages:
                        bg[0:0] = list(stages[cur_gs + 3])
            while issued < n and issued <= k + self.LA:
                issue_reads(issued)
                issued += 1
            if p.get('norm') and it['tl'] == 0 and it['pn'] == 0 and not NOJIT:
                for t in nq:
                    a(t)
                nq = self.ln_norm(it['s'] + 1) if it['s'] < 15 else []
            a.wait_lg(('f', k))
            w = self.POOL + 4 * (k % self.NP)
            for tt in range(2):
                acc = p['acc'] + 16 * it['pn'] + 8 * it['tl'] + 4 * tt
                x = self.X(tt, it['s'])
                c = '0' if it['s'] == 0 else vr(acc, 4)
                if p.get('isv'):
                    a('v_mfma_f32_16x16x32_bf16 %s, %s, %s, %s' % (vr(acc, 4), vr(x, 4), vr(w, 4), c))
                else:
                    a('v_mfma_f32_16x16x32_bf16 %s, %s, %s, %s' % (vr(acc, 4), vr(w, 4), vr(x, 4), c))
                for _ in range(8):
                    if nq:
                        a(nq.pop(0))
            if later is not None and k >= later[0]:
                bg.extend(later[1])
                later = None
            pop_bg(self.BGRATE)
            last_of_pass = (k == n - 1) or (items[k + 1]['p'] is not p)
            if last_of_pass:
                assert later is None
                pop_bg(10 ** 6)
                if p.get('norm'):
                    self.ln_finish(p.get('need_v'))
                if p['kind'] == 'p1':
                    e = self.epi_qkv(p['acc'], p['pidx'], p.get('isv'))
                else:
                    e = self.epi_geglu(p['acc'], p['pidx'])
                later = (k + 2, e)
        bg.extend(later[1])
        return bg

    BGRATE = 5

    def phase1(self, p3_stages):
        import math
        a = self.a
        fused = self.fused
        vEP = self.TMP + 11
        self.stamp(0, self.TMP + 8)
        self.x_dma()
        if fused:
            self.epoch_publish(vEP)
            a('s_lshl_b32 s%d, s%d, 2' % (sCG4, sQUAD))
            a('s_add_u32 s%d, s%d, s%d' % (sCG4, sCG4, sI))
            a('s_lshl_b32 s%d, s%d, 2' % (sCG4, sCG4))
        self.p1_lane_setup()
        LB, LJ = self.lab('typeB'), self.lab('p1join')
        a('s_cmp_eq_u32 s%d, 3' % sI)
        a.branch('s_cbranch_scc1 ' + LB)
        vm0 = list(a.vm)
        for typ in ('A', 'B'):
            a.vm = list(vm0)
            if typ == 'B':
                a.label(LB)
            self.p1_scalar_setup(typ)
            if typ == 'A':
                plist = [('p1', 0), ('p2', 1), ('p2', 2)]
            else:
                plist = [('p1', 0), ('p1', 1), ('p1', 2), ('p2', 3)]
            stages = {}
            passes = []
            gs = 0
            for k, (kind, pidx) in enumerate(plist):
                nst = 2 if kind == 'p1' else 4
                ids = list(range(gs, gs + nst))
                for st, g_ in enumerate(ids):
                    stages[g_] = (self.dma_p1 if kind == 'p1' else self.dma_p2)(pidx, st, g_ % 4, g_)
                gs += nst
                passes.append(dict(kind=kind, pidx=pidx, stages=ids, acc=self.ACC[(k + 1) % 2 if typ == 'A' else k % 2],
                                   isv=(typ == 'B' and k == 2), norm=(k == 0), need_v=(typ == 'B')))
            assert gs == 10
            for k, f in enumerate(p3_stages):
                stages[10 + k] = f((10 + k) % 4, 10 + k)
            for grp in stages[0]:
                self.emit_group(grp)
            if fused:
                self.warm_p1(typ)
                self.epoch_issue(vEP)
            self.x_frag_reads()

            def after_reads():
                a.wait_lg0()
                a('s_barrier')
                for g_ in range(1, 4):
                    for grp in stages[g_]:
                        self.emit_group(grp)
            self.ln_sums(after_reads)
            self.stamp(1, self.POOL)
            k0 = -2.0 * math.log2(math.e) * math.sqrt(2.0 / math.pi)
            a('s_mov_b32 s%d, %s' % (sK1, f32(k0 * 0.044715)))
            a('s_mov_b32 s%d, %s' % (sK0, f32(k0)))
            a.wait_vm(('dma', 0))
            a('s_barrier')
            self.covered = 0
            self.stamp(2, self.POOL)
            pre, post = {}, {}
            if fused:
                gq = 4 if typ == 'A' else 8
                pre[4] = [lambda: self.epoch_get(vEP)]
                pre.setdefault(gq, []).append(lambda: a.wait_vm('st'))
                post[gq] = [lambda: self.publish(0, vEP)]
                post.setdefault(3, []).append(self.warm_p3)
                post.setdefault(7, []).append(self.p3_setup_dma)
                post.setdefault(9, []).append(lambda: (self.flag_addr(0, sMB, self.vMEAN, 2), self.flag_issue(self.vMEAN, 'qflag')))
            if typ == 'A':
                LV, LA2 = self.lab('Av'), self.lab('Ajoin')
                for s_ in range(16):
                    for t in self.ln_norm(s_):
                        a(t)
                a('s_cmp_eq_u32 s%d, 2' % sI)
                a.branch('s_cbranch_scc1 ' + LV)
                vm1, lg1 = list(a.vm), list(a.lg)
                for isv in (False, True):
                    a.vm, a.lg = list(vm1), list(lg1)
                    self.covered = 0
                    if isv:
                        a.label(LV)
                    passes[0]['isv'] = isv
                    passes[0]['need_v'] = isv
                    bg = self.run_passes(passes[:1], stages, 0, pre, post)
                    for t in bg:
                        a(t[0], tag=t[1])
                    if not isv:
                        a.branch('s_branch ' + LA2)
                a.label(LA2)
                self.stamp(3, self.POOL)
                a('v_mov_b32 v%d, s%d' % (self.vK0, sK0))
                bg = self.run_passes(passes[1:], stages, None, pre, post)
            else:
                for s_ in range(16):
                    for t in self.ln_norm(s_):
                        a(t)
                bg = self.run_passes(passes[:3], stages, 0, pre, post)
                for t in bg:
                    a(t[0], tag=t[1])
                self.stamp(3, self.POOL)
                a('v_mov_b32 v%d, s%d' % (self.vK0, sK0))
                bg = self.run_passes(passes[3:], stages, None, pre, post)
            self.stamp(4, self.POOL)
            if fused:
                self.flag_wait(self.vMEAN, 'qflag')
                self.attn_loads()
            for t in bg:
                a(t[0], tag=t[1])
            self.stamp(5, self.TMP)
            a.wait_vm0()
            if fused:
                a('s_barrier')
                self.publish(1, vEP)
            self.stamp(6, self.TMP)
            if typ == 'A':
                a.branch('s_branch ' + LJ)
        a.label(LJ)

    def KR(self, j):
        return 112 + 4 * j if j < 7 else 144 + 4 * (j - 7)

    def VR(self, j):
        return 192 + 4 * j if j < 8 else 156

    AQ = 152
    vL16 = 248

    def attn_loads(self):
        a = self.a
        vL16 = self.vL16
        QB = self.AQ
        a('v_mbcnt_lo_u32_b32 v%d, -1, 0' % (vL16 + 1))
        a('v_mbcnt_hi_u32_b32 v%d, -1, v%d' % (vL16 + 1, vL16 + 1))
        a('v_lshlrev_b32 v%d, 4, v%d' % (vL16, vL16 + 1))
        a('s_lshl_b32 s%d, s%d, 3' % (sHEAD, sQUAD))
        a('s_lshl_b32 s%d, s%d, 1' % (sT0, sI))
        a('s_add_u32 s%d, s%d, s%d' % (sHEAD, sHEAD, sT0))
        a('s_add_u32 s%d, s%d, s%d' % (sHEAD, sHEAD, sC))
        a('s_lshl_b32 s%d, s%d, 2' % (sQB, sMB))
        a('s_add_u32 s%d, s%d, s%d' % (sQB, sQB, sR))
        a('s_lshl_b32 s%d, s%d, 6' % (sT0, sHEAD))
        a('s_add_u32 s%d, s%d, s%d' % (sT1, sT0, sQB))
        a('s_lshl_b32 s%d, s%d, 10' % (sT1, sT1))
        a('buffer_load_dwordx4 %s, v%d, %s, s%d offen%s' % (vr(QB, 4), vL16, sr(S_WS, 4), sT1, self.sc), tag='q')
        for j in range(9):
            a('s_add_i32 s%d, s%d, %d' % (sT1, sQB, j - 8))
            a('s_max_i32 s%d, s%d, 0' % (sT1, sT1))
            a('s_add_u32 s%d, s%d, s%d' % (sT1, sT1, sT0))
            a('s_lshl_b32 s%d, s%d, 10' % (sT1, sT1))
            a('s_add_u32 s%d, s%d, 0x%x' % (sT2, sT1, 2 << 20))
            a('buffer_load_dwordx4 %s, v%d, %s, s%d offen%s' % (vr(self.KR(j), 4), vL16, sr(S_WS, 4), sT2, self.sc), tag=('k', j))
            a('s_add_u32 s%d, s%d, 0x%x' % (sM + j, sT1, 4 << 20))
        for j in range(9):
            a('buffer_load_dwordx4 %s, v%d, %s, s%d offen%s' % (vr(self.VR(j), 4), vL16, sr(S_WS, 4), sM + j, self.sc), tag=('v', j))

    def attention(self):
        a = self.a
        SB = 0
        QB = self.AQ
        t = 224
        vL16 = self.vL16
        LANE = vL16 + 1
        self.stamp(0, 240)
        if not self.fused:
            self.attn_loads()
        TQ = t + 2
        a('v_and_b32 v%d, 31, v%d' % (TQ, LANE))
        a('v_lshrrev_b32 v%d, 5, v%d' % (t + 3, LANE))
        a('v_lshlrev_b32 v%d, 2, v%d' % (t + 3, t + 3))
        a('v_sub_u32 v%d, v%d, v%d' % (TQ, TQ, t + 3))
        NEG = t + 4
        a('v_mov_b32 v%d, %s' % (NEG, f32(-1e30)))
        import math
        a('s_mov_b32 s%d, %s' % (sK2, f32(0.25 * math.log2(math.e))))
        for j in range(9):
            a.wait_vm(('k', j))
            a('v_mfma_f32_32x32x16_bf16 %s, %s, %s, 0' % (vr(SB + 16 * j, 16), vr(self.KR(j), 4), vr(QB, 4)))
        self.stamp(1, 240)
        for half in range(2):
            for r in range(8 * half, 8 * half + 8):
                cr = (r & 3) + 8 * (r >> 2)
                a('v_cmp_le_i32 %s, %d, v%d' % (sr(sM + 2 * (r % 8), 2), cr, TQ))
            for r in range(8 * half, 8 * half + 8):
                m = sr(sM + 2 * (r % 8), 2)
                a('v_cndmask_b32 v%d, v%d, v%d, %s' % (SB + r, SB + r, NEG, m))
                a('v_cndmask_b32 v%d, v%d, v%d, %s' % (SB + 128 + r, NEG, SB + 128 + r, m))
        LD = self.lab('valid')
        for j in range(8):
            a('s_cmp_ge_u32 s%d, %d' % (sQB, 8 - j))
            a.branch('s_cbranch_scc1 ' + LD)
            for r in range(16):
                a('v_mov_b32 v%d, v%d' % (SB + 16 * j + r, NEG))
        a.label(LD)
        M = t + 5
        vals = list(range(SB, SB + 144))
        for c in range(4):
            a('v_max3_f32 v%d, v%d, v%d, v%d' % (M + c, vals[0], vals[1], vals[2]))
            vals = vals[3:]
        c = 0
        while vals:
            a('v_max3_f32 v%d, v%d, v%d, v%d' % (M + c, M + c, vals[0], vals[1]))
            vals = vals[2:]
            c = (c + 1) % 4
        a('v_max3_f32 v%d, v%d, v%d, v%d' % (M, M, M + 1, M + 2))
        a('v_max_f32 v%d, v%d, v%d' % (M, M, M + 3))
        a('v_mov_b32 v%d, v%d' % (M + 1, M))
        a('v_permlane32_swap_b32 v%d, v%d' % (M, M + 1))
        a('v_max_f32 v%d, v%d, v%d' % (M, M, M + 1))
        a('v_mul_f32 v%d, s%d, v%d' % (M, sK2, M))
        LS = t + 9
        a('v_mov_b32 v%d, 0' % LS)
        a('v_mov_b32 v%d, 0' % (LS + 1))
        D1, D2 = 160, 176
        for j in range(9):
            b = SB + 16 * j
            if self.fused and j == 5:
                a('s_lshr_b32 s%d, s%d, 1' % (sT3, sTB))
                self.flag_addr(1, sT3, 250, 0)
                self.flag_issue(250, 'hflag')
            for r in range(16):
                a('v_fma_f32 v%d, v%d, s%d, -v%d' % (b + r, b + r, sK2, M))
            for r in range(16):
                a('v_exp_f32 v%d, v%d' % (b + r, b + r))
            for r in range(8):
                a('v_cvt_pk_bf16_f32 v%d, v%d, v%d' % (b + r, b + 2 * r, b + 2 * r + 1))
            for r in range(8):
                a('v_dot2c_f32_bf16 v%d, s%d, v%d' % (LS + (r & 1), sONES, b + r))
            a.wait_vm(('v', j))
            a('v_mfma_f32_32x32x16_bf16 %s, %s, %s, %s' % (vr(D1, 16), vr(self.VR(j), 4), vr(b, 4), '0' if j == 0 else vr(D1, 16)))
            a('v_mfma_f32_32x32x16_bf16 %s, %s, %s, %s' % (vr(D2, 16), vr(self.VR(j), 4), vr(b + 4, 4), '0' if j == 0 else vr(D2, 16)))
        a('v_add_f32 v%d, v%d, v%d' % (LS, LS, LS + 1))
        a('v_mov_b32 v%d, v%d' % (LS + 1, LS))
        a('v_permlane32_swap_b32 v%d, v%d' % (LS, LS + 1))
        a('v_add_f32 v%d, v%d, v%d' % (LS, LS, LS + 1))
        a('v_rcp_f32 v%d, v%d' % (LS, LS))
        for r in range(8):
            a('v_add_f32 v%d, v%d, v%d' % (D1 + r, D1 + r, D2 + 8 + r))
        for r in range(8):
            a('v_mul_f32 v%d, v%d, v%d' % (D1 + r, D1 + r, LS))
        O = t + 12
        assert O % 4 == 0
        for r in range(4):
            a('v_cvt_pk_bf16_f32 v%d, v%d, v%d' % (O + r, D1 + 2 * r, D1 + 2 * r + 1))
        a('s_mul_i32 s%d, s%d, %d' % (sT0, sQB, NACT))
        a('s_add_u32 s%d, s%d, s%d' % (sT0, sT0, sHEAD))
        a('s_add_u32 s%d, s%d, 112' % (sT0, sT0))
        a('s_lshl_b32 s%d, s%d, 10' % (sT0, sT0))
        a('s_add_u32 s%d, s%d, 0x%x' % (sT0, sT0, WS_ACT))
        a('buffer_store_dwordx4 %s, v%d, %s, s%d offen%s' % (vr(O, 4), vL16, sr(S_WS, 4), sT0, self.sc), tag='st')
        self.stamp(2, 240)
        if self.STAMPS:
            a.wait_vm0()
            self.stamp(3, 240)

    v3DW, v3DO = 252, 253
    def p3_setup_dma(self):
        a = self.a
        L = self.v3DO
        a('v_mbcnt_lo_u32_b32 v%d, -1, 0' % L)
        a('v_mbcnt_hi_u32_b32 v%d, -1, v%d' % (L, L))
        a('s_and_b32 s%d, s%d, 3' % (sKQ, sW))
        a('s_lshr_b32 s%d, s%d, 2' % (sTH, sW))
        ROW, P_, S_ = 240, 241, 243
        a('v_lshrrev_b32 v%d, 3, v%d' % (ROW, L))
        a('v_and_b32 v%d, 7, v%d' % (P_, L))
        a('v_bfe_u32 v%d, v%d, 1, 1' % (S_, ROW))
        a('v_lshlrev_b32 v%d, 2, v%d' % (S_, S_))
        a('v_xor_b32 v%d, v%d, v%d' % (P_, P_, S_))
        a('v_lshlrev_b32 v%d, 4, v%d' % (P_, P_))
        a('v_lshl_add_u32 v%d, v%d, 10, v%d' % (self.v3DW, ROW, P_))
        a('v_lshrrev_b32 v%d, 2, v%d' % (S_, ROW))
        a('v_and_b32 v%d, 3, v%d' % (ROW, ROW))
        a('v_lshl_add_u32 v%d, v%d, 3, v%d' % (ROW, S_, ROW))
        a('v_lshl_add_u32 v%d, v%d, 10, v%d' % (self.v3DO, ROW, P_))
        a('s_lshl_b32 s%d, s%d, 7' % (sT0, sNB))
        a('s_lshl_b32 s%d, s%d, 5' % (sT1, sTH))
        a('s_mul_i32 s%d, s%d, 448' % (sT2, sKQ))
        a('s_add_u32 s%d, s%d, s%d' % (sT2, sT2, sT1))
        a('s_lshl_b32 s%d, s%d, 10' % (sT2, sT2))
        a('s_add_u32 s%d, s%d, s%d' % (sWD, sT2, sT0))
        a('s_lshl_b32 s%d, s%d, 7' % (sT2, sKQ))
        a('s_add_u32 s%d, s%d, s%d' % (sT2, sT2, sT1))
        a('s_lshl_b32 s%d, s%d, 10' % (sT2, sT2))
        a('s_add_u32 s%d, s%d, s%d' % (sWOo, sT2, sT0))
        a('s_lshl_b32 s%d, s%d, 13' % (sT2, sKQ))
        a('s_lshl_b32 s%d, s%d, 12' % (sT1, sTH))
        a('s_add_u32 s%d, s%d, s%d' % (sWB3, sT2, sT1))

    def p3_stage_fn(self, st):
        def f(slot, gs):
            out = []
            for j in range(4):
                if st < 7:
                    so = (64 * st + 8 * j) * 1024
                    out.append((['s_add_u32 s%d, s%d, 0x%x' % (sT0, sWD, so),
                                 's_add_u32 m0, s%d, 0x%x' % (sWB3, slot * 32768 + 1024 * j),
                                 'buffer_load_dwordx4 v%d, %s, s%d offen lds' % (self.v3DW, sr(S_DOWN, 4), sT0)], ('dma', gs)))
                else:
                    so = (64 * (st - 7) + 16 * (j >> 1) + 4 * (j & 1)) * 1024
                    out.append((['s_add_u32 s%d, s%d, 0x%x' % (sT0, sWOo, so),
                                 's_add_u32 m0, s%d, 0x%x' % (sWB3, slot * 32768 + 1024 * j),
                                 'buffer_load_dwordx4 v%d, %s, s%d offen lds' % (self.v3DO, sr(S_WO, 4), sT0)], ('dma', gs)))
            return out
        return f

    def phase3(self, gs0, dma_issued):
        a = self.a
        ACC = 0
        AB = 32
        PB = 96
        NP, LA = 8, 5
        t = 128
        LANE, vL16, TRa = t, t + 1, t + 2
        XR = t + 8
        vO = t + 6
        self.stamp(0, 240)
        a('v_mbcnt_lo_u32_b32 v%d, -1, 0' % LANE)
        a('v_mbcnt_hi_u32_b32 v%d, -1, v%d' % (LANE, LANE))
        a('v_lshlrev_b32 v%d, 4, v%d' % (vL16, LANE))
        a('s_lshl_b32 s%d, s%d, 1' % (sT0, sTB))
        a('s_add_u32 s%d, s%d, s%d' % (sT0, sT0, sTH))
        a('s_mul_i32 s%d, s%d, %d' % (sT1, sT0, NACT))
        a('s_mul_i32 s%d, s%d, 28' % (sT2, sKQ))
        a('s_add_u32 s%d, s%d, s%d' % (sT2, sT2, sT1))
        a('s_lshl_b32 s%d, s%d, 10' % (sT2, sT2))
        a('s_add_u32 s%d, s%d, 0x%x' % (sACT, sT2, WS_ACT))
        a('s_lshl_b32 s%d, s%d, 3' % (sT2, sKQ))
        a('s_add_u32 s%d, s%d, s%d' % (sT2, sT2, sT1))
        a('s_add_u32 s%d, s%d, 112' % (sT2, sT2))
        a('s_lshl_b32 s%d, s%d, 10' % (sT2, sT2))
        a('s_add_u32 s%d, s%d, 0x%x' % (sACTO, sT2, WS_ACT))

        def act_loads(st):
            base, off = (sACT, st * 4096) if st < 7 else (sACTO, (st - 7) * 4096)
            out = [('s_add_u32 s%d, s%d, 0x%x' % (sT1, base, off), None)]
            for j in range(4):
                out.append(('buffer_load_dwordx4 %s, v%d, %s, s%d offen offset:%d%s' % (
                    vr(AB + 16 * (st % 4) + 4 * j, 4), vL16, sr(S_WS, 4), sT1, 1024 * j, self.sc), ('act', st, j)))
            return out

        stages = {gs0 + st: self.p3_stage_fn(st)((gs0 + st) % 4, gs0 + st) for st in range(9)}
        if self.fused:
            self.flag_wait(250, 'hflag')
        for st in range(3):
            for tx, tg in act_loads(st):
                a(tx, tag=tg)
            if st >= dma_issued:
                for grp in stages[gs0 + st]:
                    self.emit_group(grp)
        if dma_issued <= 3:
            for grp in stages[gs0 + 3]:
                self.emit_group(grp)
        A_, B_, C_ = t + 12, t + 13, t + 14
        a('v_lshrrev_b32 v%d, 5, v%d' % (A_, LANE))
        a('v_bfe_u32 v%d, v%d, 2, 2' % (B_, LANE))
        a('v_lshl_add_u32 v%d, v%d, 3, v%d' % (B_, A_, B_))
        a('v_lshlrev_b32 v%d, 7, v%d' % (B_, B_))
        a('v_bfe_u32 v%d, v%d, 4, 1' % (C_, LANE))
        a('v_lshl_add_u32 v%d, v%d, 5, v%d' % (B_, C_, B_))
        a('v_and_b32 v%d, 3, v%d' % (C_, LANE))
        a('v_lshl_add_u32 v%d, v%d, 3, v%d' % (B_, C_, B_))
        a('s_lshl_b32 s%d, s%d, 13' % (sT0, sKQ))
        a('v_add_u32 v%d, s%d, v%d' % (B_, sT0, B_))
        a('v_bfe_u32 v%d, v%d, 3, 1' % (C_, LANE))
        a('v_lshl_add_u32 v%d, v%d, 6, v%d' % (TRa, C_, B_))
        a('v_xor_b32 v%d, 1, v%d' % (C_, C_))
        a('v_lshl_add_u32 v%d, v%d, 6, v%d' % (TRa + 1, C_, B_))
        a('v_add_u32 v%d, 0x10000, v%d' % (TRa + 2, TRa))
        a('v_add_u32 v%d, 0x10000, v%d' % (TRa + 3, TRa + 1))
        a('s_lshl_b32 s%d, s%d, 1' % (sT0, sTB))
        a('s_add_u32 s%d, s%d, s%d' % (sT0, sT0, sTH))
        a('s_lshl_b32 s%d, s%d, 5' % (sT0, sT0))
        a('v_and_b32 v%d, 31, v%d' % (B_, LANE))
        a('v_add_u32 v%d, s%d, v%d' % (B_, sT0, B_))
        a('v_lshlrev_b32 v%d, 10, v%d' % (B_, B_))
        a('v_lshl_add_u32 v%d, v%d, 4, v%d' % (B_, A_, B_))
        a('s_lshl_b32 s%d, s%d, 7' % (sT0, sNB))
        a('s_lshl_b32 s%d, s%d, 5' % (sT1, sKQ))
        a('s_add_u32 s%d, s%d, s%d' % (sT0, sT0, sT1))
        a('v_add_u32 v%d, s%d, v%d' % (vO, sT0, B_))

        items = [(st, j, ft) for st in range(9) for j in range(4) for ft in range(2)]
        n = len(items)
        bg = []

        def issue_reads(k):
            st, j, ft = items[k]
            slot = (gs0 + st) % 4
            off = (slot & 1) * 32768 + j * 2048
            addr = TRa + ft + (2 if slot >= 2 else 0)
            dst = PB + 4 * (k % NP)
            a('ds_read_b64_tr_b16 %s, v%d offset:%d' % (vr(dst, 2), addr, off), tag=('f', k))
            a('ds_read_b64_tr_b16 %s, v%d offset:%d' % (vr(dst + 2, 2), addr, off + 512), tag=('f', k))

        def pop_bg(cnt):
            for _ in range(cnt):
                if not bg:
                    return
                tt = bg.pop(0)
                if isinstance(tt[0], list):
                    self.emit_group(tt)
                else:
                    a(tt[0], tag=tt[1])

        if self.fused:
            a.wait_vm('st')
        a.wait_vm(('dma', gs0 + 1))
        a('s_barrier')
        if self.fused:
            self.publish(2, 243)
        self.stamp(1, 240)
        issued = 0
        cur = 0
        for k in range(n):
            st, j, ft = items[k]
            if st != cur:
                cur = st
                if st + 1 < 9:
                    a.wait_vm(('dma', gs0 + st + 1))
                a('s_barrier')
                if st + 3 < 9:
                    bg.extend(stages[gs0 + st + 3])
                if self.fused and st == 4:
                    a('s_lshr_b32 s%d, s%d, 1' % (sT3, sTB))
                    self.flag_addr(2, sT3, 250, 0)
                    self.flag_issue(250, 'oflag')
                if self.fused and st == 5:
                    self.flag_wait(250, 'oflag')
                if st + 2 < 9:
                    bg.extend(act_loads(st + 2))
                if st == 6:
                    bg.append(('buffer_load_dwordx4 %s, v%d, %s, 0 offen' % (vr(XR, 4), vO, sr(S_X, 4)), 'xr'))
            while issued < n and issued <= k + LA:
                issue_reads(issued)
                issued += 1
            a.wait_vm(('act', st, j))
            a.wait_lg(('f', k))
            acc = ACC + 16 * ft
            c = '0' if (st == 0 and j == 0) else vr(acc, 16)
            a('v_mfma_f32_32x32x16_bf16 %s, %s, %s, %s' % (vr(acc, 16), vr(PB + 4 * (k % NP), 4),
                                                         vr(AB + 16 * (st % 4) + 4 * j, 4), c))
            pop_bg(2)
        pop_bg(10 ** 6)
        self.stamp(2, 240)
        rb = (((gs0 + 8) % 4 + 1) % 4) * 32768
        assert rb + 49152 <= 131072 + 32768
        vW = A_
        a('s_mul_i32 s%d, s%d, 24576' % (sT0, sTH))
        a('s_add_u32 s%d, s%d, %d' % (sT0, sT0, rb))
        a('v_add_u32 v%d, s%d, v%d' % (vW, sT0, vL16))
        LBL = [self.lab('red%d' % q) for q in range(4)]
        LE = self.lab('rede')
        for q in range(1, 4):
            a('s_cmp_eq_u32 s%d, %d' % (sKQ, q))
            a.branch('s_cbranch_scc1 ' + LBL[q])
        RES = 64
        for q in range(4):
            if q:
                a.label(LBL[q])
            for o in range(4):
                if o == q:
                    continue
                sl = (q - o - 1) & 3
                off = o * 6144 + sl * 2048
                a('ds_write_b128 v%d, %s offset:%d' % (vW, vr(ACC + 8 * o, 4), off))
                a('ds_write_b128 v%d, %s offset:%d' % (vW, vr(ACC + 8 * o + 4, 4), off + 1024))
            for e in range(8):
                a('v_mov_b32 v%d, v%d' % (RES + e, ACC + 8 * q + e))
            if q < 3:
                a.branch('s_branch ' + LE)
        a.label(LE)
        a('s_mul_i32 s%d, s%d, 6144' % (sT0, sKQ))
        a('v_add_u32 v%d, s%d, v%d' % (vW, sT0, vW))
        a.wait_lg0()
        a('s_barrier')
        RB = 32
        for sl in range(3):
            a('ds_read_b128 %s, v%d offset:%d' % (vr(RB + 8 * sl, 4), vW, sl * 2048), tag=('r', sl))
            a('ds_read_b128 %s, v%d offset:%d' % (vr(RB + 8 * sl + 4, 4), vW, sl * 2048 + 1024), tag=('r', sl))
        for sl in range(3):
            a.wait_lg(('r', sl))
            for e in range(8):
                a('v_add_f32 v%d, v%d, v%d' % (RES + e, RES + e, RB + 8 * sl + e))
        for e in range(4):
            a('v_permlane32_swap_b32 v%d, v%d' % (RES + e, RES + 4 + e))
        a.wait_vm('xr')
        for e in range(4):
            a('v_lshlrev_b32 v%d, 16, v%d' % (RB + 2 * e, XR + e))
            a('v_and_b32 v%d, s%d, v%d' % (RB + 2 * e + 1, sMASKHI, XR + e))
        for e in range(8):
            a('v_add_f32 v%d, v%d, v%d' % (RES + e, RES + e, RB + e))
        for e in range(4):
            a('v_cvt_pk_bf16_f32 v%d, v%d, v%d' % (RB + 8 + e, RES + 2 * e, RES + 2 * e + 1))
        a('buffer_store_dwordx4 %s, v%d, %s, 0 offen' % (vr(RB + 8, 4), vO, sr(S_OUT, 4)), tag='st')
        self.stamp(3, 240)
        if self.STAMPS:
            a.wait_vm0()
            self.stamp(4, 240)


HEADER = open('cdna_kernels/%s.s.ref' % NAME).read().split('; Override launch geometry')[0]

KD = '''.section .rodata,"a"
.p2align 6
.amdhsa_kernel %s
  .amdhsa_next_free_vgpr 256
  .amdhsa_next_free_sgpr 102
  .amdhsa_accum_offset 256
  .amdhsa_group_segment_fixed_size 0
  .amdhsa_kernarg_size 80
  .amdhsa_user_sgpr_count 2
  .amdhsa_user_sgpr_kernarg_segment_ptr 1
  .amdhsa_system_sgpr_workgroup_id_x 1
.end_amdhsa_kernel
'''


def kernel(name, body):
    return ('.text\n.globl %s\n.p2align 8\n.type %s,@function\n%s:\n' % (name, name, name)) + body + KD % name


def build_split():
    ks = []
    g = Gen(False, False)
    g.uid = 100
    g.KIDX = 0
    g.setup('L_end1')
    g.phase1([])
    g.a.label('L_end1')
    g.a('s_endpgm')
    ks.append(('p1_kernel', g.a.text()))
    g = Gen(False, False)
    g.uid = 200
    g.KIDX = 1
    g.setup('L_end2')
    g.attention()
    g.a.label('L_end2')
    g.a('s_endpgm')
    ks.append(('p2_kernel', g.a.text()))
    g = Gen(False, False)
    g.uid = 300
    g.KIDX = 2
    g.setup('L_end3')
    g.p3_setup_dma()
    g.phase3(0, 0)
    g.a.label('L_end3')
    g.a('s_endpgm')
    ks.append(('p3_kernel', g.a.text()))
    out = HEADER
    for n, _ in ks:
        out += '; @launch kernel=%s grid=(256,1,1) block=(512,1,1) lds=%d\n' % (n, 0 if n == 'p2_kernel' else 163840)
    out += '.amdgcn_target "amdgcn-amd-amdhsa--gfx950"\n'
    for n, b in ks:
        out += kernel(n, b)
    return out


def build_fused():
    g = Gen(True, True)
    g.setup('L_end')
    g.KIDX = 0
    g.phase1([g.p3_stage_fn(st) for st in range(3)])
    g.KIDX = 1
    g.attention()
    g.KIDX = 2
    g.phase3(10, 3)
    g.a.label('L_end')
    g.a('s_endpgm')
    g.a.raw('L_kend:')
    out = HEADER
    out += '; @launch grid=(256,1,1) block=(512,1,1) lds=163840\n'
    out += '.amdgcn_target "amdgcn-amd-amdhsa--gfx950"\n'
    out += kernel(NAME + '_kernel', g.a.text())
    return out


if __name__ == '__main__':
    mode = sys.argv[1] if len(sys.argv) > 1 else 'split'
    dst = sys.argv[2] if len(sys.argv) > 2 else 'cdna_kernels/%s.s' % NAME
    import os
    Gen.STAMPS = bool(os.environ.get('STAMPS'))
    Gen.STAMP2 = bool(os.environ.get('STAMP2'))
    Gen.CODEPF = not os.environ.get('NOCODEPF')
    txt = build_split() if mode == 'split' else build_fused()
    open(dst, 'w').write(txt)
    print('wrote', dst, len(txt), 'bytes')
```

```python
import math
import os
import struct
import sys
from asmlib import Asm, vr, sr

NAME = 'parallel_sum__sliding_block__glu_gated_geglu__prompt'
KNAME = NAME + '_kernel'
ENV = os.environ.get

T, D, F, H = 2048, 512, 1792, 32
WS_QKV = 0
WS_ACT = 6 << 20
WS_FLAG = 16 << 20
WS_BYTES = WS_FLAG + 3 * 16 * 128
NACT = 144

S_X, S_WQKV, S_GATE, S_UP, S_DOWN, S_WO, S_OUT, S_WS, S_DBG = 4, 8, 12, 16, 20, 24, 28, 32, 36
sW, sMB, sQUAD, sI, sR, sC, sWB = 40, 41, 42, 43, 44, 45, 46
sCOL = 47
sST = 51
sCNT = 55
sT0, sT1, sT2, sT3 = 56, 57, 58, 59
sONES, sMASKHI, sK0, sK1, sQS = 60, 61, 62, 63, 64
sTB, sNB, sKQ, sTH = 65, 66, 67, 68
sACT, sACTO, sWD, sWOo, sWB3 = 69, 70, 71, 72, 73
sQB, sHEAD = 74, 75
sM = 76
sEPOCH, sCG4 = 94, 95
SCALE = 0.25 * math.log2(math.e)


def f32(x):
    return '0x%08x' % struct.unpack('<I', struct.pack('<f', x))[0]


class Gen:
    STAMPS = bool(ENV('STAMPS'))
    STAMP2 = bool(ENV('STAMP2'))

    def __init__(self):
        self.a = Asm()
        self.sc = ' sc1'
        self.uid = 0
        self.KIDX = 0

    def lab(self, s):
        self.uid += 1
        return 'L_%s_%d' % (s, self.uid)

    def stamp(self, i, vtmp):
        if not self.STAMPS:
            return
        a = self.a
        a('s_memrealtime s[98:99]')
        a('s_memtime s[96:97]')
        a('s_lshl_b32 s100, s2, 3')
        a('s_add_u32 s100, s100, s%d' % sW)
        a('s_lshl_b32 s100, s100, 8')
        a('s_add_u32 s100, s100, 0x%x' % ((32 << 20) + self.KIDX * (1 << 20)))
        a.wait_lg0()
        a('v_mov_b32 v%d, s98' % vtmp)
        a('buffer_store_dword v%d, off, %s, s100 offset:%d' % (vtmp, sr(S_WS, 4), 4 * i), tag='stamp')
        a('v_mov_b32 v%d, s96' % (vtmp + 1))
        a('buffer_store_dword v%d, off, %s, s100 offset:%d' % (vtmp + 1, sr(S_WS, 4), 128 + 4 * i), tag='stamp')

    def prio_young(self, p):
        L = self.lab('pr')
        self.a.raw('    s_cmp_lt_u32 s%d, 4' % sW)
        self.a.raw('    s_cbranch_scc1 ' + L)
        self.a.raw('    s_setprio %d' % p)
        self.a.raw(L + ':')

    def lane(self, v):
        self.a('v_mbcnt_lo_u32_b32 v%d, -1, 0' % v)
        self.a('v_mbcnt_hi_u32_b32 v%d, -1, v%d' % (v, v))

    XB = 0
    ACC = (128, 160)
    POOL = 192
    NP = 8
    LA = int(ENV('LA', '6'))
    TMP = 224
    vTR = 243
    vL16 = 250
    vSV = 251
    vDQ, vDG = 252, 253
    vFL = 254
    vK0 = 246
    vEP = 247
    XLDS = 32768
    MAP = int(ENV('MAP', '8'))
    NS = int(ENV('NS', '5'))

    def srd(self, srd, p, n):
        a = self.a
        a('s_mov_b32 s%d, s%d' % (srd, p))
        a('s_and_b32 s%d, s%d, 0xffff' % (srd + 1, p + 1))
        a('s_mov_b32 s%d, 0x%x' % (srd + 2, n))
        a('s_mov_b32 s%d, 0x00020000' % (srd + 3))

    def prologue(self):
        a = self.a
        t = self.TMP
        L = self.vL16 + 1
        a('s_cmp_ge_u32 s2, 256')
        a.branch('s_cbranch_scc1 L_end')
        if self.STAMPS:
            a('s_memrealtime s[%d:%d]' % (sK0, sK0 + 1))
        a('s_load_dwordx16 s[76:91], s[0:1], 0')
        a('s_load_dwordx4 s[92:95], s[0:1], 64')
        a('s_getpc_b64 s[%d:%d]' % (sT2, sT3))
        a.raw('L_pc:')
        a('s_sub_u32 s%d, s%d, L_pc-%s' % (sT2, sT2, KNAME))
        a('s_subb_u32 s%d, s%d, 0' % (sT3, sT3))
        a('v_lshlrev_b32 v1, 7, v0')
        a('v_min_u32 v1, L_kend-%s-4, v1' % KNAME)
        a('global_load_dword v%d, v1, s[%d:%d]' % (self.ACC[0] + 31, sT2, sT3), tag='warm')
        a('v_lshrrev_b32 v1, 6, v0')
        a('v_and_b32 v%d, 63, v0' % L)
        a('v_readfirstlane_b32 s%d, v1' % sW)
        a('s_and_b32 s%d, s2, 7' % sT0)
        a('s_lshr_b32 s%d, s2, 3' % sT1)
        if self.MAP == 8:
            a('s_and_b32 s%d, s%d, 1' % (sT2, sT0))
            a('s_lshl_b32 s%d, s%d, 3' % (sT2, sT2))
            a('s_and_b32 s%d, s%d, 7' % (sT3, sT1))
            a('s_add_u32 s%d, s%d, s%d' % (sMB, sT2, sT3))
            a('s_lshr_b32 s%d, s%d, 1' % (sQUAD, sT0))
            a('s_lshr_b32 s%d, s%d, 3' % (sI, sT1))
        else:
            a('s_and_b32 s%d, s%d, 3' % (sT2, sT0))
            a('s_lshl_b32 s%d, s%d, 2' % (sT2, sT2))
            a('s_and_b32 s%d, s%d, 3' % (sT3, sT1))
            a('s_add_u32 s%d, s%d, s%d' % (sMB, sT2, sT3))
            a('s_lshr_b32 s%d, s%d, 2' % (sT2, sT0))
            a('s_lshl_b32 s%d, s%d, 1' % (sT2, sT2))
            a('s_lshr_b32 s%d, s%d, 4' % (sT3, sT1))
            a('s_add_u32 s%d, s%d, s%d' % (sQUAD, sT2, sT3))
            a('s_bfe_u32 s%d, s%d, 0x20002' % (sI, sT1))
        a('s_lshl_b32 s%d, s%d, 2' % (sT2, sT0))
        a('s_and_b32 s%d, s%d, 3' % (sT3, sT1))
        a('s_add_u32 s%d, s%d, s%d' % (sTB, sT2, sT3))
        a('s_lshr_b32 s%d, s%d, 2' % (sNB, sT1))
        a('v_lshlrev_b32 v%d, 4, v%d' % (self.vL16, L))
        a('s_lshl_b32 s%d, s%d, 7' % (sT0, sMB))
        a('s_lshl_b32 s%d, s%d, 4' % (sT1, sW))
        a('s_add_u32 s%d, s%d, s%d' % (sT0, sT0, sT1))
        a('s_lshl_b32 s%d, s%d, 10' % (sT0, sT0))
        a('s_lshl_b32 s%d, s%d, 14' % (sT1, sW))
        a('s_waitcnt lgkmcnt(0)')
        self.srd(S_X, 76, T * D * 2)
        for n in range(16):
            a('v_xor_b32 v%d, %d, v%d' % (t + (n & 1), 16 * n, self.vL16))
            a('s_add_u32 s%d, s%d, %d' % (sT2, sT0, 1024 * n))
            a('s_add_u32 m0, s%d, %d' % (sT1, self.XLDS + 1024 * n))
            a('buffer_load_dwordx4 v%d, %s, s%d offen lds' % (t + (n & 1), sr(S_X, 4), sT2), tag=('xdma', n))
        for srd, p, n in ((S_WQKV, 78, D * 3 * D * 2), (S_WO, 80, D * D * 2), (S_GATE, 84, D * F * 2),
                          (S_UP, 86, D * F * 2), (S_DOWN, 88, F * D * 2), (S_OUT, 90, T * D * 2),
                          (S_DBG, 92, 256), (S_WS, 94, (64 << 20) if self.STAMPS else WS_BYTES)):
            self.srd(srd, p, n)
        self.stamp(0, t + 8)
        if self.STAMPS:
            a('v_mov_b32 v%d, s%d' % (t + 8, sK0))
            a('buffer_store_dword v%d, off, %s, s100 offset:%d' % (t + 8, sr(S_WS, 4), 4 * 31), tag='stamp')
        a('s_and_b32 s%d, s%d, 3' % (sR, sW))
        a('s_lshr_b32 s%d, s%d, 2' % (sC, sW))
        a('s_lshl_b32 s%d, s%d, 10' % (sWB, sW))
        a('s_mov_b32 s%d, 0x3f803f80' % sONES)
        a('s_mov_b32 s%d, 0xffff0000' % sMASKHI)
        a('s_lshl_b32 s%d, s%d, 2' % (sCG4, sQUAD))
        a('s_add_u32 s%d, s%d, s%d' % (sCG4, sCG4, sI))
        a('s_lshl_b32 s%d, s%d, 2' % (sCG4, sCG4))
        self.epoch_publish(self.vEP)
        I, G, A_, B_, C_ = t + 2, t + 3, t + 4, t + 5, t + 6
        a('v_and_b32 v%d, 15, v%d' % (I, L))
        a('v_lshrrev_b32 v%d, 4, v%d' % (G, L))
        LA_ = self.ACC[1]
        a('s_add_u32 s%d, s%d, %d' % (sT0, sT1, self.XLDS))
        a('v_lshlrev_b32 v%d, 10, v%d' % (A_, I))
        a('v_add_u32 v%d, s%d, v%d' % (A_, sT0, A_))
        a('v_and_b32 v%d, 3, v%d' % (B_, I))
        a('v_xor_b32 v%d, v%d, v%d' % (B_, B_, G))
        a('v_lshl_add_u32 v%d, v%d, 4, v%d' % (A_, B_, A_))
        a('v_lshrrev_b32 v%d, 2, v%d' % (B_, I))
        for q in range(4):
            a('v_xor_b32 v%d, %d, v%d' % (C_, q, B_))
            a('v_lshl_add_u32 v%d, v%d, 6, v%d' % (LA_ + q, C_, A_))
        a('s_lshl_b32 s%d, s%d, 15' % (sT0, sR))
        a('s_add_u32 s%d, s%d, %d' % (sT0, sT0, self.XLDS))
        a('v_and_b32 v%d, 31, v%d' % (A_, L))
        a('v_lshlrev_b32 v%d, 10, v%d' % (A_, A_))
        a('v_add_u32 v%d, s%d, v%d' % (A_, sT0, A_))
        a('v_lshrrev_b32 v%d, 5, v%d' % (B_, L))
        a('v_xor_b32 v%d, v%d, v%d' % (C_, B_, I))
        a('v_lshl_add_u32 v%d, v%d, 4, v%d' % (LA_ + 4, C_, A_))
        a('v_lshrrev_b32 v%d, 2, v%d' % (A_, I))
        a('v_lshl_add_u32 v%d, v%d, 3, v%d' % (A_, B_, A_))
        a('v_lshlrev_b32 v%d, 7, v%d' % (A_, A_))
        a('v_and_b32 v%d, 1, v%d' % (C_, G))
        a('v_lshl_add_u32 v%d, v%d, 5, v%d' % (A_, C_, A_))
        a('v_lshlrev_b32 v%d, 16, v%d' % (t + 7, C_))
        a('v_lshl_add_u32 v%d, v%d, 9, v%d' % (t + 7, B_, t + 7))
        a('v_lshl_add_u32 v%d, v%d, 4, v%d' % (t + 7, I, t + 7))
        a('v_and_b32 v%d, 3, v%d' % (C_, I))
        a('v_lshl_add_u32 v%d, v%d, 3, v%d' % (A_, C_, A_))
        a('v_bfe_u32 v%d, v%d, 3, 1' % (C_, I))
        a('v_xor_b32 v%d, s%d, v%d' % (C_, sC, C_))
        a('v_lshl_add_u32 v%d, v%d, 6, v%d' % (self.vTR, C_, A_))
        a('v_add_u32 v%d, 0x10000, v%d' % (self.vTR + 1, self.vTR))
        a('v_add_u32 v%d, 0x20000, v%d' % (self.vTR + 2, self.vTR))
        a('v_lshrrev_b32 v%d, 3, v%d' % (A_, L))
        a('v_and_b32 v%d, 7, v%d' % (B_, L))
        a('v_bfe_u32 v%d, v%d, 1, 1' % (C_, A_))
        a('v_lshlrev_b32 v%d, 2, v%d' % (C_, C_))
        a('v_xor_b32 v%d, v%d, v%d' % (B_, B_, C_))
        a('v_lshlrev_b32 v%d, 4, v%d' % (B_, B_))
        a('s_lshl_b32 s%d, s%d, 3' % (sT0, sW))
        a('v_add_u32 v%d, s%d, v%d' % (A_, sT0, A_))
        a('s_movk_i32 s%d, 3072' % sT0)
        a('s_movk_i32 s%d, 3584' % sT1)
        a('v_mad_u32_u24 v%d, v%d, s%d, v%d' % (self.vDQ, A_, sT0, B_))
        a('v_mad_u32_u24 v%d, v%d, s%d, v%d' % (self.vDG, A_, sT1, B_))
        a('v_mov_b32 v%d, v%d' % (t + 9, L))
        a('v_mov_b32 v%d, v%d' % (self.vSV, t + 7))

    def epoch_publish(self, vt):
        a = self.a
        L = self.lab('noep')
        a('s_or_b32 s%d, s2, s%d' % (sT0, sW))
        a('s_cmp_lg_u32 s%d, 0' % sT0)
        a.branch('s_cbranch_scc1 ' + L)
        a('s_memrealtime s[%d:%d]' % (sT2, sT3))
        a('s_waitcnt lgkmcnt(0)')
        a('s_or_b32 s%d, s%d, 1' % (sT2, sT2))
        a('v_mov_b32 v%d, s%d' % (vt, sT2))
        n = len(a.vm)
        a('buffer_store_dword v%d, off, %s, 0 sc0 sc1' % (vt, sr(S_DBG, 4)))
        del a.vm[n:]
        a.label(L)

    def epoch_issue(self, vt):
        self.a('buffer_load_dword v%d, off, %s, 0 sc0 sc1' % (vt, sr(S_DBG, 4)), tag='epoch')

    def epoch_get(self, vt):
        a = self.a
        Lr, Ld = self.lab('epr'), self.lab('epd')
        a.wait_vm('epoch')
        a('s_mov_b32 s%d, 0' % sCNT)
        a.label(Lr)
        a('v_readfirstlane_b32 s%d, v%d' % (sEPOCH, vt))
        a('s_cmp_lg_u32 s%d, 0' % sEPOCH)
        a.branch('s_cbranch_scc1 ' + Ld)
        a('s_sleep 4')
        n = len(a.vm)
        a('buffer_load_dword v%d, off, %s, 0 sc0 sc1' % (vt, sr(S_DBG, 4)))
        del a.vm[n:]
        a('s_waitcnt vmcnt(0)')
        a('s_add_u32 s%d, s%d, 1' % (sCNT, sCNT))
        a('s_cmp_lt_u32 s%d, 0x100000' % sCNT)
        a.branch('s_cbranch_scc1 ' + Lr)
        a.label(Ld)

    def publish(self, kind, vt):
        a = self.a
        L = self.lab('nopub')
        a('s_cmp_lg_u32 s%d, 0' % sW)
        a.branch('s_cbranch_scc1 ' + L)
        a('s_lshl_b32 s%d, s%d, 7' % (sT2, sMB))
        a('s_add_u32 s%d, s%d, s%d' % (sT2, sT2, sCG4))
        a('s_add_u32 s%d, s%d, 0x%x' % (sT2, sT2, WS_FLAG + kind * 2048))
        a('v_mov_b32 v%d, s%d' % (vt, sEPOCH))
        a('s_mov_b64 exec, 1')
        n = len(a.vm)
        a('buffer_store_dword v%d, off, %s, s%d sc0 sc1' % (vt, sr(S_WS, 4), sT2))
        del a.vm[n:]
        a('s_mov_b64 exec, -1')
        a.label(L)

    def flag_issue(self, kind, smb, nback, tag, shr=0):
        a = self.a
        va = self.vFL
        if shr:
            a('s_lshr_b32 s%d, s%d, %d' % (sT3, smb, shr))
            smb = sT3
        a('v_lshrrev_b32 v%d, 8, v%d' % (va + 1, self.vL16))
        a('v_min_u32 v%d, %d, v%d' % (va + 1, nback, va + 1))
        a('v_sub_u32 v%d, s%d, v%d' % (va + 1, smb, va + 1))
        a('v_max_i32 v%d, 0, v%d' % (va + 1, va + 1))
        a('v_bfe_u32 v%d, v%d, 4, 4' % (va, self.vL16))
        a('v_lshlrev_b32 v%d, 2, v%d' % (va, va))
        a('v_lshl_add_u32 v%d, v%d, 7, v%d' % (va, va + 1, va))
        a('v_add_u32 v%d, 0x%x, v%d' % (va, WS_FLAG + kind * 2048, va))
        a('buffer_load_dword v%d, v%d, %s, 0 offen sc0 sc1' % (va + 1, va, sr(S_WS, 4)), tag=tag)

    def flag_wait(self, tag):
        a = self.a
        va = self.vFL
        Lr, Ld = self.lab('flr'), self.lab('fld')
        a.wait_vm(tag)
        a('s_mov_b32 s%d, 0' % sCNT)
        a.label(Lr)
        a('v_cmp_ne_u32 vcc, s%d, v%d' % (sEPOCH, va + 1))
        a.branch('s_cbranch_vccz ' + Ld)
        a('s_sleep 1')
        n = len(a.vm)
        a('buffer_load_dword v%d, v%d, %s, 0 offen sc0 sc1' % (va + 1, va, sr(S_WS, 4)))
        del a.vm[n:]
        a('s_waitcnt vmcnt(0)')
        a('s_add_u32 s%d, s%d, 1' % (sCNT, sCNT))
        a('s_cmp_lt_u32 s%d, 0x100000' % sCNT)
        a.branch('s_cbranch_scc1 ' + Lr)
        a.label(Ld)

    def p1_scalar_setup(self, typ):
        a = self.a
        a('s_lshl_b32 s%d, s%d, 2' % (sT3, sMB))
        a('s_add_u32 s%d, s%d, s%d' % (sT3, sT3, sR))
        a('s_mul_i32 s%d, s%d, %d' % (sT2, sT3, NACT))
        a('s_lshl_b32 s%d, s%d, 1' % (sT1, sC))
        a('s_add_u32 s%d, s%d, s%d' % (sT2, sT2, sT1))
        a('s_mul_i32 s%d, s%d, 7' % (sT0, sQUAD))
        if typ == 'A':
            a('s_lshl_b32 s%d, s%d, 10' % (sCOL, sI))
            a('s_lshl_b32 s%d, s%d, 7' % (sM, sQUAD))
            a('s_add_u32 s%d, s%d, s%d' % (sCOL, sCOL, sM))
            a('s_add_u32 s%d, s%d, 512' % (sCOL, sCOL))
            a('s_lshl_b32 s%d, s%d, 5' % (sST, sI))
            a('s_lshl_b32 s%d, s%d, 2' % (sM, sQUAD))
            a('s_add_u32 s%d, s%d, s%d' % (sST, sST, sM))
            a('s_add_u32 s%d, s%d, 16' % (sST, sST))
            a('s_add_u32 s%d, s%d, s%d' % (sST, sST, sT1))
            a('s_lshl_b32 s%d, s%d, 6' % (sST, sST))
            a('s_add_u32 s%d, s%d, s%d' % (sST, sST, sT3))
            a('s_lshl_b32 s%d, s%d, 10' % (sST, sST))
            a('s_lshl_b32 s%d, s%d, 1' % (sM, sI))
            a('s_add_u32 s%d, s%d, s%d' % (sT0, sT0, sM))
            for k in range(2):
                a('s_add_u32 s%d, s%d, %d' % (sM, sT0, k))
                a('s_lshl_b32 s%d, s%d, 7' % (sCOL + 1 + k, sM))
                a('s_lshl_b32 s%d, s%d, 2' % (sM, sM))
                a('s_add_u32 s%d, s%d, s%d' % (sM, sM, sT2))
                a('s_lshl_b32 s%d, s%d, 10' % (sM, sM))
                a('s_add_u32 s%d, s%d, 0x%x' % (sST + 1 + k, sM, WS_ACT))
            a('s_cmp_eq_u32 s%d, 0' % sI)
            a('s_cselect_b32 s%d, %s, 1.0' % (sQS, f32(SCALE)))
        else:
            for ty in range(3):
                a('s_lshl_b32 s%d, s%d, 7' % (sM, sQUAD))
                a('s_add_u32 s%d, s%d, %d' % (sCOL + ty, sM, 1024 * ty))
                a('s_lshl_b32 s%d, s%d, 2' % (sM, sQUAD))
                a('s_add_u32 s%d, s%d, %d' % (sM, sM, 32 * ty))
                a('s_add_u32 s%d, s%d, s%d' % (sM, sM, sT1))
                a('s_lshl_b32 s%d, s%d, 6' % (sM, sM))
                a('s_add_u32 s%d, s%d, s%d' % (sM, sM, sT3))
                a('s_lshl_b32 s%d, s%d, 10' % (sST + ty, sM))
            a('s_add_u32 s%d, s%d, 6' % (sM, sT0))
            a('s_lshl_b32 s%d, s%d, 7' % (sCOL + 3, sM))
            a('s_lshl_b32 s%d, s%d, 2' % (sM, sM))
            a('s_add_u32 s%d, s%d, s%d' % (sM, sM, sT2))
            a('s_lshl_b32 s%d, s%d, 10' % (sM, sM))
            a('s_add_u32 s%d, s%d, 0x%x' % (sST + 3, sM, WS_ACT))
            a('s_mov_b32 s%d, %s' % (sQS, f32(SCALE)))

    def warm_p1(self, typ):
        a = self.a
        t = self.TMP
        L = t + 9
        D0 = self.ACC[0] + 28
        R, U = t + 12, t + 13
        t = t + 8
        nrep = 8 // self.MAP
        a('s_bfe_u32 s%d, s2, 0x%x' % (sT0, 0x30003 if self.MAP == 8 else 0x20003))
        a('s_lshl_b32 s%d, s%d, 3' % (sT0, sT0))
        a('s_add_u32 s%d, s%d, s%d' % (sT0, sT0, sW))
        a('s_lshl_b32 s%d, s%d, %d' % (sT0, sT0, 3 if nrep == 1 else 4))
        a('v_and_b32 v%d, 7, v%d' % (R, L))
        a('v_add_u32 v%d, s%d, v%d' % (R, sT0, R))
        a('v_lshrrev_b32 v%d, 3, v%d' % (U, L))
        a('s_movk_i32 s%d, 3072' % sT0)
        a('s_movk_i32 s%d, 3584' % sT1)
        nq, ng = (1, 2) if typ == 'A' else (3, 1)
        cg_ = sCOL + 1 if typ == 'A' else sCOL + 3
        a('v_lshlrev_b32 v%d, 10, v%d' % (t + 6, U))
        a('v_mad_u32_u24 v%d, v%d, s%d, v%d' % (t + 6, R, sT0, t + 6))
        a('v_lshlrev_b32 v%d, 7, v%d' % (t + 7, U))
        a('v_mad_u32_u24 v%d, v%d, s%d, v%d' % (t + 7, R, sT1, t + 7))
        for rep in range(nrep):
            a('s_add_u32 s%d, s%d, %d' % (sT2, sCOL, rep * 8 * 3072))
            a('s_add_u32 s%d, s%d, %d' % (sT3, cg_, rep * 8 * 3584))
            a('s_mov_b64 exec, 0x%x' % ((1 << (8 * nq)) - 1))
            a('buffer_load_dword v%d, v%d, %s, s%d offen' % (D0, t + 6, sr(S_WQKV, 4), sT2), tag='warm')
            a('s_mov_b64 exec, 0x%x' % ((1 << (8 * ng)) - 1))
            a('buffer_load_dword v%d, v%d, %s, s%d offen' % (D0 + 1, t + 7, sr(S_GATE, 4), sT3), tag='warm')
            a('buffer_load_dword v%d, v%d, %s, s%d offen' % (D0 + 2, t + 7, sr(S_UP, 4), sT3), tag='warm')
        a('s_mov_b64 exec, -1')

    def tlb_touch(self, typ):
        a = self.a
        D0 = self.ACC[0] + 27
        for p in range(3 if typ == 'A' else 4):
            a('buffer_load_dword v%d, off, %s, s%d' % (D0, sr(S_WS, 4), sST + p), tag='warm')
        a('s_lshl_b32 s%d, s%d, 16' % (sT0, sTB))
        a('s_lshl_b32 s%d, s%d, 7' % (sT1, sNB))
        a('s_add_u32 s%d, s%d, s%d' % (sT0, sT0, sT1))
        a('buffer_load_dword v%d, off, %s, s%d' % (D0, sr(S_OUT, 4), sT0), tag='warm')
        a('buffer_load_dword v%d, off, %s, s%d' % (D0, sr(S_WO, 4), sT1), tag='warm')
        a('buffer_load_dword v%d, off, %s, s%d' % (D0, sr(S_DOWN, 4), sT1), tag='warm')

    def warm_p3(self):
        a = self.a
        t0, t1 = self.vFL, self.vFL + 1
        a('v_lshlrev_b32 v%d, 3, v%d' % (t0, self.vL16))
        a('s_lshl_b32 s%d, s2, 3' % sT2)
        a('s_add_u32 s%d, s%d, s%d' % (sT2, sT2, sW))
        a('s_mul_i32 s%d, s%d, 896' % (sT3, sT2))
        a('s_mov_b64 exec, 0x7f')
        a('buffer_load_dword v%d, v%d, %s, s%d offen' % (t1, t0, sr(S_DOWN, 4), sT3), tag='warm')
        a('s_lshl_b32 s%d, s%d, 8' % (sT3, sT2))
        a('s_mov_b64 exec, 3')
        a('buffer_load_dword v%d, v%d, %s, s%d offen' % (t1, t0, sr(S_WO, 4), sT3), tag='warm')
        a('s_mov_b64 exec, -1')

    def dma_p1(self, pidx, st, slot, gs):
        out = []
        for j in range(4):
            out.append((['s_add_u32 s%d, s%d, 0x%x' % (sT0, sCOL + pidx, (256 * st + 64 * j) * 3072),
                         's_add_u32 m0, s%d, 0x%x' % (sWB, slot * 32768 + 8192 * j),
                         'buffer_load_dwordx4 v%d, %s, s%d offen lds' % (self.vDQ, sr(S_WQKV, 4), sT0)], ('dma', gs)))
        return out

    def dma_p2(self, pidx, st, slot, gs):
        out = []
        for j in range(2):
            for pn, srd in enumerate((S_GATE, S_UP)):
                out.append((['s_add_u32 s%d, s%d, 0x%x' % (sT0, sCOL + pidx, (128 * st + 64 * j) * 3584),
                             's_add_u32 m0, s%d, 0x%x' % (sWB, slot * 32768 + 16384 * pn + 8192 * j),
                             'buffer_load_dwordx4 v%d, %s, s%d offen lds' % (self.vDG, sr(srd, 4), sT0)], ('dma', gs)))
        return out

    def emit_group(self, grp):
        texts, tag = grp
        for t in texts[:-1]:
            self.a(t)
        self.a(texts[-1], tag=tag)

    def layernorm(self, mid):
        a = self.a
        LA_ = self.ACC[1]
        R0 = 0
        S = self.ACC[0]
        t = self.TMP
        for k in range(8):
            a('v_mov_b32 v%d, 0' % (S + k))
        a.wait_vm(('xdma', 15))
        self.stamp(28, self.POOL)
        for s in range(16):
            a('ds_read_b128 %s, v%d offset:%d' % (vr(R0 + 4 * s, 4), LA_ + (s & 3), (s >> 2) * 256), tag=('x', s))
        for s in range(16):
            if s % 2 == 0:
                a.wait_lg(('x', s + 1))
            for d in range(4):
                x = R0 + 4 * s + d
                a('v_dot2c_f32_bf16 v%d, s%d, v%d' % (S + d, sONES, x))
                a('v_dot2c_f32_bf16 v%d, v%d, v%d' % (S + 4 + d, x, x))
        mid()
        for q in range(2):
            b = S + 4 * q
            a('v_add_f32 v%d, v%d, v%d' % (b, b, b + 1))
            a('v_add_f32 v%d, v%d, v%d' % (b + 2, b + 2, b + 3))
        M, E = S + 8, S + 9
        a('v_add_f32 v%d, v%d, v%d' % (M, S, S + 2))
        a('v_add_f32 v%d, v%d, v%d' % (E, S + 4, S + 6))
        for sw in ('v_permlane16_swap_b32', 'v_permlane32_swap_b32'):
            for q in range(2):
                a('v_mov_b32 v%d, v%d' % (S + q, M + q))
            for q in range(2):
                a('%s v%d, v%d' % (sw, M + q, S + q))
            for q in range(2):
                a('v_add_f32 v%d, v%d, v%d' % (M + q, M + q, S + q))
        a('s_mov_b32 s%d, %s' % (sT0, f32(1.0 / 512)))
        a('s_mov_b32 s%d, %s' % (sT1, f32(1e-5)))
        a('v_mul_f32 v%d, s%d, v%d' % (M, sT0, M))
        a('v_mul_f32 v%d, s%d, v%d' % (E, sT0, E))
        a('v_fma_f32 v%d, -v%d, v%d, v%d' % (E, M, M, E))
        a('v_max_f32 v%d, 0, v%d' % (E, E))
        a('v_cvt_pk_bf16_f32 v%d, v%d, v%d' % (S, M, E))
        a('v_lshlrev_b32 v%d, 16, v%d' % (M, S))
        a('v_and_b32 v%d, s%d, v%d' % (E, sMASKHI, S))
        a('v_add_f32 v%d, s%d, v%d' % (E, sT1, E))
        a('v_cvt_pk_bf16_f32 v%d, v%d, v%d' % (S, E, E))
        a('v_and_b32 v%d, s%d, v%d' % (E, sMASKHI, S))
        a('v_sqrt_f32 v%d, v%d' % (E, E))
        a('v_cvt_pk_bf16_f32 v%d, v%d, v%d' % (S, E, E))
        a('v_and_b32 v%d, s%d, v%d' % (E, sMASKHI, S))
        a('v_rcp_f32 v%d, v%d' % (E, E))
        a('v_mul_f32 v%d, v%d, v%d' % (M, M, E))
        a('v_sub_f32 v%d, 0, v%d' % (M, M))
        for s in range(16):
            for d in range(4):
                x = R0 + 4 * s + d
                tt = t + 2 * d
                a('v_lshlrev_b32 v%d, 16, v%d' % (tt, x))
                a('v_and_b32 v%d, s%d, v%d' % (tt + 1, sMASKHI, x))
            for d in range(4):
                tt = t + 2 * d
                a('v_fma_f32 v%d, v%d, v%d, v%d' % (tt, tt, E, M))
                a('v_fma_f32 v%d, v%d, v%d, v%d' % (tt + 1, tt + 1, E, M))
            for d in range(4):
                tt = t + 2 * d
                a('v_cvt_pk_bf16_f32 v%d, v%d, v%d' % (R0 + 4 * s + d, tt, tt + 1))
            a('ds_write_b128 v%d, %s offset:%d' % (LA_ + (s & 3), vr(R0 + 4 * s, 4), (s >> 2) * 256))
        for q in range(1, 8):
            a('v_xor_b32 v%d, %d, v%d' % (LA_ + 4 + q, q << 5, LA_ + 4))
        a.wait_lg0()
        self.stamp(29, self.POOL)
        a('s_barrier')
        self.stamp(30, self.POOL)
        for s in range(32):
            a('ds_read_b128 %s, v%d offset:%d' % (vr(4 * s, 4), LA_ + 4 + (s & 7), (s >> 3) * 256), tag=('xf', s))
        a.wait_lg0()
        a.wait_vm(('dma', 0))
        a('s_barrier')

    def epi_qkv(self, acc, pidx, isv, scale):
        out = []
        if scale:
            for r in range(16):
                out.append(('v_mul_f32 v%d, s%d, v%d' % (acc + r, sQS, acc + r), None))
        for tl in range(2):
            q = self.TMP + 4 * tl
            for e in range(4):
                c = acc + 8 * tl + 2 * e
                out.append(('v_cvt_pk_bf16_f32 v%d, v%d, v%d' % (q + e, c, c + 1), None))
            if isv:
                out.append(('buffer_store_dwordx4 %s, v%d, %s, s%d offen offset:%d%s' % (
                    vr(q, 4), self.vSV, sr(S_WS, 4), sST + pidx, 256 * tl, self.sc), 'st'))
            else:
                so = 's%d' % (sST + pidx)
                if tl == 1:
                    out.append(('s_add_u32 s%d, s%d, 0x10000' % (sT1, sST + pidx), None))
                    so = 's%d' % sT1
                out.append(('buffer_store_dwordx4 %s, v%d, %s, %s offen%s' % (
                    vr(q, 4), self.vL16, sr(S_WS, 4), so, self.sc), 'st'))
        return out

    def epi_geglu(self, acc, pidx):
        out = []
        for tl in range(2):
            q = self.TMP + 4 * tl
            for hf in range(2):
                g0 = acc + 8 * tl + 4 * hf
                u0 = g0 + 16
                t0 = self.TMP + 8 + 4 * hf
                blk = []
                for e in range(4):
                    blk.append('v_mul_f32 v%d, v%d, v%d' % (t0 + e, g0 + e, g0 + e))
                for e in range(4):
                    blk.append('v_fma_f32 v%d, v%d, s%d, v%d' % (t0 + e, t0 + e, sK1, self.vK0))
                for e in range(4):
                    blk.append('v_mul_f32 v%d, v%d, v%d' % (t0 + e, t0 + e, g0 + e))
                for e in range(4):
                    blk.append('v_exp_f32 v%d, v%d' % (t0 + e, t0 + e))
                for e in range(4):
                    blk.append('v_mul_f32 v%d, v%d, v%d' % (g0 + e, g0 + e, u0 + e))
                for e in range(4):
                    blk.append('v_add_f32 v%d, 1.0, v%d' % (t0 + e, t0 + e))
                for e in range(4):
                    blk.append('v_rcp_f32 v%d, v%d' % (t0 + e, t0 + e))
                for e in range(4):
                    blk.append('v_mul_f32 v%d, v%d, v%d' % (g0 + e, g0 + e, t0 + e))
                blk.append('v_cvt_pk_bf16_f32 v%d, v%d, v%d' % (q + 2 * hf, g0, g0 + 1))
                blk.append('v_cvt_pk_bf16_f32 v%d, v%d, v%d' % (q + 2 * hf + 1, g0 + 2, g0 + 3))
                out += [(b, None) for b in blk]
            out.append(('buffer_store_dwordx4 %s, v%d, %s, s%d offen offset:%d%s' % (
                vr(q, 4), self.vL16, sr(S_WS, 4), sST + pidx, 1024 * tl, self.sc), 'st'))
        return out

    BGRATE = 4

    def run_passes(self, passes, stages, first_stage_ready, pre_ev, post_ev):
        a = self.a
        items = []
        for p in passes:
            nst = 2 if p['kind'] == 'p1' else 4
            kper = 32 // nst
            npan = 1 if p['kind'] == 'p1' else 2
            for st in range(nst):
                for ks in range(kper):
                    for pn in range(npan):
                        items.append(dict(gs=p['stages'][st], p=p, s=st * kper + ks, ks=ks, pn=pn))
        n = len(items)
        bg, dq = [], []
        if first_stage_ready == 0:
            dq = list(self.dq0)

        def issue_reads(k):
            it = items[k]
            if it['gs'] > self.covered:
                a.wait_vm(('dma', it['gs']))
                a('s_barrier')
                self.covered = it['gs']
            slot = it['gs'] % self.NS
            off = (slot & 1) * 32768 + it['pn'] * 16384 + it['ks'] * 2048
            addr = self.vTR + (slot >> 1)
            dst = self.POOL + 4 * (k % self.NP)
            a('ds_read_b64_tr_b16 %s, v%d offset:%d' % (vr(dst, 2), addr, off), tag=('f', k))
            a('ds_read_b64_tr_b16 %s, v%d offset:%d' % (vr(dst + 2, 2), addr, off + 512), tag=('f', k))

        def pop_bg(cnt):
            for _ in range(cnt):
                if not bg:
                    return
                t = bg.pop(0)
                a(t[0], tag=t[1])

        cur_gs, issued, kst, later = None, 0, 0, None
        for k in range(n):
            it = items[k]
            p = it['p']
            if it['gs'] != cur_gs:
                cur_gs = it['gs']
                if cur_gs != first_stage_ready:
                    if (cur_gs + 1) in stages:
                        a.wait_vm(('dma', cur_gs + 1))
                        self.covered = cur_gs + 1
                    for f in pre_ev.get(cur_gs, []):
                        f()
                    if self.STAMP2:
                        self.stamp(8 + 2 * cur_gs, 248)
                    a('s_barrier')
                    if self.STAMP2:
                        self.stamp(9 + 2 * cur_gs, 248)
                    for f in post_ev.get(cur_gs, []):
                        f()
                    assert not dq
                    if (cur_gs + self.NS - 1) in stages:
                        dq = list(stages[cur_gs + self.NS - 1])
                    kst = k
            while issued < n and issued <= k + self.LA:
                issue_reads(issued)
                issued += 1
            a.wait_lg(('f', k))
            w = self.POOL + 4 * (k % self.NP)
            acc = p['acc'] + 16 * it['pn']
            x = 4 * it['s']
            c = '0' if it['s'] == 0 else vr(acc, 16)
            if p.get('isv'):
                a('v_mfma_f32_32x32x16_bf16 %s, %s, %s, %s' % (vr(acc, 16), vr(x, 4), vr(w, 4), c))
            else:
                a('v_mfma_f32_32x32x16_bf16 %s, %s, %s, %s' % (vr(acc, 16), vr(w, 4), vr(x, 4), c))
            PR = int(ENV('PRIO', '8'))
            if PR and (k % 16) == 0:
                self.prio_young(1)
            if PR and (k % 16) == PR:
                self.prio_young(0)
            if later is not None and k >= later[0]:
                bg.extend(later[1])
                later = None
            if dq and ((k - kst) % 4 == 1 or cur_gs == 0):
                self.emit_group(dq.pop(0))
            pop_bg(self.BGRATE)
            if (k == n - 1) or (items[k + 1]['p'] is not p):
                assert later is None
                pop_bg(10 ** 6)
                if p['kind'] == 'p1':
                    e = self.epi_qkv(p['acc'], p['pidx'], p.get('isv'), p.get('scale'))
                else:
                    e = self.epi_geglu(p['acc'], p['pidx'])
                later = (k + 3, e)
        bg.extend(later[1])
        return bg

    def phase1(self, p3_stages):
        a = self.a
        vEP = self.vEP
        LB, LJ = self.lab('typeB'), self.lab('p1join')
        a('s_cmp_eq_u32 s%d, 3' % sI)
        a.branch('s_cbranch_scc1 ' + LB)
        vm0 = list(a.vm)
        for typ in ('A', 'B'):
            a.vm = list(vm0)
            if typ == 'B':
                a.label(LB)
            self.p1_scalar_setup(typ)
            if typ == 'A':
                plist = [('p1', 0), ('p2', 1), ('p2', 2)]
            else:
                plist = [('p1', 0), ('p1', 1), ('p1', 2), ('p2', 3)]
            stages, passes, gs = {}, [], 0
            for k, (kind, pidx) in enumerate(plist):
                nst = 2 if kind == 'p1' else 4
                ids = list(range(gs, gs + nst))
                for st, g_ in enumerate(ids):
                    stages[g_] = (self.dma_p1 if kind == 'p1' else self.dma_p2)(pidx, st, g_ % self.NS, g_)
                gs += nst
                passes.append(dict(kind=kind, pidx=pidx, stages=ids,
                                   acc=self.ACC[(k + 1) % 2 if typ == 'A' else k % 2],
                                   isv=(typ == 'B' and k == 2), scale=(k == 0)))
            for k, f in enumerate(p3_stages):
                stages[10 + k] = f((10 + k) % self.NS, 10 + k)
            WL = ENV('WARMLATE', '1')
            if WL == '0':
                self.warm_p1(typ)
            self.epoch_issue(vEP)
            if ENV('TLB', '1') == '1':
                self.tlb_touch(typ)

            def mid():
                for grp in stages[0]:
                    self.emit_group(grp)
                if WL == '1':
                    self.warm_p1(typ)
                if ENV('WARM3', '1') == '2':
                    self.warm_p3()
            self.layernorm(mid)
            for grp in stages[1]:
                self.emit_group(grp)
            self.dq0 = [grp for g_ in range(2, self.NS) for grp in stages[g_]]
            self.stamp(1, self.POOL)
            k0 = -2.0 * math.log2(math.e) * math.sqrt(2.0 / math.pi)
            a('s_mov_b32 s%d, %s' % (sK1, f32(k0 * 0.044715)))
            a('v_mov_b32 v%d, %s' % (self.vK0, f32(k0)))
            self.covered = 0
            self.stamp(2, self.POOL)
            gq = 4 if typ == 'A' else 7
            pre, post = {}, {}
            pre[4] = [lambda: self.epoch_get(vEP)]
            pre.setdefault(gq, []).append(lambda: a.wait_vm('st'))
            post[gq] = [lambda: self.publish(0, vEP)]
            if ENV('WARM3', '1') == '1':
                post.setdefault(int(ENV('W3ST', '3')), []).append(self.warm_p3)
            post.setdefault(11 - self.NS, []).append(self.p3_setup_dma)
            post.setdefault(9, []).append(lambda: self.flag_issue(0, sMB, 2, 'qflag'))
            if typ == 'A':
                LV, LA2 = self.lab('Av'), self.lab('Ajoin')
                a('s_cmp_eq_u32 s%d, 2' % sI)
                a.branch('s_cbranch_scc1 ' + LV)
                vm1, lg1 = list(a.vm), list(a.lg)
                for isv in (False, True):
                    a.vm, a.lg = list(vm1), list(lg1)
                    self.covered = 0
                    if isv:
                        a.label(LV)
                    passes[0]['isv'] = isv
                    passes[0]['scale'] = not isv
                    bg = self.run_passes(passes[:1], stages, 0, pre, post)
                    for t in bg:
                        a(t[0], tag=t[1])
                    if not isv:
                        a.branch('s_branch ' + LA2)
                a.label(LA2)
                self.stamp(3, self.POOL)
                bg = self.run_passes(passes[1:], stages, None, pre, post)
            else:
                bg = self.run_passes(passes, stages, 0, pre, post)
            self.stamp(4, self.POOL)
            self.flag_wait('qflag')
            self.attn_loads()
            for t in bg:
                a(t[0], tag=t[1])
            self.stamp(5, self.TMP)
            if typ == 'A':
                vmA = list(a.vm)
                a.branch('s_branch ' + LJ)
        tail = lambda q: [t for t in q[-24:]]
        assert tail(vmA) == tail(a.vm), (tail(vmA), tail(a.vm))
        if len(vmA) > len(a.vm):
            a.vm = vmA
        a.label(LJ)

    def KR(self, j):
        return 116 + 4 * j

    def VR(self, j):
        return 192 + 4 * (j % 4)

    AQ = 152
    aM, aLS, aMJ = 156, 157, 159
    aTQ, aNEG = 243, 244
    sVO = 76
    sMK = 96

    def v_load(self, j):
        return ('buffer_load_dwordx4 %s, v%d, %s, s%d offen%s' % (
            vr(self.VR(j), 4), self.vL16, sr(S_WS, 4), self.sVO + j, self.sc), ('v', j))

    def attn_loads(self):
        a = self.a
        vL16 = self.vL16
        a('s_lshl_b32 s%d, s%d, 3' % (sHEAD, sQUAD))
        a('s_lshl_b32 s%d, s%d, 1' % (sT0, sI))
        a('s_add_u32 s%d, s%d, s%d' % (sHEAD, sHEAD, sT0))
        a('s_add_u32 s%d, s%d, s%d' % (sHEAD, sHEAD, sC))
        a('s_lshl_b32 s%d, s%d, 2' % (sQB, sMB))
        a('s_add_u32 s%d, s%d, s%d' % (sQB, sQB, sR))
        a('s_lshl_b32 s%d, s%d, 6' % (sT0, sHEAD))
        a('s_add_u32 s%d, s%d, s%d' % (sT1, sT0, sQB))
        a('s_lshl_b32 s%d, s%d, 10' % (sT1, sT1))
        a('buffer_load_dwordx4 %s, v%d, %s, s%d offen%s' % (vr(self.AQ, 4), vL16, sr(S_WS, 4), sT1, self.sc), tag='q')
        for j in range(8, -1, -1):
            a('s_add_i32 s%d, s%d, %d' % (sT1, sQB, j - 8))
            a('s_max_i32 s%d, s%d, 0' % (sT1, sT1))
            a('s_add_u32 s%d, s%d, s%d' % (sT1, sT1, sT0))
            a('s_lshl_b32 s%d, s%d, 10' % (sT1, sT1))
            a('s_add_u32 s%d, s%d, 0x%x' % (sT2, sT1, 2 << 20))
            a('buffer_load_dwordx4 %s, v%d, %s, s%d offen%s' % (vr(self.KR(j), 4), vL16, sr(S_WS, 4), sT2, self.sc), tag=('k', j))
            a('s_add_u32 s%d, s%d, 0x%x' % (self.sVO + j, sT1, 4 << 20))
        for j in range(4):
            tx, tg = self.v_load(j)
            a(tx, tag=tg)

    def mask_ops(self, b, diag):
        out = []
        for q in range(4):
            for r in range(4 * q, 4 * q + 4):
                cr = (r & 3) + 8 * (r >> 2)
                out.append('v_cmp_le_i32 %s, %d, v%d' % (sr(86 + 2 * (r % 4), 2), cr, self.aTQ))
            for r in range(4 * q, 4 * q + 4):
                m = sr(86 + 2 * (r % 4), 2)
                if diag:
                    out.append('v_cndmask_b32 v%d, v%d, v%d, %s' % (b + r, self.aNEG, b + r, m))
                else:
                    out.append('v_cndmask_b32 v%d, v%d, v%d, %s' % (b + r, b + r, self.aNEG, m))
        return out

    def attn_pass1(self):
        a = self.a
        vL16 = self.vL16
        self.stamp(0, 240)
        TQ, NEG, M = self.aTQ, self.aNEG, self.aM
        a('v_bfe_u32 v%d, v%d, 4, 5' % (TQ, vL16))
        a('v_lshrrev_b32 v%d, 9, v%d' % (NEG, vL16))
        a('v_lshlrev_b32 v%d, 2, v%d' % (NEG, NEG))
        a('v_sub_u32 v%d, v%d, v%d' % (TQ, TQ, NEG))
        a('v_mov_b32 v%d, %s' % (NEG, f32(-1e30)))
        for c in range(3):
            a('v_mov_b32 v%d, v%d' % (M + c, NEG))
        order = list(range(8, -1, -1))
        SB = lambda j: 16 * (j % 6)
        for j in order[:3]:
            a.wait_vm(('k', j))
            a('v_mfma_f32_32x32x16_bf16 %s, %s, %s, 0' % (vr(SB(j), 16), vr(self.KR(j), 4), vr(self.AQ, 4)))
        LD = self.lab('p1done')
        for n, j in enumerate(order):
            if n + 3 < 9:
                jn = order[n + 3]
                a.wait_vm(('k', jn))
                a('v_mfma_f32_32x32x16_bf16 %s, %s, %s, 0' % (vr(SB(jn), 16), vr(self.KR(jn), 4), vr(self.AQ, 4)))
            if j < 8:
                a.raw('    s_cmp_lt_u32 s%d, %d' % (sQB, 8 - j))
                a.raw('    s_cbranch_scc1 L_skip%d_%s' % (j, LD))
            b = SB(j)
            if j in (0, 8):
                for t in self.mask_ops(b, j == 8):
                    a(t)
            for q in range(8):
                c = M + (q % 3)
                a('v_max3_f32 v%d, v%d, v%d, v%d' % (c, c, b + 2 * q, b + 2 * q + 1))
            if j < 8:
                a.raw('L_skip%d_%s:' % (j, LD))
        a.flush()
        a('v_max3_f32 v%d, v%d, v%d, v%d' % (M, M, M + 1, M + 2))
        a('v_mov_b32 v%d, v%d' % (M + 1, M))
        a('v_permlane32_swap_b32 v%d, v%d' % (M, M + 1))
        a('v_max_f32 v%d, v%d, v%d' % (M, M, M + 1))
        a('v_mov_b32 v%d, 0' % self.aLS)
        a('v_mov_b32 v%d, 0' % (self.aLS + 1))
        self.stamp(1, 240)
        a.wait_vm('st')
        a('s_barrier')
        self.publish(1, self.vEP)
        self.flag_issue(1, sTB, 0, 'hflag', shr=1)
        self.stamp(2, 240)

    def attn_pass2(self):
        a = self.a
        out = []
        D1, D2 = 208, 224
        LS, M, MJ = self.aLS, self.aM, self.aMJ
        SB = lambda j: 160 + 16 * (j & 1)
        qk = lambda j: ('v_mfma_f32_32x32x16_bf16 %s, %s, %s, 0' % (vr(SB(j), 16), vr(self.KR(j), 4), vr(self.AQ, 4)), None)
        out.append(qk(0))
        for j in range(9):
            b = SB(j)
            if j + 1 < 9:
                out.append(qk(j + 1))
            if j < 8:
                def mj(j=j):
                    a('s_cmp_ge_u32 s%d, %d' % (sQB, 8 - j))
                    a('s_cselect_b32 s%d, 0, %s' % (sCNT, f32(1e30)))
                    a('v_add_f32 v%d, s%d, v%d' % (MJ, sCNT, M))
                out.append(mj)
            else:
                out.append(('v_mov_b32 v%d, v%d' % (MJ, M), None))
            if j in (0, 8):
                out += [(t, None) for t in self.mask_ops(b, j == 8)]
            for r in range(16):
                out.append(('v_sub_f32 v%d, v%d, v%d' % (b + r, b + r, MJ), None))
            for r in range(16):
                out.append(('v_exp_f32 v%d, v%d' % (b + r, b + r), None))
            for r in range(16):
                out.append(('v_add_f32 v%d, v%d, v%d' % (LS + (r & 1), LS + (r & 1), b + r), None))
            for r in range(8):
                out.append(('v_cvt_pk_bf16_f32 v%d, v%d, v%d' % (b + r, b + 2 * r, b + 2 * r + 1), None))
            out.append(lambda j=j: a.wait_vm(('v', j)))
            out.append(('v_mfma_f32_32x32x16_bf16 %s, %s, %s, %s' % (vr(D1, 16), vr(self.VR(j), 4), vr(b, 4), '0' if j == 0 else vr(D1, 16)), None))
            out.append(('v_mfma_f32_32x32x16_bf16 %s, %s, %s, %s' % (vr(D2, 16), vr(self.VR(j), 4), vr(b + 4, 4), '0' if j == 0 else vr(D2, 16)), None))
            if j + 4 < 9:
                out.append(self.v_load(j + 4))
        T_ = []
        T_.append('v_add_f32 v%d, v%d, v%d' % (LS, LS, LS + 1))
        T_.append('v_mov_b32 v%d, v%d' % (LS + 1, LS))
        T_.append('v_permlane32_swap_b32 v%d, v%d' % (LS, LS + 1))
        T_.append('v_add_f32 v%d, v%d, v%d' % (LS, LS, LS + 1))
        T_.append('v_rcp_f32 v%d, v%d' % (LS, LS))
        T_.append('s_mul_i32 s%d, s%d, %d' % (sT2, sQB, NACT))
        T_.append('s_add_u32 s%d, s%d, s%d' % (sT2, sT2, sHEAD))
        T_.append('s_add_u32 s%d, s%d, 112' % (sT2, sT2))
        T_.append('s_lshl_b32 s%d, s%d, 10' % (sT2, sT2))
        T_.append('s_add_u32 s%d, s%d, 0x%x' % (sT2, sT2, WS_ACT))
        for r in range(8):
            T_.append('v_add_f32 v%d, v%d, v%d' % (D1 + r, D1 + r, D2 + 8 + r))
        for r in range(8):
            T_.append('v_mul_f32 v%d, v%d, v%d' % (D1 + r, D1 + r, LS))
        O = 160
        for r in range(4):
            T_.append('v_cvt_pk_bf16_f32 v%d, v%d, v%d' % (O + r, D1 + 2 * r, D1 + 2 * r + 1))
        out += [(t, None) for t in T_]
        out.append(('buffer_store_dwordx4 %s, v%d, %s, s%d offen%s' % (vr(O, 4), self.vL16, sr(S_WS, 4), sT2, self.sc), 'st'))
        return out

    v3D = 252

    def p3_setup_dma(self):
        a = self.a
        ROW, P_, S_ = self.vFL, self.vFL + 1, 253
        a('s_and_b32 s%d, s%d, 3' % (sKQ, sW))
        a('s_lshr_b32 s%d, s%d, 2' % (sTH, sW))
        a('v_lshrrev_b32 v%d, 7, v%d' % (ROW, self.vL16))
        a('v_bfe_u32 v%d, v%d, 4, 3' % (P_, self.vL16))
        a('v_bfe_u32 v%d, v%d, 1, 1' % (S_, ROW))
        a('v_lshlrev_b32 v%d, 2, v%d' % (S_, S_))
        a('v_xor_b32 v%d, v%d, v%d' % (P_, P_, S_))
        a('v_lshlrev_b32 v%d, 4, v%d' % (P_, P_))
        a('v_lshrrev_b32 v%d, 2, v%d' % (S_, ROW))
        a('v_and_b32 v%d, 3, v%d' % (ROW, ROW))
        a('v_lshl_add_u32 v%d, v%d, 3, v%d' % (ROW, S_, ROW))
        a('v_lshl_add_u32 v%d, v%d, 10, v%d' % (self.v3D, ROW, P_))
        a('s_lshl_b32 s%d, s%d, 7' % (sT0, sNB))
        a('s_lshl_b32 s%d, s%d, 5' % (sT1, sTH))
        a('s_mul_i32 s%d, s%d, 448' % (sT2, sKQ))
        a('s_add_u32 s%d, s%d, s%d' % (sT2, sT2, sT1))
        a('s_lshl_b32 s%d, s%d, 10' % (sT2, sT2))
        a('s_add_u32 s%d, s%d, s%d' % (sWD, sT2, sT0))
        a('s_lshl_b32 s%d, s%d, 7' % (sT2, sKQ))
        a('s_add_u32 s%d, s%d, s%d' % (sT2, sT2, sT1))
        a('s_lshl_b32 s%d, s%d, 10' % (sT2, sT2))
        a('s_add_u32 s%d, s%d, s%d' % (sWOo, sT2, sT0))
        a('s_lshl_b32 s%d, s%d, 13' % (sT2, sKQ))
        a('s_lshl_b32 s%d, s%d, 12' % (sT1, sTH))
        a('s_add_u32 s%d, s%d, s%d' % (sWB3, sT2, sT1))

    def p3_stage_fn(self, st):
        def f(slot, gs):
            out = []
            for j in range(4):
                base, srd, s_ = (sWD, S_DOWN, st) if st < 7 else (sWOo, S_WO, st - 7)
                so = (64 * s_ + 16 * (j >> 1) + 4 * (j & 1)) * 1024
                out.append((['s_add_u32 s%d, s%d, 0x%x' % (sT0, base, so),
                             's_add_u32 m0, s%d, 0x%x' % (sWB3, slot * 32768 + 1024 * j),
                             'buffer_load_dwordx4 v%d, %s, s%d offen lds' % (self.v3D, sr(srd, 4), sT0)], ('dma', gs)))
            return out
        return f

    def phase3(self, gs0, dma_issued):
        a = self.a
        ACC, AB, PB = 0, 32, 80
        NP, LA = 6, 4
        vL16 = self.vL16
        TRa, vO, XR = 104, 110, 112
        att = self.attn_pass2()
        ATR = int(ENV('ATR', '16'))
        self.stamp(0, 240)
        a('s_lshl_b32 s%d, s%d, 1' % (sT0, sTB))
        a('s_add_u32 s%d, s%d, s%d' % (sT0, sT0, sTH))
        a('s_mul_i32 s%d, s%d, %d' % (sT1, sT0, NACT))
        a('s_mul_i32 s%d, s%d, 28' % (sT2, sKQ))
        a('s_add_u32 s%d, s%d, s%d' % (sT2, sT2, sT1))
        a('s_lshl_b32 s%d, s%d, 10' % (sT2, sT2))
        a('s_add_u32 s%d, s%d, 0x%x' % (sACT, sT2, WS_ACT))
        a('s_lshl_b32 s%d, s%d, 3' % (sT2, sKQ))
        a('s_add_u32 s%d, s%d, s%d' % (sT2, sT2, sT1))
        a('s_add_u32 s%d, s%d, 112' % (sT2, sT2))
        a('s_lshl_b32 s%d, s%d, 10' % (sT2, sT2))
        a('s_add_u32 s%d, s%d, 0x%x' % (sACTO, sT2, WS_ACT))

        def act_loads(st):
            base, off = (sACT, st * 4096) if st < 7 else (sACTO, (st - 7) * 4096)
            out = [('s_add_u32 s%d, s%d, 0x%x' % (sT1, base, off), None)]
            for j in range(4):
                out.append(('buffer_load_dwordx4 %s, v%d, %s, s%d offen offset:%d%s' % (
                    vr(AB + 16 * (st % 3) + 4 * j, 4), vL16, sr(S_WS, 4), sT1, 1024 * j, self.sc), ('act', st, j)))
            return out

        NS = self.NS
        stages = {gs0 + st: self.p3_stage_fn(st)((gs0 + st) % NS, gs0 + st) for st in range(9)}

        def pop_att(cnt):
            for _ in range(cnt):
                if not att:
                    return
                e = att.pop(0)
                if callable(e):
                    e()
                else:
                    a(e[0], tag=e[1])

        for st in range(dma_issued, NS):
            for grp in stages[gs0 + st]:
                self.emit_group(grp)
        A_, B_, C_ = 111, 245, 246
        a('v_lshrrev_b32 v%d, 9, v%d' % (A_, vL16))
        a('v_bfe_u32 v%d, v%d, 6, 2' % (B_, vL16))
        a('v_lshl_add_u32 v%d, v%d, 3, v%d' % (B_, A_, B_))
        a('v_lshlrev_b32 v%d, 7, v%d' % (B_, B_))
        a('v_bfe_u32 v%d, v%d, 8, 1' % (C_, vL16))
        a('v_lshl_add_u32 v%d, v%d, 5, v%d' % (B_, C_, B_))
        a('v_bfe_u32 v%d, v%d, 4, 2' % (C_, vL16))
        a('v_lshl_add_u32 v%d, v%d, 3, v%d' % (B_, C_, B_))
        a('s_lshl_b32 s%d, s%d, 13' % (sT0, sKQ))
        a('v_add_u32 v%d, s%d, v%d' % (B_, sT0, B_))
        a('v_bfe_u32 v%d, v%d, 7, 1' % (C_, vL16))
        a('v_lshl_add_u32 v%d, v%d, 6, v%d' % (TRa, C_, B_))
        a('v_xor_b32 v%d, 1, v%d' % (C_, C_))
        a('v_lshl_add_u32 v%d, v%d, 6, v%d' % (TRa + 1, C_, B_))
        a('v_add_u32 v%d, 0x10000, v%d' % (TRa + 2, TRa))
        a('v_add_u32 v%d, 0x10000, v%d' % (TRa + 3, TRa + 1))
        a('v_add_u32 v%d, 0x20000, v%d' % (TRa + 4, TRa))
        a('v_add_u32 v%d, 0x20000, v%d' % (TRa + 5, TRa + 1))
        a('s_lshl_b32 s%d, s%d, 1' % (sT0, sTB))
        a('s_add_u32 s%d, s%d, s%d' % (sT0, sT0, sTH))
        a('s_lshl_b32 s%d, s%d, 5' % (sT0, sT0))
        a('v_bfe_u32 v%d, v%d, 4, 5' % (B_, vL16))
        a('v_add_u32 v%d, s%d, v%d' % (B_, sT0, B_))
        a('v_lshlrev_b32 v%d, 10, v%d' % (B_, B_))
        a('v_lshl_add_u32 v%d, v%d, 4, v%d' % (B_, A_, B_))
        a('s_lshl_b32 s%d, s%d, 7' % (sT0, sNB))
        a('s_lshl_b32 s%d, s%d, 5' % (sT1, sKQ))
        a('s_add_u32 s%d, s%d, s%d' % (sT0, sT0, sT1))
        a('v_add_u32 v%d, s%d, v%d' % (vO, sT0, B_))

        items = [(st, j, ft) for st in range(9) for j in range(4) for ft in range(2)]
        n = len(items)
        bg = []

        def issue_reads(k):
            st, j, ft = items[k]
            slot = (gs0 + st) % NS
            off = (slot & 1) * 32768 + j * 2048
            addr = TRa + ft + 2 * (slot >> 1)
            dst = PB + 4 * (k % NP)
            a('ds_read_b64_tr_b16 %s, v%d offset:%d' % (vr(dst, 2), addr, off), tag=('f', k))
            a('ds_read_b64_tr_b16 %s, v%d offset:%d' % (vr(dst + 2, 2), addr, off + 512), tag=('f', k))

        def pop_bg(cnt):
            for _ in range(cnt):
                if not bg:
                    return
                tt = bg.pop(0)
                if isinstance(tt[0], list):
                    self.emit_group(tt)
                else:
                    a(tt[0], tag=tt[1])

        pop_att(int(ENV('ATPRE', '130')))
        self.flag_wait('hflag')
        for st in range(2):
            for tx, tg in act_loads(st):
                a(tx, tag=tg)
        pop_att(int(ENV('ATPRE2', '60')))
        a.wait_vm(('dma', gs0 + 1))
        a('s_barrier')
        for tx, tg in act_loads(2):
            a(tx, tag=tg)
        self.stamp(1, 240)
        issued, cur = 0, 0
        opub = None
        for k in range(n):
            st, j, ft = items[k]
            if st != cur:
                cur = st
                if st + 1 < 9:
                    a.wait_vm(('dma', gs0 + st + 1))
                if opub is None and not att:
                    a.wait_vm('st')
                a('s_barrier')
                if opub is None and not att:
                    opub = st
                    self.publish(2, self.vEP)
                    self.stamp(5, 240)
                dm = list(stages[gs0 + st + NS - 1]) if st + NS - 1 < 9 else []
                if st == 5:
                    assert opub is not None
                    self.flag_issue(2, sTB, 0, 'oflag', shr=1)
                if st == 6:
                    self.flag_wait('oflag')
                    self.stamp(6, 240)
                al = []
                if st + 2 < 7:
                    al = act_loads(st + 2)
                elif st == 6:
                    al = act_loads(7) + act_loads(8)[0:]
                if st == 6:
                    bg.extend(al)
                else:
                    bg.extend(al[:1])
                    al = al[1:]
                    for q in range(4):
                        bg.extend(al[q:q + 1])
                        bg.extend(dm[q:q + 1])
                if st == 6:
                    bg.append(('buffer_load_dwordx4 %s, v%d, %s, 0 offen' % (vr(XR, 4), vO, sr(S_X, 4)), 'xr'))
            while issued < n and issued <= k + LA:
                issue_reads(issued)
                issued += 1
            a.wait_vm(('act', st, j))
            a.wait_lg(('f', k))
            acc = ACC + 16 * ft
            c = '0' if (st == 0 and j == 0) else vr(acc, 16)
            a('v_mfma_f32_32x32x16_bf16 %s, %s, %s, %s' % (vr(acc, 16), vr(PB + 4 * (k % NP), 4),
                                                         vr(AB + 16 * (st % 3) + 4 * j, 4), c))
            pop_att(ATR)
            while bg:
                isvm = isinstance(bg[0][0], list) or bg[0][1] is not None
                pop_bg(1)
                if isvm:
                    break
        pop_bg(10 ** 6)
        self.stamp(2, 240)
        last = (gs0 + 8) % NS
        rb = 0 if last >= 2 else 65536
        vW = A_
        a('s_mul_i32 s%d, s%d, 24576' % (sT0, sTH))
        a('s_add_u32 s%d, s%d, %d' % (sT0, sT0, rb))
        a('v_add_u32 v%d, s%d, v%d' % (vW, sT0, vL16))
        LBL = [self.lab('red%d' % q) for q in range(4)]
        LE = self.lab('rede')
        for q in range(1, 4):
            a('s_cmp_eq_u32 s%d, %d' % (sKQ, q))
            a.branch('s_cbranch_scc1 ' + LBL[q])
        RES = 64
        assert not att
        for q in range(4):
            if q:
                a.label(LBL[q])
            for o in range(4):
                if o == q:
                    continue
                off = o * 6144 + ((q - o - 1) & 3) * 2048
                a('ds_write_b128 v%d, %s offset:%d' % (vW, vr(ACC + 8 * o, 4), off))
                a('ds_write_b128 v%d, %s offset:%d' % (vW, vr(ACC + 8 * o + 4, 4), off + 1024))
            for e in range(8):
                a('v_mov_b32 v%d, v%d' % (RES + e, ACC + 8 * q + e))
            if q < 3:
                a.branch('s_branch ' + LE)
        a.label(LE)
        a('s_mul_i32 s%d, s%d, 6144' % (sT0, sKQ))
        a('v_add_u32 v%d, s%d, v%d' % (vW, sT0, vW))
        a.wait_lg0()
        a('s_barrier')
        RB = 32
        for sl in range(3):
            a('ds_read_b128 %s, v%d offset:%d' % (vr(RB + 8 * sl, 4), vW, sl * 2048), tag=('r', sl))
            a('ds_read_b128 %s, v%d offset:%d' % (vr(RB + 8 * sl + 4, 4), vW, sl * 2048 + 1024), tag=('r', sl))
        for sl in range(3):
            a.wait_lg(('r', sl))
            for e in range(8):
                a('v_add_f32 v%d, v%d, v%d' % (RES + e, RES + e, RB + 8 * sl + e))
        for e in range(4):
            a('v_permlane32_swap_b32 v%d, v%d' % (RES + e, RES + 4 + e))
        a.wait_vm('xr')
        for e in range(4):
            a('v_lshlrev_b32 v%d, 16, v%d' % (RB + 2 * e, XR + e))
            a('v_and_b32 v%d, s%d, v%d' % (RB + 2 * e + 1, sMASKHI, XR + e))
        for e in range(8):
            a('v_add_f32 v%d, v%d, v%d' % (RES + e, RES + e, RB + e))
        for e in range(4):
            a('v_cvt_pk_bf16_f32 v%d, v%d, v%d' % (RB + 8 + e, RES + 2 * e, RES + 2 * e + 1))
        a('buffer_store_dwordx4 %s, v%d, %s, 0 offen' % (vr(RB + 8, 4), vO, sr(S_OUT, 4)), tag='st')
        self.stamp(3, 240)
        if self.STAMPS:
            a.wait_vm0()
            self.stamp(4, 240)


HEADER = open('cdna_kernels/%s.s.ref' % NAME).read().split('; Override launch geometry')[0]

KD = '''.section .rodata,"a"
.p2align 6
.amdhsa_kernel %s
  .amdhsa_next_free_vgpr 256
  .amdhsa_next_free_sgpr 102
  .amdhsa_accum_offset 256
  .amdhsa_group_segment_fixed_size 0
  .amdhsa_kernarg_size 80
  .amdhsa_user_sgpr_count 2
  .amdhsa_user_sgpr_kernarg_segment_ptr 1
  .amdhsa_system_sgpr_workgroup_id_x 1
.end_amdhsa_kernel
'''


def build():
    g = Gen()
    g.prologue()
    g.phase1([g.p3_stage_fn(st) for st in range(g.NS - 1)])
    g.KIDX = 1
    g.attn_pass1()
    g.KIDX = 2
    g.phase3(10, g.NS - 1)
    g.a.label('L_end')
    g.a('s_endpgm')
    g.a.raw('L_kend:')
    out = HEADER
    out += '; @launch grid=(256,1,1) block=(512,1,1) lds=163840\n'
    out += '.amdgcn_target "amdgcn-amd-amdhsa--gfx950"\n'
    out += '.text\n.globl %s\n.p2align 8\n.type %s,@function\n%s:\n' % (KNAME, KNAME, KNAME)
    out += g.a.text() + KD % KNAME
    return out


if __name__ == '__main__':
    dst = sys.argv[1] if len(sys.argv) > 1 else 'cdna_kernels/%s.s' % NAME
    txt = build()
    open(dst, 'w').write(txt)
    print('wrote', dst, len(txt), 'bytes')
```

```python
import math
import os
import struct
import sys
from asmlib import Asm, vr, sr

NAME = 'parallel_sum__sliding_block__glu_gated_geglu__prompt'
KNAME = NAME + '_kernel'
ENV = os.environ.get

T, D, F, H = 2048, 512, 1792, 32
WS_QKV = 0
WS_ACT = 6 << 20
WS_FLAG = 16 << 20
WS_FLAGH = WS_FLAG + 8192
WS_BYTES = WS_FLAGH + 8192
NACT = 144

S_X, S_WQKV, S_GATE, S_UP, S_DOWN, S_WO, S_OUT, S_WS, S_DBG = 4, 8, 12, 16, 20, 24, 28, 32, 36
sW, sMB, sQUAD, sI, sR, sC, sWB = 40, 41, 42, 43, 44, 45, 46
sCOL = 47
sST = 51
sCNT = 55
sT0, sT1, sT2, sT3 = 56, 57, 58, 59
sONES, sMASKHI, sK0, sK1, sQS = 60, 61, 62, 63, 64
sTB, sNB, sKQ, sTH = 65, 66, 67, 68
sACT, sACTO, sWD, sWOo, sWB3 = 69, 70, 71, 72, 73
sQB, sHEAD = 74, 75
sM = 76
sEPOCH, sCG4 = 94, 95
SCALE = 0.25 * math.log2(math.e)


def f32(x):
    return '0x%08x' % struct.unpack('<I', struct.pack('<f', x))[0]


class Gen:
    STAMPS = bool(ENV('STAMPS'))
    STAMP2 = bool(ENV('STAMP2'))

    def __init__(self):
        self.a = Asm()
        self.sc = ' sc1'
        self.uid = 0
        self.KIDX = 0

    def lab(self, s):
        self.uid += 1
        return 'L_%s_%d' % (s, self.uid)

    def stamp(self, i, vtmp):
        if not self.STAMPS:
            return
        a = self.a
        a('s_memrealtime s[98:99]')
        a('s_memtime s[96:97]')
        a('s_lshl_b32 s100, s2, 3')
        a('s_add_u32 s100, s100, s%d' % sW)
        a('s_lshl_b32 s100, s100, 8')
        a('s_add_u32 s100, s100, 0x%x' % ((32 << 20) + self.KIDX * (1 << 20)))
        a.wait_lg0()
        a('v_mov_b32 v%d, s98' % vtmp)
        a('buffer_store_dword v%d, off, %s, s100 offset:%d' % (vtmp, sr(S_WS, 4), 4 * i), tag='stamp')
        a('s_nop 1')
        a('v_mov_b32 v%d, s96' % vtmp)
        a('buffer_store_dword v%d, off, %s, s100 offset:%d' % (vtmp, sr(S_WS, 4), 128 + 4 * i), tag='stamp')

    def prio_young(self, p):
        L = self.lab('pr')
        self.a.raw('    s_cmp_lt_u32 s%d, 4' % sW)
        self.a.raw('    s_cbranch_scc1 ' + L)
        self.a.raw('    s_setprio %d' % p)
        self.a.raw(L + ':')

    def lane(self, v):
        self.a('v_mbcnt_lo_u32_b32 v%d, -1, 0' % v)
        self.a('v_mbcnt_hi_u32_b32 v%d, -1, v%d' % (v, v))

    XB = 0
    ACC = (128, 160)
    POOL = 192
    NP = 8
    LA = int(ENV('LA', '6'))
    TMP = 224
    vTR = 243
    vL16 = 250
    vSV = 251
    vDQ, vDG = 252, 253
    vFL = 254
    vK0 = 246
    vEP = 247
    XLDS = 32768
    MAP = int(ENV('MAP', '8'))
    NS = int(ENV('NS', '5'))

    def srd(self, srd, p, n):
        a = self.a
        a('s_mov_b32 s%d, s%d' % (srd, p))
        a('s_and_b32 s%d, s%d, 0xffff' % (srd + 1, p + 1))
        a('s_mov_b32 s%d, 0x%x' % (srd + 2, n))
        a('s_mov_b32 s%d, 0x00020000' % (srd + 3))

    def prologue(self):
        a = self.a
        t = self.TMP
        L = self.vL16 + 1
        a('s_cmp_ge_u32 s2, 256')
        a.branch('s_cbranch_scc1 L_end')
        if self.STAMPS:
            a('s_memrealtime s[%d:%d]' % (sK0, sK0 + 1))
        a('s_load_dwordx16 s[76:91], s[0:1], 0')
        a('s_load_dwordx4 s[92:95], s[0:1], 64')
        a('s_getpc_b64 s[%d:%d]' % (sT2, sT3))
        a.raw('L_pc:')
        a('s_sub_u32 s%d, s%d, L_pc-%s' % (sT2, sT2, KNAME))
        a('s_subb_u32 s%d, s%d, 0' % (sT3, sT3))
        a('v_lshlrev_b32 v1, 7, v0')
        a('v_min_u32 v1, L_kend-%s-4, v1' % KNAME)
        a('global_load_dword v%d, v1, s[%d:%d]' % (self.ACC[0] + 31, sT2, sT3), tag='warm')
        a('v_lshrrev_b32 v1, 6, v0')
        a('v_and_b32 v%d, 63, v0' % L)
        a('v_readfirstlane_b32 s%d, v1' % sW)
        a('s_and_b32 s%d, s2, 7' % sT0)
        a('s_lshr_b32 s%d, s2, 3' % sT1)
        if self.MAP == 8:
            a('s_and_b32 s%d, s%d, 1' % (sT2, sT0))
            a('s_lshl_b32 s%d, s%d, 3' % (sT2, sT2))
            a('s_and_b32 s%d, s%d, 7' % (sT3, sT1))
            a('s_add_u32 s%d, s%d, s%d' % (sMB, sT2, sT3))
            a('s_lshr_b32 s%d, s%d, 1' % (sQUAD, sT0))
            a('s_lshr_b32 s%d, s%d, 3' % (sI, sT1))
        else:
            a('s_and_b32 s%d, s%d, 3' % (sT2, sT0))
            a('s_lshl_b32 s%d, s%d, 2' % (sT2, sT2))
            a('s_and_b32 s%d, s%d, 3' % (sT3, sT1))
            a('s_add_u32 s%d, s%d, s%d' % (sMB, sT2, sT3))
            a('s_lshr_b32 s%d, s%d, 2' % (sT2, sT0))
            a('s_lshl_b32 s%d, s%d, 1' % (sT2, sT2))
            a('s_lshr_b32 s%d, s%d, 4' % (sT3, sT1))
            a('s_add_u32 s%d, s%d, s%d' % (sQUAD, sT2, sT3))
            a('s_bfe_u32 s%d, s%d, 0x20002' % (sI, sT1))
        a('s_lshl_b32 s%d, s%d, 2' % (sT2, sT0))
        a('s_and_b32 s%d, s%d, 3' % (sT3, sT1))
        a('s_add_u32 s%d, s%d, s%d' % (sTB, sT2, sT3))
        a('s_lshr_b32 s%d, s%d, 2' % (sNB, sT1))
        a('v_lshlrev_b32 v%d, 4, v%d' % (self.vL16, L))
        a('s_lshl_b32 s%d, s%d, 7' % (sT0, sMB))
        a('s_lshl_b32 s%d, s%d, 4' % (sT1, sW))
        a('s_add_u32 s%d, s%d, s%d' % (sT0, sT0, sT1))
        a('s_lshl_b32 s%d, s%d, 10' % (sT0, sT0))
        a('s_lshl_b32 s%d, s%d, 14' % (sT1, sW))
        a('s_waitcnt lgkmcnt(0)')
        self.srd(S_X, 76, T * D * 2)
        for n in range(16):
            a('v_xor_b32 v%d, %d, v%d' % (t + (n & 1), 16 * n, self.vL16))
            a('s_add_u32 s%d, s%d, %d' % (sT2, sT0, 1024 * n))
            a('s_add_u32 m0, s%d, %d' % (sT1, self.XLDS + 1024 * n))
            a('buffer_load_dwordx4 v%d, %s, s%d offen lds' % (t + (n & 1), sr(S_X, 4), sT2), tag=('xdma', n))
        for srd, p, n in ((S_WQKV, 78, D * 3 * D * 2), (S_WO, 80, D * D * 2), (S_GATE, 84, D * F * 2),
                          (S_UP, 86, D * F * 2), (S_DOWN, 88, F * D * 2), (S_OUT, 90, T * D * 2),
                          (S_DBG, 92, 256), (S_WS, 94, (64 << 20) if self.STAMPS else WS_BYTES)):
            self.srd(srd, p, n)
        self.stamp(0, t + 8)
        if self.STAMPS:
            a('v_mov_b32 v%d, s%d' % (t + 8, sK0))
            a('buffer_store_dword v%d, off, %s, s100 offset:%d' % (t + 8, sr(S_WS, 4), 4 * 31), tag='stamp')
        a('s_and_b32 s%d, s%d, 3' % (sR, sW))
        a('s_lshr_b32 s%d, s%d, 2' % (sC, sW))
        a('s_lshl_b32 s%d, s%d, 10' % (sWB, sW))
        a('s_mov_b32 s%d, 0x3f803f80' % sONES)
        a('s_mov_b32 s%d, 0xffff0000' % sMASKHI)
        a('s_lshl_b32 s%d, s%d, 2' % (sCG4, sQUAD))
        a('s_add_u32 s%d, s%d, s%d' % (sCG4, sCG4, sI))
        a('s_lshl_b32 s%d, s%d, 2' % (sCG4, sCG4))
        self.epoch_publish(self.vEP)
        I, G, A_, B_, C_ = t + 2, t + 3, t + 4, t + 5, t + 6
        a('v_and_b32 v%d, 15, v%d' % (I, L))
        a('v_lshrrev_b32 v%d, 4, v%d' % (G, L))
        LA_ = self.ACC[1]
        a('s_add_u32 s%d, s%d, %d' % (sT0, sT1, self.XLDS))
        a('v_lshlrev_b32 v%d, 10, v%d' % (A_, I))
        a('v_add_u32 v%d, s%d, v%d' % (A_, sT0, A_))
        a('v_and_b32 v%d, 3, v%d' % (B_, I))
        a('v_xor_b32 v%d, v%d, v%d' % (B_, B_, G))
        a('v_lshl_add_u32 v%d, v%d, 4, v%d' % (A_, B_, A_))
        a('v_lshrrev_b32 v%d, 2, v%d' % (B_, I))
        for q in range(4):
            a('v_xor_b32 v%d, %d, v%d' % (C_, q, B_))
            a('v_lshl_add_u32 v%d, v%d, 6, v%d' % (LA_ + q, C_, A_))
        a('s_lshl_b32 s%d, s%d, 15' % (sT0, sR))
        a('s_add_u32 s%d, s%d, %d' % (sT0, sT0, self.XLDS))
        a('v_and_b32 v%d, 31, v%d' % (A_, L))
        a('v_lshlrev_b32 v%d, 10, v%d' % (A_, A_))
        a('v_add_u32 v%d, s%d, v%d' % (A_, sT0, A_))
        a('v_lshrrev_b32 v%d, 5, v%d' % (B_, L))
        a('v_xor_b32 v%d, v%d, v%d' % (C_, B_, I))
        a('v_lshl_add_u32 v%d, v%d, 4, v%d' % (LA_ + 4, C_, A_))
        a('v_lshrrev_b32 v%d, 2, v%d' % (A_, I))
        a('v_lshl_add_u32 v%d, v%d, 3, v%d' % (A_, B_, A_))
        a('v_lshlrev_b32 v%d, 7, v%d' % (A_, A_))
        a('v_and_b32 v%d, 1, v%d' % (C_, G))
        a('v_lshl_add_u32 v%d, v%d, 5, v%d' % (A_, C_, A_))
        a('v_lshlrev_b32 v%d, 16, v%d' % (t + 7, C_))
        a('v_lshl_add_u32 v%d, v%d, 9, v%d' % (t + 7, B_, t + 7))
        a('v_lshl_add_u32 v%d, v%d, 4, v%d' % (t + 7, I, t + 7))
        a('v_and_b32 v%d, 3, v%d' % (C_, I))
        a('v_lshl_add_u32 v%d, v%d, 3, v%d' % (A_, C_, A_))
        a('v_bfe_u32 v%d, v%d, 3, 1' % (C_, I))
        a('v_xor_b32 v%d, s%d, v%d' % (C_, sC, C_))
        a('v_lshl_add_u32 v%d, v%d, 6, v%d' % (self.vTR, C_, A_))
        a('v_add_u32 v%d, 0x10000, v%d' % (self.vTR + 1, self.vTR))
        a('v_add_u32 v%d, 0x20000, v%d' % (self.vTR + 2, self.vTR))
        a('v_lshrrev_b32 v%d, 3, v%d' % (A_, L))
        a('v_and_b32 v%d, 7, v%d' % (B_, L))
        a('v_bfe_u32 v%d, v%d, 1, 1' % (C_, A_))
        a('v_lshlrev_b32 v%d, 2, v%d' % (C_, C_))
        a('v_xor_b32 v%d, v%d, v%d' % (B_, B_, C_))
        a('v_lshlrev_b32 v%d, 4, v%d' % (B_, B_))
        a('s_lshl_b32 s%d, s%d, 3' % (sT0, sW))
        a('v_add_u32 v%d, s%d, v%d' % (A_, sT0, A_))
        a('s_movk_i32 s%d, 3072' % sT0)
        a('s_movk_i32 s%d, 3584' % sT1)
        a('v_mad_u32_u24 v%d, v%d, s%d, v%d' % (self.vDQ, A_, sT0, B_))
        a('v_mad_u32_u24 v%d, v%d, s%d, v%d' % (self.vDG, A_, sT1, B_))
        a('v_mov_b32 v%d, v%d' % (t + 9, L))
        a('v_mov_b32 v%d, v%d' % (self.vSV, t + 7))

    def epoch_publish(self, vt):
        a = self.a
        L = self.lab('noep')
        a('s_or_b32 s%d, s2, s%d' % (sT0, sW))
        a('s_cmp_lg_u32 s%d, 0' % sT0)
        a.branch('s_cbranch_scc1 ' + L)
        a('s_memrealtime s[%d:%d]' % (sT2, sT3))
        a('s_waitcnt lgkmcnt(0)')
        a('s_or_b32 s%d, s%d, 1' % (sT2, sT2))
        a('v_mov_b32 v%d, s%d' % (vt, sT2))
        n = len(a.vm)
        a('buffer_store_dword v%d, off, %s, 0 sc0 sc1' % (vt, sr(S_DBG, 4)))
        del a.vm[n:]
        a.label(L)

    def epoch_issue(self, vt):
        self.a('buffer_load_dword v%d, off, %s, 0 sc0 sc1' % (vt, sr(S_DBG, 4)), tag='epoch')

    def epoch_get(self, vt):
        a = self.a
        Lr, Ld = self.lab('epr'), self.lab('epd')
        a.wait_vm('epoch')
        a('s_mov_b32 s%d, 0' % sCNT)
        a.label(Lr)
        a('v_readfirstlane_b32 s%d, v%d' % (sEPOCH, vt))
        a('s_cmp_lg_u32 s%d, 0' % sEPOCH)
        a.branch('s_cbranch_scc1 ' + Ld)
        a('s_sleep 4')
        n = len(a.vm)
        a('buffer_load_dword v%d, off, %s, 0 sc0 sc1' % (vt, sr(S_DBG, 4)))
        del a.vm[n:]
        a('s_waitcnt vmcnt(0)')
        a('s_add_u32 s%d, s%d, 1' % (sCNT, sCNT))
        a('s_cmp_lt_u32 s%d, 0x100000' % sCNT)
        a.branch('s_cbranch_scc1 ' + Lr)
        a.label(Ld)

    vEC = 148

    def epoch_chk_issue(self):
        a = self.a
        L = self.lab('noec')
        a('s_or_b32 s%d, s2, s%d' % (sT2, sW))
        a('s_cmp_lg_u32 s%d, 0' % sT2)
        a.branch('s_cbranch_scc1 ' + L)
        self._ec_loads()
        a.label(L)

    def _ec_loads(self):
        a = self.a
        v = self.vEC
        a('v_lshrrev_b32 v%d, 8, v%d' % (v, self.vL16))
        a('v_lshlrev_b32 v%d, 7, v%d' % (v, v))
        a('v_bfe_u32 v%d, v%d, 4, 4' % (v + 1, self.vL16))
        a('v_lshl_add_u32 v%d, v%d, 2, v%d' % (v, v + 1, v))
        a('v_add_u32 v%d, 0x%x, v%d' % (v, WS_FLAG + 4096, v))
        n = len(a.vm)
        for q in range(4):
            a('buffer_load_dword v%d, v%d, %s, 0 offen offset:%d sc0 sc1' % (v + 1 + q, v, sr(S_WS, 4), 512 * q))
        del a.vm[n:]

    def epoch_clear(self):
        a = self.a
        v = self.vEC
        L, Lr, Lc = self.lab('noclr'), self.lab('ecr'), self.lab('ecc')
        a('s_or_b32 s%d, s2, s%d' % (sT2, sW))
        a('s_cmp_lg_u32 s%d, 0' % sT2)
        a.branch('s_cbranch_scc1 ' + L)
        a('s_mov_b32 s%d, 0' % sCNT)
        a.label(Lr)
        for q in range(4):
            a('v_xor_b32 v%d, s%d, v%d' % (v + 1 + q, sEPOCH, v + 1 + q))
        a('v_or_b32 v%d, v%d, v%d' % (v + 1, v + 1, v + 2))
        a('v_or_b32 v%d, v%d, v%d' % (v + 3, v + 3, v + 4))
        a('v_or_b32 v%d, v%d, v%d' % (v + 1, v + 1, v + 3))
        a('v_cmp_ne_u32 vcc, 0, v%d' % (v + 1))
        a.branch('s_cbranch_vccz ' + Lc)
        a('s_sleep 4')
        self._ec_loads()
        a('s_waitcnt vmcnt(0)')
        a('s_add_u32 s%d, s%d, 1' % (sCNT, sCNT))
        a('s_cmp_lt_u32 s%d, 0x100000' % sCNT)
        a.branch('s_cbranch_scc1 ' + Lr)
        a.label(Lc)
        a('v_mov_b32 v%d, 0' % v)
        n = len(a.vm)
        a('buffer_store_dword v%d, off, %s, 0 sc0 sc1' % (v, sr(S_DBG, 4)))
        del a.vm[n:]
        a.label(L)

    def publish(self, kind, vt):
        a = self.a
        L = self.lab('nopub')
        a('s_cmp_lg_u32 s%d, 0' % sW)
        a.branch('s_cbranch_scc1 ' + L)
        a('s_lshl_b32 s%d, s%d, 7' % (sT2, sMB))
        a('s_add_u32 s%d, s%d, s%d' % (sT2, sT2, sCG4))
        a('s_add_u32 s%d, s%d, 0x%x' % (sT2, sT2, WS_FLAG + kind * 2048))
        a('v_mov_b32 v%d, s%d' % (vt, sEPOCH))
        a('s_mov_b64 exec, 1')
        n = len(a.vm)
        a('buffer_store_dword v%d, off, %s, s%d sc0 sc1' % (vt, sr(S_WS, 4), sT2))
        del a.vm[n:]
        a('s_mov_b64 exec, -1')
        a.label(L)

    def flag_issue(self, kind, smb, nback, tag, shr=0):
        a = self.a
        va = self.vFL
        if shr:
            a('s_lshr_b32 s%d, s%d, %d' % (sT3, smb, shr))
            smb = sT3
        a('v_lshrrev_b32 v%d, 8, v%d' % (va + 1, self.vL16))
        a('v_min_u32 v%d, %d, v%d' % (va + 1, nback, va + 1))
        a('v_sub_u32 v%d, s%d, v%d' % (va + 1, smb, va + 1))
        a('v_max_i32 v%d, 0, v%d' % (va + 1, va + 1))
        a('v_bfe_u32 v%d, v%d, 4, 4' % (va, self.vL16))
        a('v_lshlrev_b32 v%d, 2, v%d' % (va, va))
        a('v_lshl_add_u32 v%d, v%d, 7, v%d' % (va, va + 1, va))
        a('v_add_u32 v%d, 0x%x, v%d' % (va, WS_FLAG + kind * 2048, va))
        a('buffer_load_dword v%d, v%d, %s, 0 offen sc0 sc1' % (va + 1, va, sr(S_WS, 4)), tag=tag)

    def flag_wait(self, tag):
        a = self.a
        va = self.vFL
        Lr, Ld = self.lab('flr'), self.lab('fld')
        a.wait_vm(tag)
        a('s_mov_b32 s%d, 0' % sCNT)
        a.label(Lr)
        a('v_cmp_ne_u32 vcc, s%d, v%d' % (sEPOCH, va + 1))
        a.branch('s_cbranch_vccz ' + Ld)
        a('s_sleep 1')
        n = len(a.vm)
        a('buffer_load_dword v%d, v%d, %s, 0 offen sc0 sc1' % (va + 1, va, sr(S_WS, 4)))
        del a.vm[n:]
        a('s_waitcnt vmcnt(0)')
        a('s_add_u32 s%d, s%d, 1' % (sCNT, sCNT))
        a('s_cmp_lt_u32 s%d, 0x100000' % sCNT)
        a.branch('s_cbranch_scc1 ' + Lr)
        a.label(Ld)

    def p1_scalar_setup(self, typ):
        a = self.a
        a('s_lshl_b32 s%d, s%d, 2' % (sT3, sMB))
        a('s_add_u32 s%d, s%d, s%d' % (sT3, sT3, sR))
        a('s_mul_i32 s%d, s%d, %d' % (sT2, sT3, NACT))
        a('s_lshl_b32 s%d, s%d, 1' % (sT1, sC))
        a('s_add_u32 s%d, s%d, s%d' % (sT2, sT2, sT1))
        a('s_mul_i32 s%d, s%d, 7' % (sT0, sQUAD))
        if typ == 'A':
            a('s_lshl_b32 s%d, s%d, 10' % (sCOL, sI))
            a('s_lshl_b32 s%d, s%d, 7' % (sM, sQUAD))
            a('s_add_u32 s%d, s%d, s%d' % (sCOL, sCOL, sM))
            a('s_add_u32 s%d, s%d, 512' % (sCOL, sCOL))
            a('s_lshl_b32 s%d, s%d, 5' % (sST, sI))
            a('s_lshl_b32 s%d, s%d, 2' % (sM, sQUAD))
            a('s_add_u32 s%d, s%d, s%d' % (sST, sST, sM))
            a('s_add_u32 s%d, s%d, 16' % (sST, sST))
            a('s_add_u32 s%d, s%d, s%d' % (sST, sST, sT1))
            a('s_lshl_b32 s%d, s%d, 6' % (sST, sST))
            a('s_add_u32 s%d, s%d, s%d' % (sST, sST, sT3))
            a('s_lshl_b32 s%d, s%d, 10' % (sST, sST))
            a('s_lshl_b32 s%d, s%d, 1' % (sM, sI))
            a('s_add_u32 s%d, s%d, s%d' % (sT0, sT0, sM))
            for k in range(2):
                a('s_add_u32 s%d, s%d, %d' % (sM, sT0, k))
                a('s_lshl_b32 s%d, s%d, 7' % (sCOL + 1 + k, sM))
                a('s_lshl_b32 s%d, s%d, 2' % (sM, sM))
                a('s_add_u32 s%d, s%d, s%d' % (sM, sM, sT2))
                a('s_lshl_b32 s%d, s%d, 10' % (sM, sM))
                a('s_add_u32 s%d, s%d, 0x%x' % (sST + 1 + k, sM, WS_ACT))
            a('s_cmp_eq_u32 s%d, 0' % sI)
            a('s_cselect_b32 s%d, %s, 1.0' % (sQS, f32(SCALE)))
        else:
            for ty in range(3):
                a('s_lshl_b32 s%d, s%d, 7' % (sM, sQUAD))
                a('s_add_u32 s%d, s%d, %d' % (sCOL + ty, sM, 1024 * ty))
                a('s_lshl_b32 s%d, s%d, 2' % (sM, sQUAD))
                a('s_add_u32 s%d, s%d, %d' % (sM, sM, 32 * ty))
                a('s_add_u32 s%d, s%d, s%d' % (sM, sM, sT1))
                a('s_lshl_b32 s%d, s%d, 6' % (sM, sM))
                a('s_add_u32 s%d, s%d, s%d' % (sM, sM, sT3))
                a('s_lshl_b32 s%d, s%d, 10' % (sST + ty, sM))
            a('s_add_u32 s%d, s%d, 6' % (sM, sT0))
            a('s_lshl_b32 s%d, s%d, 7' % (sCOL + 3, sM))
            a('s_lshl_b32 s%d, s%d, 2' % (sM, sM))
            a('s_add_u32 s%d, s%d, s%d' % (sM, sM, sT2))
            a('s_lshl_b32 s%d, s%d, 10' % (sM, sM))
            a('s_add_u32 s%d, s%d, 0x%x' % (sST + 3, sM, WS_ACT))
            a('s_mov_b32 s%d, %s' % (sQS, f32(SCALE)))

    def warm_p1(self, typ):
        a = self.a
        t = self.TMP
        L = t + 9
        D0 = self.ACC[0] + 28
        R, U = t + 12, t + 13
        t = t + 8
        nrep = 8 // self.MAP
        a('s_bfe_u32 s%d, s2, 0x%x' % (sT0, 0x30003 if self.MAP == 8 else 0x20003))
        a('s_lshl_b32 s%d, s%d, 3' % (sT0, sT0))
        a('s_add_u32 s%d, s%d, s%d' % (sT0, sT0, sW))
        a('s_lshl_b32 s%d, s%d, %d' % (sT0, sT0, 3 if nrep == 1 else 4))
        a('v_and_b32 v%d, 7, v%d' % (R, L))
        a('v_add_u32 v%d, s%d, v%d' % (R, sT0, R))
        a('v_lshrrev_b32 v%d, 3, v%d' % (U, L))
        a('s_movk_i32 s%d, 3072' % sT0)
        a('s_movk_i32 s%d, 3584' % sT1)
        nq, ng = (1, 2) if typ == 'A' else (3, 1)
        cg_ = sCOL + 1 if typ == 'A' else sCOL + 3
        a('v_lshlrev_b32 v%d, 10, v%d' % (t + 6, U))
        a('v_mad_u32_u24 v%d, v%d, s%d, v%d' % (t + 6, R, sT0, t + 6))
        a('v_lshlrev_b32 v%d, 7, v%d' % (t + 7, U))
        a('v_mad_u32_u24 v%d, v%d, s%d, v%d' % (t + 7, R, sT1, t + 7))
        for rep in range(nrep):
            a('s_add_u32 s%d, s%d, %d' % (sT2, sCOL, rep * 8 * 3072))
            a('s_add_u32 s%d, s%d, %d' % (sT3, cg_, rep * 8 * 3584))
            a('s_mov_b64 exec, 0x%x' % ((1 << (8 * nq)) - 1))
            a('buffer_load_dword v%d, v%d, %s, s%d offen' % (D0, t + 6, sr(S_WQKV, 4), sT2), tag='warm')
            a('s_mov_b64 exec, 0x%x' % ((1 << (8 * ng)) - 1))
            a('buffer_load_dword v%d, v%d, %s, s%d offen' % (D0 + 1, t + 7, sr(S_GATE, 4), sT3), tag='warm')
            a('buffer_load_dword v%d, v%d, %s, s%d offen' % (D0 + 2, t + 7, sr(S_UP, 4), sT3), tag='warm')
        a('s_mov_b64 exec, -1')

    def tlb_touch(self, typ):
        a = self.a
        D0 = self.ACC[0] + 27
        for p in range(3 if typ == 'A' else 4):
            a('buffer_load_dword v%d, off, %s, s%d' % (D0, sr(S_WS, 4), sST + p), tag='warm')
        a('s_lshl_b32 s%d, s%d, 16' % (sT0, sTB))
        a('s_lshl_b32 s%d, s%d, 7' % (sT1, sNB))
        a('s_add_u32 s%d, s%d, s%d' % (sT0, sT0, sT1))
        a('buffer_load_dword v%d, off, %s, s%d' % (D0, sr(S_OUT, 4), sT0), tag='warm')
        a('buffer_load_dword v%d, off, %s, s%d' % (D0, sr(S_WO, 4), sT1), tag='warm')
        a('buffer_load_dword v%d, off, %s, s%d' % (D0, sr(S_DOWN, 4), sT1), tag='warm')

    def warm_p3(self):
        a = self.a
        t0, t1 = self.vFL, self.vFL + 1
        a('v_lshlrev_b32 v%d, 3, v%d' % (t0, self.vL16))
        a('s_lshl_b32 s%d, s2, 3' % sT2)
        a('s_add_u32 s%d, s%d, s%d' % (sT2, sT2, sW))
        a('s_mul_i32 s%d, s%d, 896' % (sT3, sT2))
        a('s_mov_b64 exec, 0x7f')
        a('buffer_load_dword v%d, v%d, %s, s%d offen' % (t1, t0, sr(S_DOWN, 4), sT3), tag='warm')
        a('s_lshl_b32 s%d, s%d, 8' % (sT3, sT2))
        a('s_mov_b64 exec, 3')
        a('buffer_load_dword v%d, v%d, %s, s%d offen' % (t1, t0, sr(S_WO, 4), sT3), tag='warm')
        a('s_mov_b64 exec, -1')

    def dma_p1(self, pidx, st, slot, gs):
        out = []
        for j in range(4):
            out.append((['s_add_u32 s%d, s%d, 0x%x' % (sT0, sCOL + pidx, (256 * st + 64 * j) * 3072),
                         's_add_u32 m0, s%d, 0x%x' % (sWB, slot * 32768 + 8192 * j),
                         'buffer_load_dwordx4 v%d, %s, s%d offen lds' % (self.vDQ, sr(S_WQKV, 4), sT0)], ('dma', gs)))
        return out

    def dma_p2(self, pidx, st, slot, gs):
        out = []
        for j in range(2):
            for pn, srd in enumerate((S_GATE, S_UP)):
                out.append((['s_add_u32 s%d, s%d, 0x%x' % (sT0, sCOL + pidx, (128 * st + 64 * j) * 3584),
                             's_add_u32 m0, s%d, 0x%x' % (sWB, slot * 32768 + 16384 * pn + 8192 * j),
                             'buffer_load_dwordx4 v%d, %s, s%d offen lds' % (self.vDG, sr(srd, 4), sT0)], ('dma', gs)))
        return out

    def emit_group(self, grp):
        texts, tag = grp
        for t in texts[:-1]:
            self.a(t)
        self.a(texts[-1], tag=tag)

    def layernorm(self, mid):
        a = self.a
        LA_ = self.ACC[1]
        R0 = 0
        S = self.ACC[0]
        t = self.TMP
        for k in range(8):
            a('v_mov_b32 v%d, 0' % (S + k))
        a.wait_vm(('xdma', 15))
        self.stamp(28, self.POOL)
        for s in range(16):
            a('ds_read_b128 %s, v%d offset:%d' % (vr(R0 + 4 * s, 4), LA_ + (s & 3), (s >> 2) * 256), tag=('x', s))
        for s in range(16):
            if s % 2 == 0:
                a.wait_lg(('x', s + 1))
            for d in range(4):
                x = R0 + 4 * s + d
                a('v_dot2c_f32_bf16 v%d, s%d, v%d' % (S + d, sONES, x))
                a('v_dot2c_f32_bf16 v%d, v%d, v%d' % (S + 4 + d, x, x))
        if ENV('MIDPOS', '1') == '0':
            mid()
        for q in range(2):
            b = S + 4 * q
            a('v_add_f32 v%d, v%d, v%d' % (b, b, b + 1))
            a('v_add_f32 v%d, v%d, v%d' % (b + 2, b + 2, b + 3))
        M, E = S + 8, S + 9
        a('v_add_f32 v%d, v%d, v%d' % (M, S, S + 2))
        a('v_add_f32 v%d, v%d, v%d' % (E, S + 4, S + 6))
        for sw in ('v_permlane16_swap_b32', 'v_permlane32_swap_b32'):
            for q in range(2):
                a('v_mov_b32 v%d, v%d' % (S + q, M + q))
            for q in range(2):
                a('%s v%d, v%d' % (sw, M + q, S + q))
            for q in range(2):
                a('v_add_f32 v%d, v%d, v%d' % (M + q, M + q, S + q))
        a('s_mov_b32 s%d, %s' % (sT0, f32(1.0 / 512)))
        a('s_mov_b32 s%d, %s' % (sT1, f32(1e-5)))
        a('v_mul_f32 v%d, s%d, v%d' % (M, sT0, M))
        a('v_mul_f32 v%d, s%d, v%d' % (E, sT0, E))
        a('v_fma_f32 v%d, -v%d, v%d, v%d' % (E, M, M, E))
        a('v_max_f32 v%d, 0, v%d' % (E, E))
        a('v_cvt_pk_bf16_f32 v%d, v%d, v%d' % (S, M, E))
        a('v_lshlrev_b32 v%d, 16, v%d' % (M, S))
        a('v_and_b32 v%d, s%d, v%d' % (E, sMASKHI, S))
        a('v_add_f32 v%d, s%d, v%d' % (E, sT1, E))
        a('v_cvt_pk_bf16_f32 v%d, v%d, v%d' % (S, E, E))
        a('v_and_b32 v%d, s%d, v%d' % (E, sMASKHI, S))
        a('v_sqrt_f32 v%d, v%d' % (E, E))
        a('v_cvt_pk_bf16_f32 v%d, v%d, v%d' % (S, E, E))
        a('v_and_b32 v%d, s%d, v%d' % (E, sMASKHI, S))
        a('v_rcp_f32 v%d, v%d' % (E, E))
        a('v_mul_f32 v%d, v%d, v%d' % (M, M, E))
        a('v_sub_f32 v%d, 0, v%d' % (M, M))
        for s in range(16):
            for d in range(4):
                x = R0 + 4 * s + d
                tt = t + 2 * d
                a('v_lshlrev_b32 v%d, 16, v%d' % (tt, x))
                a('v_and_b32 v%d, s%d, v%d' % (tt + 1, sMASKHI, x))
            for d in range(4):
                tt = t + 2 * d
                a('v_fma_f32 v%d, v%d, v%d, v%d' % (tt, tt, E, M))
                a('v_fma_f32 v%d, v%d, v%d, v%d' % (tt + 1, tt + 1, E, M))
            for d in range(4):
                tt = t + 2 * d
                a('v_cvt_pk_bf16_f32 v%d, v%d, v%d' % (R0 + 4 * s + d, tt, tt + 1))
            a('ds_write_b128 v%d, %s offset:%d' % (LA_ + (s & 3), vr(R0 + 4 * s, 4), (s >> 2) * 256))
        if ENV('MIDPOS', '1') == '1':
            mid()
        for q in range(1, 8):
            a('v_xor_b32 v%d, %d, v%d' % (LA_ + 4 + q, q << 5, LA_ + 4))
        a.wait_lg0()
        self.stamp(29, self.POOL)
        a('s_barrier')
        self.stamp(30, self.POOL)
        for s in range(32):
            a('ds_read_b128 %s, v%d offset:%d' % (vr(4 * s, 4), LA_ + 4 + (s & 7), (s >> 3) * 256), tag=('xf', s))
        a.wait_lg0()
        a.wait_vm(('dma', 0))
        a('s_barrier')

    def epi_qkv(self, acc, pidx, isv, scale):
        out = []
        if scale:
            for r in range(16):
                out.append(('v_mul_f32 v%d, s%d, v%d' % (acc + r, sQS, acc + r), None))
        for tl in range(2):
            q = self.TMP + 4 * tl
            for e in range(4):
                c = acc + 8 * tl + 2 * e
                out.append(('v_cvt_pk_bf16_f32 v%d, v%d, v%d' % (q + e, c, c + 1), None))
            if isv:
                out.append(('buffer_store_dwordx4 %s, v%d, %s, s%d offen offset:%d%s' % (
                    vr(q, 4), self.vSV, sr(S_WS, 4), sST + pidx, 256 * tl, self.sc), 'st'))
            else:
                so = 's%d' % (sST + pidx)
                if tl == 1:
                    out.append(('s_add_u32 s%d, s%d, 0x10000' % (sT1, sST + pidx), None))
                    so = 's%d' % sT1
                out.append(('buffer_store_dwordx4 %s, v%d, %s, %s offen%s' % (
                    vr(q, 4), self.vL16, sr(S_WS, 4), so, self.sc), 'st'))
        return out

    def epi_geglu(self, acc, pidx):
        out = []
        for tl in range(2):
            q = self.TMP + 4 * tl
            for hf in range(2):
                g0 = acc + 8 * tl + 4 * hf
                u0 = g0 + 16
                t0 = self.TMP + 8 + 4 * hf
                blk = []
                for e in range(4):
                    blk.append('v_mul_f32 v%d, v%d, v%d' % (t0 + e, g0 + e, g0 + e))
                for e in range(4):
                    blk.append('v_fma_f32 v%d, v%d, s%d, v%d' % (t0 + e, t0 + e, sK1, self.vK0))
                for e in range(4):
                    blk.append('v_mul_f32 v%d, v%d, v%d' % (t0 + e, t0 + e, g0 + e))
                for e in range(4):
                    blk.append('v_exp_f32 v%d, v%d' % (t0 + e, t0 + e))
                for e in range(4):
                    blk.append('v_mul_f32 v%d, v%d, v%d' % (g0 + e, g0 + e, u0 + e))
                for e in range(4):
                    blk.append('v_add_f32 v%d, 1.0, v%d' % (t0 + e, t0 + e))
                for e in range(4):
                    blk.append('v_rcp_f32 v%d, v%d' % (t0 + e, t0 + e))
                for e in range(4):
                    blk.append('v_mul_f32 v%d, v%d, v%d' % (g0 + e, g0 + e, t0 + e))
                blk.append('v_cvt_pk_bf16_f32 v%d, v%d, v%d' % (q + 2 * hf, g0, g0 + 1))
                blk.append('v_cvt_pk_bf16_f32 v%d, v%d, v%d' % (q + 2 * hf + 1, g0 + 2, g0 + 3))
                out += [(b, None) for b in blk]
            out.append(('buffer_store_dwordx4 %s, v%d, %s, s%d offen offset:%d%s' % (
                vr(q, 4), self.vL16, sr(S_WS, 4), sST + pidx, 1024 * tl, self.sc), 'st'))
        return out

    BGRATE = 4

    def run_passes(self, passes, stages, first_stage_ready, pre_ev, post_ev):
        a = self.a
        items = []
        for p in passes:
            nst = 2 if p['kind'] == 'p1' else 4
            kper = 32 // nst
            npan = 1 if p['kind'] == 'p1' else 2
            for st in range(nst):
                for ks in range(kper):
                    for pn in range(npan):
                        items.append(dict(gs=p['stages'][st], p=p, s=st * kper + ks, ks=ks, pn=pn))
        n = len(items)
        bg, dq = [], []
        if first_stage_ready == 0:
            dq = list(self.dq0)

        def issue_reads(k):
            it = items[k]
            if it['gs'] > self.covered:
                a.wait_vm(('dma', it['gs']))
                a('s_barrier')
                self.covered = it['gs']
            slot = it['gs'] % self.NS
            off = (slot & 1) * 32768 + it['pn'] * 16384 + it['ks'] * 2048
            addr = self.vTR + (slot >> 1)
            dst = self.POOL + 4 * (k % self.NP)
            a('ds_read_b64_tr_b16 %s, v%d offset:%d' % (vr(dst, 2), addr, off), tag=('f', k))
            a('ds_read_b64_tr_b16 %s, v%d offset:%d' % (vr(dst + 2, 2), addr, off + 512), tag=('f', k))

        def pop_bg(cnt):
            for _ in range(cnt):
                if not bg:
                    return
                t = bg.pop(0)
                a(t[0], tag=t[1])

        cur_gs, issued, kst, later = None, 0, 0, None
        for k in range(n):
            it = items[k]
            p = it['p']
            if it['gs'] != cur_gs:
                cur_gs = it['gs']
                if cur_gs != first_stage_ready:
                    if (cur_gs + 1) in stages:
                        a.wait_vm(('dma', cur_gs + 1))
                        self.covered = cur_gs + 1
                    for f in pre_ev.get(cur_gs, []):
                        f()
                    if self.STAMP2:
                        self.stamp(8 + 2 * cur_gs, 248)
                    a('s_barrier')
                    if self.STAMP2:
                        self.stamp(9 + 2 * cur_gs, 248)
                    for f in post_ev.get(cur_gs, []):
                        f()
                    assert not dq
                    if (cur_gs + self.NS - 1) in stages:
                        dq = list(stages[cur_gs + self.NS - 1])
                    kst = k
            while issued < n and issued <= k + self.LA:
                issue_reads(issued)
                issued += 1
            a.wait_lg(('f', k))
            w = self.POOL + 4 * (k % self.NP)
            acc = p['acc'] + 16 * it['pn']
            x = 4 * it['s']
            c = '0' if it['s'] == 0 else vr(acc, 16)
            if p.get('isv'):
                a('v_mfma_f32_32x32x16_bf16 %s, %s, %s, %s' % (vr(acc, 16), vr(x, 4), vr(w, 4), c))
            else:
                a('v_mfma_f32_32x32x16_bf16 %s, %s, %s, %s' % (vr(acc, 16), vr(w, 4), vr(x, 4), c))
            PR = int(ENV('PRIO', '8'))
            if PR and (k % 16) == 0:
                self.prio_young(1)
            if PR and (k % 16) == PR:
                self.prio_young(0)
            if later is not None and k >= later[0]:
                bg.extend(later[1])
                later = None
            if dq and ((k - kst) % 4 == 1 or cur_gs == 0):
                self.emit_group(dq.pop(0))
            pop_bg(self.BGRATE)
            if (k == n - 1) or (items[k + 1]['p'] is not p):
                assert later is None
                pop_bg(10 ** 6)
                if p['kind'] == 'p1':
                    e = self.epi_qkv(p['acc'], p['pidx'], p.get('isv'), p.get('scale'))
                else:
                    e = self.epi_geglu(p['acc'], p['pidx'])
                later = (k + 3, e)
        bg.extend(later[1])
        return bg

    def phase1(self, p3_stages):
        a = self.a
        vEP = self.vEP
        LB, LJ = self.lab('typeB'), self.lab('p1join')
        a('s_cmp_eq_u32 s%d, 3' % sI)
        a.branch('s_cbranch_scc1 ' + LB)
        vm0 = list(a.vm)
        for typ in ('A', 'B'):
            a.vm = list(vm0)
            if typ == 'B':
                a.label(LB)
            self.p1_scalar_setup(typ)
            if typ == 'A':
                plist = [('p1', 0), ('p2', 1), ('p2', 2)]
            else:
                plist = [('p1', 0), ('p1', 1), ('p1', 2), ('p2', 3)]
            stages, passes, gs = {}, [], 0
            for k, (kind, pidx) in enumerate(plist):
                nst = 2 if kind == 'p1' else 4
                ids = list(range(gs, gs + nst))
                for st, g_ in enumerate(ids):
                    stages[g_] = (self.dma_p1 if kind == 'p1' else self.dma_p2)(pidx, st, g_ % self.NS, g_)
                gs += nst
                passes.append(dict(kind=kind, pidx=pidx, stages=ids,
                                   acc=self.ACC[(k + 1) % 2 if typ == 'A' else k % 2],
                                   isv=(typ == 'B' and k == 2), scale=(k == 0)))
            for k, f in enumerate(p3_stages):
                stages[10 + k] = f((10 + k) % self.NS, 10 + k)
            WL = ENV('WARMLATE', '1')
            if WL == '0':
                self.warm_p1(typ)
            self.epoch_issue(vEP)
            if ENV('TLB', '1') == '1':
                self.tlb_touch(typ)

            def mid():
                for grp in stages[0]:
                    self.emit_group(grp)
                if WL == '1':
                    self.warm_p1(typ)
                if ENV('WARM3', '1') == '2':
                    self.warm_p3()
            self.layernorm(mid)
            for grp in stages[1]:
                self.emit_group(grp)
            self.dq0 = [grp for g_ in range(2, self.NS) for grp in stages[g_]]
            self.stamp(1, self.POOL)
            k0 = -2.0 * math.log2(math.e) * math.sqrt(2.0 / math.pi)
            a('s_mov_b32 s%d, %s' % (sK1, f32(k0 * 0.044715)))
            a('v_mov_b32 v%d, %s' % (self.vK0, f32(k0)))
            self.covered = 0
            self.stamp(2, self.POOL)
            gq = 4 if typ == 'A' else 7
            pre, post = {}, {}
            pre[4] = [lambda: self.epoch_get(vEP)]
            pre.setdefault(gq, []).append(lambda: a.wait_vm('st'))
            post[gq] = [lambda: self.publish(0, vEP)]
            if ENV('WARM3', '1') == '1':
                post.setdefault(int(ENV('W3ST', '3')), []).append(self.warm_p3)
            post.setdefault(11 - self.NS, []).append(self.p3_setup_dma)
            post.setdefault(9, []).append(lambda: self.flag_issue(0, sMB, 2, 'qflag'))
            if typ == 'A':
                LV, LA2 = self.lab('Av'), self.lab('Ajoin')
                a('s_cmp_eq_u32 s%d, 2' % sI)
                a.branch('s_cbranch_scc1 ' + LV)
                vm1, lg1 = list(a.vm), list(a.lg)
                for isv in (False, True):
                    a.vm, a.lg = list(vm1), list(lg1)
                    self.covered = 0
                    if isv:
                        a.label(LV)
                    passes[0]['isv'] = isv
                    passes[0]['scale'] = not isv
                    bg = self.run_passes(passes[:1], stages, 0, pre, post)
                    for t in bg:
                        a(t[0], tag=t[1])
                    if not isv:
                        a.branch('s_branch ' + LA2)
                a.label(LA2)
                self.stamp(3, self.POOL)
                bg = self.run_passes(passes[1:], stages, None, pre, post)
            else:
                bg = self.run_passes(passes, stages, 0, pre, post)
            self.stamp(4, self.POOL)
            self.flag_wait('qflag')
            self.attn_loads()
            for t in bg:
                a(t[0], tag=t[1])
            self.attn_loads_v()
            self.stamp(5, self.TMP)
            if typ == 'A':
                vmA = list(a.vm)
                a.branch('s_branch ' + LJ)
        tail = lambda q: [t for t in q[q.index('q'):]]
        assert tail(vmA) == tail(a.vm), (tail(vmA), tail(a.vm))
        if len(vmA) > len(a.vm):
            a.vm = vmA
        a.label(LJ)

    def KR(self, j):
        return 104 + 4 * j

    MERGE = ENV('MERGE', '0') == '1'

    def VR(self, j, m):
        if self.MERGE:
            return 144 + 4 * j if j < 4 else 192 + 4 * (j - 4)
        return (192 + 8 * j if j < 3 else 32 + 8 * (j - 3)) + 4 * m

    AQ = 140
    CB = 144
    aTQ, aNEG, aM = 248, 249, 251
    mM, mMJ, mLS = 244, 245, 246
    vPUB = 253
    vST = 103
    sVO = 76

    def v_load(self, j):
        a = self.a
        a('s_mov_b32 exec_lo, 0x0000ffff')
        a('s_mov_b32 exec_hi, 0x0000ffff')
        a('buffer_load_dwordx4 %s, v%d, %s, s%d offen%s' % (vr(self.VR(j, 0), 4), self.vL16, sr(S_WS, 4), self.sVO + j, self.sc), tag=('v', j))
        a('s_mov_b32 exec_lo, 0xffff0000')
        a('s_mov_b32 exec_hi, 0xffff0000')
        a('buffer_load_dwordx4 %s, v%d, %s, s%d offen%s' % (vr(self.VR(j, 1), 4), self.vL16, sr(S_WS, 4), self.sVO + j, self.sc), tag=('v', j))
        a('s_mov_b64 exec, -1')

    def attn_loads(self):
        a = self.a
        vL16 = self.vL16
        a('s_lshl_b32 s%d, s%d, 3' % (sHEAD, sQUAD))
        a('s_lshl_b32 s%d, s%d, 1' % (sT0, sI))
        a('s_add_u32 s%d, s%d, s%d' % (sHEAD, sHEAD, sT0))
        a('s_add_u32 s%d, s%d, s%d' % (sHEAD, sHEAD, sC))
        a('s_lshl_b32 s%d, s%d, 2' % (sQB, sMB))
        a('s_add_u32 s%d, s%d, s%d' % (sQB, sQB, sR))
        a('s_lshl_b32 s%d, s%d, 6' % (sT0, sHEAD))
        a('s_add_u32 s%d, s%d, s%d' % (sT1, sT0, sQB))
        a('s_lshl_b32 s%d, s%d, 10' % (sT1, sT1))
        a('buffer_load_dwordx4 %s, v%d, %s, s%d offen%s' % (vr(self.AQ, 4), vL16, sr(S_WS, 4), sT1, self.sc), tag='q')
        for j in range(8, -1, -1):
            a('s_add_i32 s%d, s%d, %d' % (sT1, sQB, j - 8))
            a('s_max_i32 s%d, s%d, 0' % (sT1, sT1))
            a('s_add_u32 s%d, s%d, s%d' % (sT1, sT1, sT0))
            a('s_lshl_b32 s%d, s%d, 10' % (sT1, sT1))
            a('s_add_u32 s%d, s%d, 0x%x' % (sT2, sT1, 2 << 20))
            a('buffer_load_dwordx4 %s, v%d, %s, s%d offen%s' % (vr(self.KR(j), 4), vL16, sr(S_WS, 4), sT2, self.sc), tag=('k', j))
            a('s_add_u32 s%d, s%d, 0x%x' % (self.sVO + j, sT1, 4 << 20))
    def attn_loads_v(self):
        a = self.a
        vL16 = self.vL16
        for j in range(9):
            if self.MERGE:
                a('buffer_load_dwordx4 %s, v%d, %s, s%d offen%s' % (vr(self.VR(j, 0), 4), vL16, sr(S_WS, 4), self.sVO + j, self.sc), tag=('v', j))
                continue
            for r in range(8):
                a('v_mov_b32 v%d, s%d' % (self.VR(j, 0) + r, sONES))
            self.v_load(j)

    def mask_ops(self, b, diag):
        out = []
        for q in range(4):
            for r in range(4 * q, 4 * q + 4):
                cr = (r & 3) + 8 * (r >> 2)
                out.append('v_cmp_le_i32 %s, %d, v%d' % (sr(86 + 2 * (r % 4), 2), cr, self.aTQ))
            for r in range(4 * q, 4 * q + 4):
                m = sr(86 + 2 * (r % 4), 2)
                if diag:
                    out.append('v_cndmask_b32 v%d, v%d, v%d, %s' % (b + r, self.aNEG, b + r, m))
                else:
                    out.append('v_cndmask_b32 v%d, v%d, v%d, %s' % (b + r, b + r, self.aNEG, m))
        return out

    MK = (80, 81, 82, 83, 92, 93, 94, 95)

    def merge_ops(self, b8, b0, mk=False):
        out = []
        for q in range(4):
            for r in range(4 * q, 4 * q + 4):
                cr = (r & 3) + 8 * (r >> 2)
                out.append('v_cmp_le_i32 %s, %d, v%d' % (sr(86 + 2 * (r % 4), 2), cr, self.aTQ))
            for r in range(4 * q, 4 * q + 4):
                out.append('v_cndmask_b32 v%d, v%d, v%d, %s' % (b8 + r, b0 + r, b8 + r, sr(86 + 2 * (r % 4), 2)))
            if mk:
                for e in range(2):
                    k = self.MK[2 * q + e]
                    out.append('v_cndmask_b32 v%d, 0, v%d, %s' % (k, self.vFFFF, sr(86 + 4 * e, 2)))
                    out.append('v_cndmask_b32 v%d, v%d, -1, %s' % (k, k, sr(88 + 4 * e, 2)))
        return out

    vFFFF = 253

    def h_publish(self):
        a = self.a
        a.wait_vm('st')
        a('s_lshl_b32 s%d, s%d, 7' % (sT2, sQB))
        a('s_lshl_b32 s%d, s%d, 1' % (sT3, sCG4))
        a('s_add_u32 s%d, s%d, s%d' % (sT2, sT2, sT3))
        a('s_lshl_b32 s%d, s%d, 2' % (sT3, sC))
        a('s_add_u32 s%d, s%d, s%d' % (sT2, sT2, sT3))
        a('s_add_u32 s%d, s%d, 0x%x' % (sT2, sT2, WS_FLAGH))
        a('v_mov_b32 v%d, s%d' % (self.vPUB, sEPOCH))
        a('s_mov_b64 exec, 1')
        a('buffer_store_dword v%d, off, %s, s%d sc0 sc1' % (self.vPUB, sr(S_WS, 4), sT2), tag='flagst')
        a('s_mov_b64 exec, -1')

    def h_flag_issue(self):
        a = self.a
        va = self.vFL
        a('s_lshl_b32 s%d, s%d, 8' % (sT3, sTB))
        a('v_lshrrev_b32 v%d, 2, v%d' % (va, self.vL16))
        a('v_add_u32 v%d, s%d, v%d' % (va, sT3, va))
        a('v_add_u32 v%d, 0x%x, v%d' % (va, WS_FLAGH, va))
        a('buffer_load_dword v%d, v%d, %s, 0 offen sc0 sc1' % (va + 1, va, sr(S_WS, 4)), tag='hflag')

    def attn_pass1(self):
        a = self.a
        vL16 = self.vL16
        self.stamp(0, self.vST)
        TQ, NEG, M = self.aTQ, self.aNEG, 96
        a('v_bfe_u32 v%d, v%d, 4, 5' % (TQ, vL16))
        a('v_lshrrev_b32 v%d, 9, v%d' % (NEG, vL16))
        a('v_lshlrev_b32 v%d, 2, v%d' % (NEG, NEG))
        a('v_sub_u32 v%d, v%d, v%d' % (TQ, TQ, NEG))
        a('v_mov_b32 v%d, %s' % (NEG, f32(-1e30)))
        for c in range(3):
            a('v_mov_b32 v%d, v%d' % (M + c, NEG))
        bufs = (0, 16, 160, 176)
        A_, B_, C_, D_ = bufs
        def qk1(j, b):
            a.wait_vm(('k', j))
            a('v_mfma_f32_32x32x16_bf16 %s, %s, %s, 0' % (vr(b, 16), vr(self.KR(j), 4), vr(self.AQ, 4)))
        qk1(8, A_)
        qk1(7, C_)
        qk1(6, D_)
        qk1(0, B_)
        LD = self.lab('p1done')
        def mx(b):
            for q in range(8):
                c = M + (q % 3)
                a('v_max3_f32 v%d, v%d, v%d, v%d' % (c, c, b + 2 * q, b + 2 * q + 1))
        def guarded(j, b):
            a.raw('    s_cmp_lt_u32 s%d, %d' % (sQB, 8 - j))
            a.raw('    s_cbranch_scc1 L_skip%d_%s' % (j, LD))
            mx(b)
            a.raw('L_skip%d_%s:' % (j, LD))
        guarded(7, C_)
        qk1(5, C_)
        self.h_publish()
        guarded(6, D_)
        qk1(4, D_)
        L0 = self.lab('t0ok')
        a.raw('    s_cmp_ge_u32 s%d, 8' % sQB)
        a.raw('    s_cbranch_scc1 ' + L0)
        a.raw('    s_nop 7')
        a.raw('    s_nop 7')
        for r in range(16):
            a.raw('    v_mov_b32 v%d, v%d' % (B_ + r, NEG))
        a.raw(L0 + ':')
        for t in self.merge_ops(A_, B_):
            a(t)
        mx(A_)
        qk1(3, A_)
        qk1(2, B_)
        guarded(5, C_)
        qk1(1, C_)
        guarded(4, D_)
        guarded(3, A_)
        guarded(2, B_)
        guarded(1, C_)
        a('s_nop 11')
        a.flush()
        a('v_max3_f32 v%d, v%d, v%d, v%d' % (M, M, M + 1, M + 2))
        a('v_mov_b32 v%d, v%d' % (M + 1, M))
        a('v_permlane32_swap_b32 v%d, v%d' % (M, M + 1))
        a('v_max_f32 v%d, v%d, v%d' % (M, M, M + 1))
        if self.MERGE:
            a('v_mov_b32 v%d, v%d' % (self.mM, M))
            a('v_mov_b32 v%d, 0' % self.mLS)
            a('v_mov_b32 v%d, 0' % (self.mLS + 1))
        a('v_sub_f32 v%d, 0, v%d' % (self.aM, M))
        a('s_cmp_ge_u32 s%d, 8' % sQB)
        a('s_cselect_b64 %s, -1, 0' % sr(86, 2))
        a('v_cndmask_b32 v%d, v%d, v%d, %s' % (M, NEG, self.aM, sr(86, 2)))
        for r in range(16):
            if not self.MERGE:
                a('v_mov_b32 v%d, v%d' % (self.CB + r, M))
        self.stamp(1, self.vST)
        self.stamp(2, self.vST)

    def attn_pass2_merge(self):
        a = self.a
        out = []
        D1, D2 = 212, 228
        LS, M, MJ = self.mLS, self.mM, self.mMJ
        SB = lambda j: 160 + 16 * (j & 1)
        qk = lambda j: ('v_mfma_f32_32x32x16_bf16 %s, %s, %s, 0' % (vr(SB(j), 16), vr(self.KR(j), 4), vr(self.AQ, 4)), None)
        out.append(qk(0))
        for j in range(9):
            b = SB(j)
            if j + 1 < 9:
                out.append(qk(j + 1))
            if j < 8:
                def mj(j=j):
                    a('s_cmp_ge_u32 s%d, %d' % (sQB, 8 - j))
                    a('s_cselect_b32 s%d, 0, %s' % (sCNT, f32(1e30)))
                    a('v_add_f32 v%d, s%d, v%d' % (MJ, sCNT, M))
                out.append(mj)
            else:
                out.append(('v_mov_b32 v%d, v%d' % (MJ, M), None))
            if j in (0, 8):
                out += [(t, None) for t in self.mask_ops(b, j == 8)]
            for q in range(4):
                for r in range(4 * q, 4 * q + 4):
                    out.append(('v_sub_f32 v%d, v%d, v%d' % (b + r, b + r, MJ), None))
                for r in range(4 * q, 4 * q + 4):
                    out.append(('v_exp_f32 v%d, v%d' % (b + r, b + r), None))
                if q:
                    for r in range(4 * q - 4, 4 * q):
                        out.append(('v_add_f32 v%d, v%d, v%d' % (LS + (r & 1), LS + (r & 1), b + r), None))
                    for r in range(2 * q - 2, 2 * q):
                        out.append(('v_cvt_pk_bf16_f32 v%d, v%d, v%d' % (b + r, b + 2 * r, b + 2 * r + 1), None))
            for r in range(12, 16):
                out.append(('v_add_f32 v%d, v%d, v%d' % (LS + (r & 1), LS + (r & 1), b + r), None))
            for r in range(6, 8):
                out.append(('v_cvt_pk_bf16_f32 v%d, v%d, v%d' % (b + r, b + 2 * r, b + 2 * r + 1), None))
            if j == 0:
                out.append(lambda: a.wait_vm(('v', 8)))
            out.append(('v_mfma_f32_32x32x16_bf16 %s, %s, %s, %s' % (vr(D1, 16), vr(self.VR(j, 0), 4), vr(b, 4), '0' if j == 0 else vr(D1, 16)), None))
            out.append(('v_mfma_f32_32x32x16_bf16 %s, %s, %s, %s' % (vr(D2, 16), vr(self.VR(j, 0), 4), vr(b + 4, 4), '0' if j == 0 else vr(D2, 16)), None))
        T_ = []
        T_.append('v_add_f32 v%d, v%d, v%d' % (LS, LS, LS + 1))
        T_.append('v_mov_b32 v%d, v%d' % (LS + 1, LS))
        T_.append('v_permlane32_swap_b32 v%d, v%d' % (LS, LS + 1))
        T_.append('v_add_f32 v%d, v%d, v%d' % (LS, LS, LS + 1))
        T_.append('v_rcp_f32 v%d, v%d' % (LS, LS))
        T_.append('s_mul_i32 s%d, s%d, %d' % (sT2, sQB, NACT))
        T_.append('s_add_u32 s%d, s%d, s%d' % (sT2, sT2, sHEAD))
        T_.append('s_add_u32 s%d, s%d, 112' % (sT2, sT2))
        T_.append('s_lshl_b32 s%d, s%d, 10' % (sT2, sT2))
        T_.append('s_add_u32 s%d, s%d, 0x%x' % (sT2, sT2, WS_ACT))
        for r in range(8):
            T_.append('v_add_f32 v%d, v%d, v%d' % (D1 + r, D1 + r, D2 + 8 + r))
        for r in range(8):
            T_.append('v_mul_f32 v%d, v%d, v%d' % (D1 + r, D1 + r, LS))
        O = 160
        for r in range(4):
            T_.append('v_cvt_pk_bf16_f32 v%d, v%d, v%d' % (O + r, D1 + 2 * r, D1 + 2 * r + 1))
        out += [(t, None) for t in T_]
        out.append(('buffer_store_dwordx4 %s, v%d, %s, s%d offen%s' % (vr(O, 4), self.vL16, sr(S_WS, 4), sT2, self.sc), 'st'))
        k = int(ENV('MARKAT', '130'))
        out.insert(k, ('MARK', 4))
        out.insert(k + 1, ('MARK', 6))
        return out

    def attn_pass2(self):
        if self.MERGE:
            return self.attn_pass2_merge()
        a = self.a
        out = []
        D1, D2 = 216, 232
        CB = self.CB
        SB = lambda j: 160 + 16 * (j & 1)

        def qk(j, dst=None):
            dst = SB(j) if dst is None else dst
            def f():
                if j >= 1:
                    L = self.lab('cs')
                    a.raw('    s_cmp_lg_u32 s%d, %d' % (sQB, 8 - j))
                    a.raw('    s_cbranch_scc1 ' + L)
                    a.raw('    s_nop 7')
                    for r in range(16):
                        a.raw('    v_mov_b32 v%d, v%d' % (CB + r, self.aM))
                    a.raw('    s_nop 1')
                    a.raw(L + ':')
                a('v_mfma_f32_32x32x16_bf16 %s, %s, %s, %s' % (vr(dst, 16), vr(self.KR(j), 4), vr(self.AQ, 4), vr(CB, 16)))
            return f
        P = 84

        def pv(j, m):
            D = D2 if m else D1
            o = []
            if m == 0:
                o.append(lambda: a.wait_vm(('v', j)))
            o.append(('v_mfma_f32_32x32x16_bf16 %s, %s, %s, %s' % (vr(D, 16), vr(self.VR(j, m), 4), vr(P + 4 * m, 4), '0' if j == 0 else vr(D, 16)), None))
            if m == 1 and j == 2:
                o.append(self.h_flag_issue)
            if m == 1 and j in (4, 6):
                o.append(('MARK', j))
            return o
        P8 = (self.KR(0), self.KR(8))
        b0, b8 = SB(0), SB(1)
        out.append(qk(0))
        out.append(('v_mfma_f32_32x32x16_bf16 %s, %s, %s, 0' % (vr(b8, 16), vr(self.KR(8), 4), vr(self.AQ, 4)), None))
        out.append(('v_mov_b32 v%d, 0xffff' % self.vFFFF, None))
        for r in range(16):
            out.append(('v_add_f32 v%d, v%d, v%d' % (b8 + r, b8 + r, self.aM), None))
        out += [(t, None) for t in self.merge_ops(b8, b0, True)]
        SJ = lambda j: SB(j + 1)
        qk2 = lambda j: qk(j, SJ(j))
        out.append(qk2(1))
        for r in range(16):
            out.append(('v_exp_f32 v%d, v%d' % (b8 + r, b8 + r), None))
        for r in range(8):
            out.append(('v_cvt_pk_bf16_f32 v%d, v%d, v%d' % (P + r, b8 + 2 * r, b8 + 2 * r + 1), None))
        for r in range(8):
            out.append(('v_and_b32 v%d, v%d, v%d' % (P8[r >> 2] + (r & 3), P + r, self.MK[r]), None))
        for r in range(8):
            out.append(('v_xor_b32 v%d, v%d, v%d' % (P + r, P + r, P8[r >> 2] + (r & 3)), None))
        pv8 = [lambda: a.wait_vm(('v', 8))]
        for m in range(2):
            D = D2 if m else D1
            pv8.append(('v_mfma_f32_32x32x16_bf16 %s, %s, %s, %s' % (vr(D, 16), vr(self.VR(8, m), 4), vr(P8[m], 4), vr(D, 16)), None))
        for j in range(1, 8):
            b = SJ(j)
            for r in range(16):
                out.append(('v_exp_f32 v%d, v%d' % (b + r, b + r), None))
                if r == 1:
                    out += pv(j - 1, 0)
                if r == 5:
                    out += pv(j - 1, 1)
                if r == 9 and j < 7:
                    out.append(qk2(j + 1))
                if r == 13 and j == 1:
                    out += pv8[:2]
                if r == 13 and j == 2:
                    out += pv8[2:]
            for r in range(8):
                out.append(('v_cvt_pk_bf16_f32 v%d, v%d, v%d' % (P + r, b + 2 * r, b + 2 * r + 1), None))
        out += pv(7, 0) + pv(7, 1)
        T_ = []
        LS = D1 + 8
        T_.append('s_mul_i32 s%d, s%d, %d' % (sT2, sQB, NACT))
        T_.append('s_add_u32 s%d, s%d, s%d' % (sT2, sT2, sHEAD))
        T_.append('s_add_u32 s%d, s%d, 112' % (sT2, sT2))
        T_.append('s_lshl_b32 s%d, s%d, 10' % (sT2, sT2))
        T_.append('s_add_u32 s%d, s%d, 0x%x' % (sT2, sT2, WS_ACT))
        T_.append('v_add_f32 v%d, v%d, v%d' % (LS, LS, D2))
        T_.append('v_rcp_f32 v%d, v%d' % (LS, LS))
        for r in range(8):
            T_.append('v_add_f32 v%d, v%d, v%d' % (D1 + r, D1 + r, D2 + 8 + r))
        for r in range(8):
            T_.append('v_mul_f32 v%d, v%d, v%d' % (D1 + r, D1 + r, LS))
        O = 160
        for r in range(4):
            T_.append('v_cvt_pk_bf16_f32 v%d, v%d, v%d' % (O + r, D1 + 2 * r, D1 + 2 * r + 1))
        out += [(t, None) for t in T_]
        out.append(('buffer_store_dwordx4 %s, v%d, %s, s%d offen%s' % (vr(O, 4), self.vL16, sr(S_WS, 4), sT2, self.sc), 'st'))
        return out

    v3D = 252

    def p3_setup_dma(self):
        a = self.a
        ROW, P_, S_ = self.vFL, self.vFL + 1, 253
        a('s_and_b32 s%d, s%d, 3' % (sKQ, sW))
        a('s_lshr_b32 s%d, s%d, 2' % (sTH, sW))
        a('v_lshrrev_b32 v%d, 7, v%d' % (ROW, self.vL16))
        a('v_bfe_u32 v%d, v%d, 4, 3' % (P_, self.vL16))
        a('v_bfe_u32 v%d, v%d, 1, 1' % (S_, ROW))
        a('v_lshlrev_b32 v%d, 2, v%d' % (S_, S_))
        a('v_xor_b32 v%d, v%d, v%d' % (P_, P_, S_))
        a('v_lshlrev_b32 v%d, 4, v%d' % (P_, P_))
        a('v_lshrrev_b32 v%d, 2, v%d' % (S_, ROW))
        a('v_and_b32 v%d, 3, v%d' % (ROW, ROW))
        a('v_lshl_add_u32 v%d, v%d, 3, v%d' % (ROW, S_, ROW))
        a('v_lshl_add_u32 v%d, v%d, 10, v%d' % (self.v3D, ROW, P_))
        a('s_lshl_b32 s%d, s%d, 7' % (sT0, sNB))
        a('s_lshl_b32 s%d, s%d, 5' % (sT1, sTH))
        a('s_mul_i32 s%d, s%d, 448' % (sT2, sKQ))
        a('s_add_u32 s%d, s%d, s%d' % (sT2, sT2, sT1))
        a('s_lshl_b32 s%d, s%d, 10' % (sT2, sT2))
        a('s_add_u32 s%d, s%d, s%d' % (sWD, sT2, sT0))
        a('s_lshl_b32 s%d, s%d, 7' % (sT2, sKQ))
        a('s_add_u32 s%d, s%d, s%d' % (sT2, sT2, sT1))
        a('s_lshl_b32 s%d, s%d, 10' % (sT2, sT2))
        a('s_add_u32 s%d, s%d, s%d' % (sWOo, sT2, sT0))
        a('s_lshl_b32 s%d, s%d, 13' % (sT2, sKQ))
        a('s_lshl_b32 s%d, s%d, 12' % (sT1, sTH))
        a('s_add_u32 s%d, s%d, s%d' % (sWB3, sT2, sT1))

    def p3_stage_fn(self, st):
        def f(slot, gs):
            out = []
            for j in range(4):
                base, srd, s_ = (sWD, S_DOWN, st) if st < 7 else (sWOo, S_WO, st - 7)
                so = (64 * s_ + 16 * (j >> 1) + 4 * (j & 1)) * 1024
                out.append((['s_add_u32 s%d, s%d, 0x%x' % (sT0, base, so),
                             's_add_u32 m0, s%d, 0x%x' % (sWB3, slot * 32768 + 1024 * j),
                             'buffer_load_dwordx4 v%d, %s, s%d offen lds' % (self.v3D, sr(srd, 4), sT0)], ('dma', gs)))
            return out
        return f

    def act_touch(self, isO, vt, vd):
        a = self.a
        per_wg, per_w, base = (64, 8, 112 * 1024) if isO else (224, 28, 0)
        a('s_lshr_b32 s%d, s%d, 2' % (sT2, sNB))
        a('s_lshl_b32 s%d, s%d, 1' % (sT3, sTB))
        a('s_add_u32 s%d, s%d, s%d' % (sT2, sT2, sT3))
        a('s_mul_i32 s%d, s%d, %d' % (sT2, sT2, NACT * 1024))
        a('s_and_b32 s%d, s%d, 3' % (sT3, sNB))
        a('s_mul_i32 s%d, s%d, %d' % (sT3, sT3, per_wg * 128))
        a('s_add_u32 s%d, s%d, s%d' % (sT2, sT2, sT3))
        a('s_mul_i32 s%d, s%d, %d' % (sT3, sW, per_w * 128))
        a('s_add_u32 s%d, s%d, s%d' % (sT2, sT2, sT3))
        a('s_add_u32 s%d, s%d, 0x%x' % (sT2, sT2, WS_ACT + base))
        a('v_lshlrev_b32 v%d, 3, v%d' % (vt, self.vL16))
        a('s_mov_b64 exec, 0x%x' % ((1 << per_w) - 1))
        a('buffer_load_dword v%d, v%d, %s, s%d offen%s' % (vd, vt, sr(S_WS, 4), sT2, self.sc), tag='warm')
        a('s_mov_b64 exec, -1')

    def phase3(self, gs0, dma_issued):
        a = self.a
        ACC, AB, PB = 0, 32, 80
        NP, LA = 4, 3
        vL16 = self.vL16
        TRa, vO, XR = 96, 102, 104
        att = self.attn_pass2()
        ATR = int(ENV('ATR', '14'))
        self.stamp(0, self.vST)
        a('s_lshl_b32 s%d, s%d, 1' % (sT0, sTB))
        a('s_add_u32 s%d, s%d, s%d' % (sT0, sT0, sTH))
        a('s_mul_i32 s%d, s%d, %d' % (sT1, sT0, NACT))
        a('s_mul_i32 s%d, s%d, 28' % (sT2, sKQ))
        a('s_add_u32 s%d, s%d, s%d' % (sT2, sT2, sT1))
        a('s_lshl_b32 s%d, s%d, 10' % (sT2, sT2))
        a('s_add_u32 s%d, s%d, 0x%x' % (sACT, sT2, WS_ACT))
        a('s_lshl_b32 s%d, s%d, 3' % (sT2, sKQ))
        a('s_add_u32 s%d, s%d, s%d' % (sT2, sT2, sT1))
        a('s_add_u32 s%d, s%d, 112' % (sT2, sT2))
        a('s_lshl_b32 s%d, s%d, 10' % (sT2, sT2))
        a('s_add_u32 s%d, s%d, 0x%x' % (sACTO, sT2, WS_ACT))

        def act_loads(st):
            base, off = (sACT, st * 4096) if st < 7 else (sACTO, (st - 7) * 4096)
            out = [('s_add_u32 s%d, s%d, 0x%x' % (sT1, base, off), None)]
            for j in range(4):
                out.append(('buffer_load_dwordx4 %s, v%d, %s, s%d offen offset:%d%s' % (
                    vr(AB + 16 * (st % 3) + 4 * j, 4), vL16, sr(S_WS, 4), sT1, 1024 * j, self.sc), ('act', st, j)))
            return out

        NS = self.NS
        stages = {gs0 + st: self.p3_stage_fn(st)((gs0 + st) % NS, gs0 + st) for st in range(9)}

        def pop_att(cnt):
            for _ in range(cnt):
                if not att:
                    return
                e = att.pop(0)
                if callable(e):
                    e()
                elif e[0] == 'MARK':
                    if e[1] == 4:
                        self.flag_wait('hflag')
                    for tx, tg in act_loads(0 if e[1] == 4 else 1):
                        a(tx, tag=tg)
                else:
                    a(e[0], tag=e[1])

        A_, B_, C_ = 80, 81, 82
        a('v_lshrrev_b32 v%d, 9, v%d' % (A_, vL16))
        a('v_bfe_u32 v%d, v%d, 6, 2' % (B_, vL16))
        a('v_lshl_add_u32 v%d, v%d, 3, v%d' % (B_, A_, B_))
        a('v_lshlrev_b32 v%d, 7, v%d' % (B_, B_))
        a('v_bfe_u32 v%d, v%d, 8, 1' % (C_, vL16))
        a('v_lshl_add_u32 v%d, v%d, 5, v%d' % (B_, C_, B_))
        a('v_bfe_u32 v%d, v%d, 4, 2' % (C_, vL16))
        a('v_lshl_add_u32 v%d, v%d, 3, v%d' % (B_, C_, B_))
        a('s_lshl_b32 s%d, s%d, 13' % (sT0, sKQ))
        a('v_add_u32 v%d, s%d, v%d' % (B_, sT0, B_))
        a('v_bfe_u32 v%d, v%d, 7, 1' % (C_, vL16))
        a('v_lshl_add_u32 v%d, v%d, 6, v%d' % (TRa, C_, B_))
        a('v_xor_b32 v%d, 1, v%d' % (C_, C_))
        a('v_lshl_add_u32 v%d, v%d, 6, v%d' % (TRa + 1, C_, B_))
        a('v_add_u32 v%d, 0x10000, v%d' % (TRa + 2, TRa))
        a('v_add_u32 v%d, 0x10000, v%d' % (TRa + 3, TRa + 1))
        a('v_add_u32 v%d, 0x20000, v%d' % (TRa + 4, TRa))
        a('v_add_u32 v%d, 0x20000, v%d' % (TRa + 5, TRa + 1))
        a('s_lshl_b32 s%d, s%d, 1' % (sT0, sTB))
        a('s_add_u32 s%d, s%d, s%d' % (sT0, sT0, sTH))
        a('s_lshl_b32 s%d, s%d, 5' % (sT0, sT0))
        a('v_bfe_u32 v%d, v%d, 4, 5' % (B_, vL16))
        a('v_add_u32 v%d, s%d, v%d' % (B_, sT0, B_))
        a('v_lshlrev_b32 v%d, 10, v%d' % (B_, B_))
        a('v_lshl_add_u32 v%d, v%d, 4, v%d' % (B_, A_, B_))
        a('s_lshl_b32 s%d, s%d, 7' % (sT0, sNB))
        a('s_lshl_b32 s%d, s%d, 5' % (sT1, sKQ))
        a('s_add_u32 s%d, s%d, s%d' % (sT0, sT0, sT1))
        a('v_add_u32 v%d, s%d, v%d' % (vO, sT0, B_))

        items = [(st, j, ft) for st in range(9) for j in range(4) for ft in range(2)]
        n = len(items)
        bg = []

        def issue_reads(k):
            st, j, ft = items[k]
            slot = (gs0 + st) % NS
            off = (slot & 1) * 32768 + j * 2048
            addr = TRa + ft + 2 * (slot >> 1)
            dst = PB + 4 * (k % NP)
            a('ds_read_b64_tr_b16 %s, v%d offset:%d' % (vr(dst, 2), addr, off), tag=('f', k))
            a('ds_read_b64_tr_b16 %s, v%d offset:%d' % (vr(dst + 2, 2), addr, off + 512), tag=('f', k))

        def pop_bg(cnt):
            for _ in range(cnt):
                if not bg:
                    return
                tt = bg.pop(0)
                if isinstance(tt[0], list):
                    self.emit_group(tt)
                else:
                    a(tt[0], tag=tt[1])

        pop_att(int(ENV('ATPRE', '160' if self.MERGE else '9999')))
        if self.STAMP2:
            self.stamp(28, self.vST)
        pop_att(int(ENV('ATPRE2', '30')))
        a.wait_vm(('dma', gs0 + 1))
        a('s_barrier')
        for tx, tg in act_loads(2):
            a(tx, tag=tg)
        for st in range(dma_issued, NS):
            for grp in stages[gs0 + st]:
                self.emit_group(grp)
        self.stamp(1, self.vST)
        issued, cur = 0, 0
        opub = None
        for k in range(n):
            st, j, ft = items[k]
            if st != cur:
                cur = st
                if st + 1 < 9:
                    a.wait_vm(('dma', gs0 + st + 1))
                if opub is None and not att:
                    a.wait_vm('st')
                if self.STAMP2:
                    self.stamp(8 + 2 * st, self.vST)
                a('s_barrier')
                if self.STAMP2:
                    self.stamp(9 + 2 * st, self.vST)
                if opub is None and not att:
                    opub = st
                    self.publish(2, self.vPUB)
                    self.stamp(5, self.vST)
                dm = list(stages[gs0 + st + NS - 1]) if st + NS - 1 < 9 else []
                if st == 7:
                    self.epoch_chk_issue()
                if st == 5:
                    assert opub is not None
                    self.flag_issue(2, sTB, 0, 'oflag', shr=1)
                if st == 6:
                    self.flag_wait('oflag')
                    self.stamp(6, self.vST)
                al = []
                if st + 2 < 7:
                    al = act_loads(st + 2)
                elif st == 6:
                    al = act_loads(7) + act_loads(8)[0:]
                if st == 6:
                    bg.extend(al)
                else:
                    bg.extend(al[:1])
                    al = al[1:]
                    for q in range(4):
                        bg.extend(al[q:q + 1])
                        bg.extend(dm[q:q + 1])
                if st == 6:
                    bg.append(('buffer_load_dwordx4 %s, v%d, %s, 0 offen' % (vr(XR, 4), vO, sr(S_X, 4)), 'xr'))
            while issued < n and issued <= k + LA:
                issue_reads(issued)
                issued += 1
            a.wait_vm(('act', st, j))
            a.wait_lg(('f', k))
            acc = ACC + 16 * ft
            c = '0' if (st == 0 and j == 0) else vr(acc, 16)
            a('v_mfma_f32_32x32x16_bf16 %s, %s, %s, %s' % (vr(acc, 16), vr(PB + 4 * (k % NP), 4),
                                                         vr(AB + 16 * (st % 3) + 4 * j, 4), c))
            pop_att(ATR)
            while bg:
                isvm = isinstance(bg[0][0], list) or bg[0][1] is not None
                pop_bg(1)
                if isvm:
                    break
        pop_bg(10 ** 6)
        self.stamp(2, self.vST)
        last = (gs0 + 8) % NS
        rb = 0 if last >= 2 else 65536
        vW = A_
        a('s_mul_i32 s%d, s%d, 24576' % (sT0, sTH))
        a('s_add_u32 s%d, s%d, %d' % (sT0, sT0, rb))
        a('v_add_u32 v%d, s%d, v%d' % (vW, sT0, vL16))
        LBL = [self.lab('red%d' % q) for q in range(4)]
        LE = self.lab('rede')
        for q in range(1, 4):
            a('s_cmp_eq_u32 s%d, %d' % (sKQ, q))
            a.branch('s_cbranch_scc1 ' + LBL[q])
        RES = 64
        assert not att
        for q in range(4):
            if q:
                a.label(LBL[q])
            for o in range(4):
                if o == q:
                    continue
                off = o * 6144 + ((q - o - 1) & 3) * 2048
                a('ds_write_b128 v%d, %s offset:%d' % (vW, vr(ACC + 8 * o, 4), off))
                a('ds_write_b128 v%d, %s offset:%d' % (vW, vr(ACC + 8 * o + 4, 4), off + 1024))
            for e in range(8):
                a('v_mov_b32 v%d, v%d' % (RES + e, ACC + 8 * q + e))
            if q < 3:
                a.branch('s_branch ' + LE)
        a.label(LE)
        a('s_mul_i32 s%d, s%d, 6144' % (sT0, sKQ))
        a('v_add_u32 v%d, s%d, v%d' % (vW, sT0, vW))
        a.wait_lg0()
        a('s_barrier')
        RB = 32
        for sl in range(3):
            a('ds_read_b128 %s, v%d offset:%d' % (vr(RB + 8 * sl, 4), vW, sl * 2048), tag=('r', sl))
            a('ds_read_b128 %s, v%d offset:%d' % (vr(RB + 8 * sl + 4, 4), vW, sl * 2048 + 1024), tag=('r', sl))
        for sl in range(3):
            a.wait_lg(('r', sl))
            for e in range(8):
                a('v_add_f32 v%d, v%d, v%d' % (RES + e, RES + e, RB + 8 * sl + e))
        for e in range(4):
            a('v_permlane32_swap_b32 v%d, v%d' % (RES + e, RES + 4 + e))
        a.wait_vm('xr')
        for e in range(4):
            a('v_lshlrev_b32 v%d, 16, v%d' % (RB + 2 * e, XR + e))
            a('v_and_b32 v%d, s%d, v%d' % (RB + 2 * e + 1, sMASKHI, XR + e))
        for e in range(8):
            a('v_add_f32 v%d, v%d, v%d' % (RES + e, RES + e, RB + e))
        for e in range(4):
            a('v_cvt_pk_bf16_f32 v%d, v%d, v%d' % (RB + 8 + e, RES + 2 * e, RES + 2 * e + 1))
        a('buffer_store_dwordx4 %s, v%d, %s, 0 offen' % (vr(RB + 8, 4), vO, sr(S_OUT, 4)), tag='st')
        self.epoch_clear()
        self.stamp(3, self.vST)
        if self.STAMPS:
            a.wait_vm0()
            self.stamp(4, self.vST)


HEADER = open('cdna_kernels/%s.s.ref' % NAME).read().split('; Override launch geometry')[0]

KD = '''.section .rodata,"a"
.p2align 6
.amdhsa_kernel %s
  .amdhsa_next_free_vgpr 256
  .amdhsa_next_free_sgpr 102
  .amdhsa_accum_offset 256
  .amdhsa_group_segment_fixed_size 0
  .amdhsa_kernarg_size 80
  .amdhsa_user_sgpr_count 2
  .amdhsa_user_sgpr_kernarg_segment_ptr 1
  .amdhsa_system_sgpr_workgroup_id_x 1
.end_amdhsa_kernel
'''


def build():
    g = Gen()
    g.prologue()
    g.phase1([g.p3_stage_fn(st) for st in range(g.NS - 1)])
    g.KIDX = 1
    g.attn_pass1()
    g.KIDX = 2
    g.phase3(10, g.NS - 1)
    g.a.label('L_end')
    g.a('s_endpgm')
    g.a.raw('L_kend:')
    out = HEADER
    out += '; @launch grid=(256,1,1) block=(512,1,1) lds=163840\n'
    out += '.amdgcn_target "amdgcn-amd-amdhsa--gfx950"\n'
    out += '.text\n.globl %s\n.p2align 8\n.type %s,@function\n%s:\n' % (KNAME, KNAME, KNAME)
    out += g.a.text() + KD % KNAME
    return out


if __name__ == '__main__':
    dst = sys.argv[1] if len(sys.argv) > 1 else 'cdna_kernels/%s.s' % NAME
    txt = build()
    open(dst, 'w').write(txt)
    print('wrote', dst, len(txt), 'bytes')
```

```python
import math
import os
import struct
import sys
from asmlib import Asm, vr, sr

NAME = 'parallel_sum__sliding_block__glu_gated_geglu__prompt'
KNAME = NAME + '_kernel'
ENV = os.environ.get

T, D, F, H = 2048, 512, 1792, 32
WS_QKV = 0
WS_ACT = 6 << 20
WS_FLAG = 16 << 20
WS_FLAGH = WS_FLAG + 8192
WS_BYTES = WS_FLAGH + 8192
NACT = 144

S_X, S_WQKV, S_GATE, S_UP, S_DOWN, S_WO, S_OUT, S_WS, S_DBG = 4, 8, 12, 16, 20, 24, 28, 32, 36
sW, sMB, sQUAD, sI, sR, sC, sWB = 40, 41, 42, 43, 44, 45, 46
sCOL = 47
sST = 51
sCNT = 55
sT0, sT1, sT2, sT3 = 56, 57, 58, 59
sONES, sMASKHI, sK0, sK1, sQS = 60, 61, 62, 63, 64
sTB, sNB, sKQ, sTH = 65, 66, 67, 68
sACT, sACTO, sWD, sWOo, sWB3 = 69, 70, 71, 72, 73
sQB, sHEAD = 74, 75
sM = 76
sEPOCH, sCG4 = 94, 95
SCALE = 0.25 * math.log2(math.e)


def f32(x):
    return '0x%08x' % struct.unpack('<I', struct.pack('<f', x))[0]


class Gen:
    STAMPS = bool(ENV('STAMPS'))
    STAMP2 = bool(ENV('STAMP2'))

    def __init__(self):
        self.a = Asm()
        self.sc = ' sc1'
        self.uid = 0
        self.KIDX = 0

    def lab(self, s):
        self.uid += 1
        return 'L_%s_%d' % (s, self.uid)

    def stamp(self, i, vtmp):
        if not self.STAMPS:
            return
        a = self.a
        a('s_memrealtime s[98:99]')
        a('s_memtime s[96:97]')
        a('s_lshl_b32 s100, s2, 3')
        a('s_add_u32 s100, s100, s%d' % sW)
        a('s_lshl_b32 s100, s100, 8')
        a('s_add_u32 s100, s100, 0x%x' % ((32 << 20) + self.KIDX * (1 << 20)))
        a.wait_lg0()
        a('v_mov_b32 v%d, s98' % vtmp)
        a('buffer_store_dword v%d, off, %s, s100 offset:%d' % (vtmp, sr(S_WS, 4), 4 * i), tag='stamp')
        a('s_nop 1')
        a('v_mov_b32 v%d, s96' % vtmp)
        a('buffer_store_dword v%d, off, %s, s100 offset:%d' % (vtmp, sr(S_WS, 4), 128 + 4 * i), tag='stamp')

    def prio_young(self, p):
        L = self.lab('pr')
        self.a.raw('    s_cmp_lt_u32 s%d, 4' % sW)
        self.a.raw('    s_cbranch_scc1 ' + L)
        self.a.raw('    s_setprio %d' % p)
        self.a.raw(L + ':')

    def lane(self, v):
        self.a('v_mbcnt_lo_u32_b32 v%d, -1, 0' % v)
        self.a('v_mbcnt_hi_u32_b32 v%d, -1, v%d' % (v, v))

    XB = 0
    ACC = (128, 160)
    POOL = 192
    NP = 8
    LA = int(ENV('LA', '6'))
    TMP = 224
    vTR = 243
    vL16 = 250
    vSV = 251
    vDQ, vDG = 252, 253
    vFL = 254
    vK0 = 246
    vEP = 247
    XLDS = 32768
    MAP = int(ENV('MAP', '8'))
    NS = int(ENV('NS', '5'))

    def srd(self, srd, p, n):
        a = self.a
        a('s_mov_b32 s%d, s%d' % (srd, p))
        a('s_and_b32 s%d, s%d, 0xffff' % (srd + 1, p + 1))
        a('s_mov_b32 s%d, 0x%x' % (srd + 2, n))
        a('s_mov_b32 s%d, 0x00020000' % (srd + 3))

    def prologue(self):
        a = self.a
        t = self.TMP
        L = self.vL16 + 1
        a('s_cmp_ge_u32 s2, 256')
        a.branch('s_cbranch_scc1 L_end')
        if self.STAMPS:
            a('s_memrealtime s[%d:%d]' % (sK0, sK0 + 1))
        a('s_load_dwordx16 s[76:91], s[0:1], 0')
        a('s_load_dwordx4 s[92:95], s[0:1], 64')
        a('s_getpc_b64 s[%d:%d]' % (sT2, sT3))
        a.raw('L_pc:')
        a('s_sub_u32 s%d, s%d, L_pc-%s' % (sT2, sT2, KNAME))
        a('s_subb_u32 s%d, s%d, 0' % (sT3, sT3))
        a('v_lshlrev_b32 v1, 7, v0')
        a('v_min_u32 v1, L_kend-%s-4, v1' % KNAME)
        if ENV('CODEPF', '1') == '1':
            a('global_load_dword v%d, v1, s[%d:%d]' % (self.ACC[0] + 31, sT2, sT3), tag='warm')
        a('v_lshrrev_b32 v1, 6, v0')
        a('v_and_b32 v%d, 63, v0' % L)
        a('v_readfirstlane_b32 s%d, v1' % sW)
        a('s_and_b32 s%d, s2, 7' % sT0)
        a('s_lshr_b32 s%d, s2, 3' % sT1)
        if self.MAP == 8:
            a('s_and_b32 s%d, s%d, 1' % (sT2, sT0))
            a('s_lshl_b32 s%d, s%d, 3' % (sT2, sT2))
            a('s_and_b32 s%d, s%d, 7' % (sT3, sT1))
            a('s_add_u32 s%d, s%d, s%d' % (sMB, sT2, sT3))
            a('s_lshr_b32 s%d, s%d, 1' % (sQUAD, sT0))
            a('s_lshr_b32 s%d, s%d, 3' % (sI, sT1))
        else:
            a('s_and_b32 s%d, s%d, 3' % (sT2, sT0))
            a('s_lshl_b32 s%d, s%d, 2' % (sT2, sT2))
            a('s_and_b32 s%d, s%d, 3' % (sT3, sT1))
            a('s_add_u32 s%d, s%d, s%d' % (sMB, sT2, sT3))
            a('s_lshr_b32 s%d, s%d, 2' % (sT2, sT0))
            a('s_lshl_b32 s%d, s%d, 1' % (sT2, sT2))
            a('s_lshr_b32 s%d, s%d, 4' % (sT3, sT1))
            a('s_add_u32 s%d, s%d, s%d' % (sQUAD, sT2, sT3))
            a('s_bfe_u32 s%d, s%d, 0x20002' % (sI, sT1))
        a('s_lshl_b32 s%d, s%d, 2' % (sT2, sT0))
        a('s_and_b32 s%d, s%d, 3' % (sT3, sT1))
        a('s_add_u32 s%d, s%d, s%d' % (sTB, sT2, sT3))
        a('s_lshr_b32 s%d, s%d, 2' % (sNB, sT1))
        a('v_lshlrev_b32 v%d, 4, v%d' % (self.vL16, L))
        a('s_lshl_b32 s%d, s%d, 7' % (sT0, sMB))
        a('s_lshl_b32 s%d, s%d, 4' % (sT1, sW))
        a('s_add_u32 s%d, s%d, s%d' % (sT0, sT0, sT1))
        a('s_lshl_b32 s%d, s%d, 10' % (sT0, sT0))
        a('s_lshl_b32 s%d, s%d, 14' % (sT1, sW))
        a('s_waitcnt lgkmcnt(0)')
        self.srd(S_X, 76, T * D * 2)
        for n in range(16):
            a('v_xor_b32 v%d, %d, v%d' % (t + (n & 1), 16 * n, self.vL16))
            a('s_add_u32 s%d, s%d, %d' % (sT2, sT0, 1024 * n))
            a('s_add_u32 m0, s%d, %d' % (sT1, self.XLDS + 1024 * n))
            a('buffer_load_dwordx4 v%d, %s, s%d offen lds' % (t + (n & 1), sr(S_X, 4), sT2), tag=('xdma', n))
        for srd, p, n in ((S_WQKV, 78, D * 3 * D * 2), (S_WO, 80, D * D * 2), (S_GATE, 84, D * F * 2),
                          (S_UP, 86, D * F * 2), (S_DOWN, 88, F * D * 2), (S_OUT, 90, T * D * 2),
                          (S_DBG, 92, 256), (S_WS, 94, (64 << 20) if self.STAMPS else WS_BYTES)):
            self.srd(srd, p, n)
        self.stamp(0, t + 8)
        if self.STAMPS:
            a('v_mov_b32 v%d, s%d' % (t + 8, sK0))
            a('buffer_store_dword v%d, off, %s, s100 offset:%d' % (t + 8, sr(S_WS, 4), 4 * 31), tag='stamp')
        a('s_and_b32 s%d, s%d, 3' % (sR, sW))
        a('s_lshr_b32 s%d, s%d, 2' % (sC, sW))
        a('s_lshl_b32 s%d, s%d, 10' % (sWB, sW))
        a('s_mov_b32 s%d, 0x3f803f80' % sONES)
        a('s_mov_b32 s%d, 0xffff0000' % sMASKHI)
        a('s_lshl_b32 s%d, s%d, 2' % (sCG4, sQUAD))
        a('s_add_u32 s%d, s%d, s%d' % (sCG4, sCG4, sI))
        a('s_lshl_b32 s%d, s%d, 2' % (sCG4, sCG4))
        self.epoch_publish(self.vEP)
        I, G, A_, B_, C_ = t + 2, t + 3, t + 4, t + 5, t + 6
        a('v_and_b32 v%d, 15, v%d' % (I, L))
        a('v_lshrrev_b32 v%d, 4, v%d' % (G, L))
        LA_ = self.ACC[1]
        a('s_add_u32 s%d, s%d, %d' % (sT0, sT1, self.XLDS))
        a('v_lshlrev_b32 v%d, 10, v%d' % (A_, I))
        a('v_add_u32 v%d, s%d, v%d' % (A_, sT0, A_))
        a('v_and_b32 v%d, 3, v%d' % (B_, I))
        a('v_xor_b32 v%d, v%d, v%d' % (B_, B_, G))
        a('v_lshl_add_u32 v%d, v%d, 4, v%d' % (A_, B_, A_))
        a('v_lshrrev_b32 v%d, 2, v%d' % (B_, I))
        for q in range(4):
            a('v_xor_b32 v%d, %d, v%d' % (C_, q, B_))
            a('v_lshl_add_u32 v%d, v%d, 6, v%d' % (LA_ + q, C_, A_))
        a('s_lshl_b32 s%d, s%d, 15' % (sT0, sR))
        a('s_add_u32 s%d, s%d, %d' % (sT0, sT0, self.XLDS))
        a('v_and_b32 v%d, 31, v%d' % (A_, L))
        a('v_lshlrev_b32 v%d, 10, v%d' % (A_, A_))
        a('v_add_u32 v%d, s%d, v%d' % (A_, sT0, A_))
        a('v_lshrrev_b32 v%d, 5, v%d' % (B_, L))
        a('v_xor_b32 v%d, v%d, v%d' % (C_, B_, I))
        a('v_lshl_add_u32 v%d, v%d, 4, v%d' % (LA_ + 4, C_, A_))
        a('v_lshrrev_b32 v%d, 2, v%d' % (A_, I))
        a('v_lshl_add_u32 v%d, v%d, 3, v%d' % (A_, B_, A_))
        a('v_lshlrev_b32 v%d, 7, v%d' % (A_, A_))
        a('v_and_b32 v%d, 1, v%d' % (C_, G))
        a('v_lshl_add_u32 v%d, v%d, 5, v%d' % (A_, C_, A_))
        a('v_lshlrev_b32 v%d, 16, v%d' % (t + 7, C_))
        a('v_lshl_add_u32 v%d, v%d, 9, v%d' % (t + 7, B_, t + 7))
        a('v_lshl_add_u32 v%d, v%d, 4, v%d' % (t + 7, I, t + 7))
        a('v_and_b32 v%d, 3, v%d' % (C_, I))
        a('v_lshl_add_u32 v%d, v%d, 3, v%d' % (A_, C_, A_))
        a('v_bfe_u32 v%d, v%d, 3, 1' % (C_, I))
        a('v_xor_b32 v%d, s%d, v%d' % (C_, sC, C_))
        a('v_lshl_add_u32 v%d, v%d, 6, v%d' % (self.vTR, C_, A_))
        a('v_add_u32 v%d, 0x10000, v%d' % (self.vTR + 1, self.vTR))
        a('v_add_u32 v%d, 0x20000, v%d' % (self.vTR + 2, self.vTR))
        a('v_lshrrev_b32 v%d, 3, v%d' % (A_, L))
        a('v_and_b32 v%d, 7, v%d' % (B_, L))
        a('v_bfe_u32 v%d, v%d, 1, 1' % (C_, A_))
        a('v_lshlrev_b32 v%d, 2, v%d' % (C_, C_))
        a('v_xor_b32 v%d, v%d, v%d' % (B_, B_, C_))
        a('v_lshlrev_b32 v%d, 4, v%d' % (B_, B_))
        a('s_lshl_b32 s%d, s%d, 3' % (sT0, sW))
        a('v_add_u32 v%d, s%d, v%d' % (A_, sT0, A_))
        a('s_movk_i32 s%d, 3072' % sT0)
        a('s_movk_i32 s%d, 3584' % sT1)
        a('v_mad_u32_u24 v%d, v%d, s%d, v%d' % (self.vDQ, A_, sT0, B_))
        a('v_mad_u32_u24 v%d, v%d, s%d, v%d' % (self.vDG, A_, sT1, B_))
        a('v_mov_b32 v%d, v%d' % (t + 9, L))
        a('v_mov_b32 v%d, v%d' % (self.vSV, t + 7))

    def epoch_publish(self, vt):
        a = self.a
        L = self.lab('noep')
        a('s_or_b32 s%d, s2, s%d' % (sT0, sW))
        a('s_cmp_lg_u32 s%d, 0' % sT0)
        a.branch('s_cbranch_scc1 ' + L)
        a('s_memrealtime s[%d:%d]' % (sT2, sT3))
        a('s_waitcnt lgkmcnt(0)')
        a('s_or_b32 s%d, s%d, 1' % (sT2, sT2))
        a('v_mov_b32 v%d, s%d' % (vt, sT2))
        n = len(a.vm)
        a('buffer_store_dword v%d, off, %s, 0 sc0 sc1' % (vt, sr(S_DBG, 4)))
        del a.vm[n:]
        a.label(L)

    def epoch_issue(self, vt):
        self.a('buffer_load_dword v%d, off, %s, 0 sc0 sc1' % (vt, sr(S_DBG, 4)), tag='epoch')

    def epoch_get(self, vt):
        a = self.a
        Lr, Ld = self.lab('epr'), self.lab('epd')
        a.wait_vm('epoch')
        a('s_mov_b32 s%d, 0' % sCNT)
        a.label(Lr)
        a('v_readfirstlane_b32 s%d, v%d' % (sEPOCH, vt))
        a('s_cmp_lg_u32 s%d, 0' % sEPOCH)
        a.branch('s_cbranch_scc1 ' + Ld)
        a('s_sleep 4')
        n = len(a.vm)
        a('buffer_load_dword v%d, off, %s, 0 sc0 sc1' % (vt, sr(S_DBG, 4)))
        del a.vm[n:]
        a('s_waitcnt vmcnt(0)')
        a('s_add_u32 s%d, s%d, 1' % (sCNT, sCNT))
        a('s_cmp_lt_u32 s%d, 0x100000' % sCNT)
        a.branch('s_cbranch_scc1 ' + Lr)
        a.label(Ld)

    vEC = 148

    def epoch_chk_issue(self):
        a = self.a
        L = self.lab('noec')
        a('s_or_b32 s%d, s2, s%d' % (sT2, sW))
        a('s_cmp_lg_u32 s%d, 0' % sT2)
        a.branch('s_cbranch_scc1 ' + L)
        self._ec_loads()
        a.label(L)

    def _ec_loads(self):
        a = self.a
        v = self.vEC
        a('v_lshrrev_b32 v%d, 8, v%d' % (v, self.vL16))
        a('v_lshlrev_b32 v%d, 7, v%d' % (v, v))
        a('v_bfe_u32 v%d, v%d, 4, 4' % (v + 1, self.vL16))
        a('v_lshl_add_u32 v%d, v%d, 2, v%d' % (v, v + 1, v))
        a('v_add_u32 v%d, 0x%x, v%d' % (v, WS_FLAG + 4096, v))
        n = len(a.vm)
        for q in range(4):
            a('buffer_load_dword v%d, v%d, %s, 0 offen offset:%d sc0 sc1' % (v + 1 + q, v, sr(S_WS, 4), 512 * q))
        del a.vm[n:]

    def epoch_clear(self):
        a = self.a
        v = self.vEC
        L, Lr, Lc = self.lab('noclr'), self.lab('ecr'), self.lab('ecc')
        a('s_or_b32 s%d, s2, s%d' % (sT2, sW))
        a('s_cmp_lg_u32 s%d, 0' % sT2)
        a.branch('s_cbranch_scc1 ' + L)
        a('s_mov_b32 s%d, 0' % sCNT)
        a.label(Lr)
        for q in range(4):
            a('v_xor_b32 v%d, s%d, v%d' % (v + 1 + q, sEPOCH, v + 1 + q))
        a('v_or_b32 v%d, v%d, v%d' % (v + 1, v + 1, v + 2))
        a('v_or_b32 v%d, v%d, v%d' % (v + 3, v + 3, v + 4))
        a('v_or_b32 v%d, v%d, v%d' % (v + 1, v + 1, v + 3))
        a('v_cmp_ne_u32 vcc, 0, v%d' % (v + 1))
        a.branch('s_cbranch_vccz ' + Lc)
        a('s_sleep 4')
        self._ec_loads()
        a('s_waitcnt vmcnt(0)')
        a('s_add_u32 s%d, s%d, 1' % (sCNT, sCNT))
        a('s_cmp_lt_u32 s%d, 0x100000' % sCNT)
        a.branch('s_cbranch_scc1 ' + Lr)
        a.label(Lc)
        a('v_mov_b32 v%d, 0' % v)
        n = len(a.vm)
        a('buffer_store_dword v%d, off, %s, 0 sc0 sc1' % (v, sr(S_DBG, 4)))
        del a.vm[n:]
        a.label(L)

    def publish(self, kind, vt):
        a = self.a
        L = self.lab('nopub')
        a('s_cmp_lg_u32 s%d, 0' % sW)
        a.branch('s_cbranch_scc1 ' + L)
        a('s_lshl_b32 s%d, s%d, 7' % (sT2, sMB))
        a('s_add_u32 s%d, s%d, s%d' % (sT2, sT2, sCG4))
        a('s_add_u32 s%d, s%d, 0x%x' % (sT2, sT2, WS_FLAG + kind * 2048))
        a('v_mov_b32 v%d, s%d' % (vt, sEPOCH))
        a('s_mov_b64 exec, 1')
        n = len(a.vm)
        a('buffer_store_dword v%d, off, %s, s%d sc0 sc1' % (vt, sr(S_WS, 4), sT2))
        del a.vm[n:]
        a('s_mov_b64 exec, -1')
        a.label(L)

    def flag_issue(self, kind, smb, nback, tag, shr=0):
        a = self.a
        va = self.vFL
        if shr:
            a('s_lshr_b32 s%d, s%d, %d' % (sT3, smb, shr))
            smb = sT3
        a('v_lshrrev_b32 v%d, 8, v%d' % (va + 1, self.vL16))
        a('v_min_u32 v%d, %d, v%d' % (va + 1, nback, va + 1))
        a('v_sub_u32 v%d, s%d, v%d' % (va + 1, smb, va + 1))
        a('v_max_i32 v%d, 0, v%d' % (va + 1, va + 1))
        a('v_bfe_u32 v%d, v%d, 4, 4' % (va, self.vL16))
        a('v_lshlrev_b32 v%d, 2, v%d' % (va, va))
        a('v_lshl_add_u32 v%d, v%d, 7, v%d' % (va, va + 1, va))
        a('v_add_u32 v%d, 0x%x, v%d' % (va, WS_FLAG + kind * 2048, va))
        a('buffer_load_dword v%d, v%d, %s, 0 offen sc0 sc1' % (va + 1, va, sr(S_WS, 4)), tag=tag)

    def flag_wait(self, tag):
        a = self.a
        va = self.vFL
        Lr, Ld = self.lab('flr'), self.lab('fld')
        a.wait_vm(tag)
        a('s_mov_b32 s%d, 0' % sCNT)
        a.label(Lr)
        a('v_cmp_ne_u32 vcc, s%d, v%d' % (sEPOCH, va + 1))
        a.branch('s_cbranch_vccz ' + Ld)
        a('s_sleep 1')
        n = len(a.vm)
        a('buffer_load_dword v%d, v%d, %s, 0 offen sc0 sc1' % (va + 1, va, sr(S_WS, 4)))
        del a.vm[n:]
        a('s_waitcnt vmcnt(0)')
        a('s_add_u32 s%d, s%d, 1' % (sCNT, sCNT))
        a('s_cmp_lt_u32 s%d, 0x100000' % sCNT)
        a.branch('s_cbranch_scc1 ' + Lr)
        a.label(Ld)

    def p1_scalar_setup(self, typ):
        a = self.a
        a('s_lshl_b32 s%d, s%d, 2' % (sT3, sMB))
        a('s_add_u32 s%d, s%d, s%d' % (sT3, sT3, sR))
        a('s_mul_i32 s%d, s%d, %d' % (sT2, sT3, NACT))
        a('s_lshl_b32 s%d, s%d, 1' % (sT1, sC))
        a('s_add_u32 s%d, s%d, s%d' % (sT2, sT2, sT1))
        a('s_mul_i32 s%d, s%d, 7' % (sT0, sQUAD))
        if typ == 'A':
            a('s_lshl_b32 s%d, s%d, 10' % (sCOL, sI))
            a('s_lshl_b32 s%d, s%d, 7' % (sM, sQUAD))
            a('s_add_u32 s%d, s%d, s%d' % (sCOL, sCOL, sM))
            a('s_add_u32 s%d, s%d, 512' % (sCOL, sCOL))
            a('s_lshl_b32 s%d, s%d, 5' % (sST, sI))
            a('s_lshl_b32 s%d, s%d, 2' % (sM, sQUAD))
            a('s_add_u32 s%d, s%d, s%d' % (sST, sST, sM))
            a('s_add_u32 s%d, s%d, 16' % (sST, sST))
            a('s_add_u32 s%d, s%d, s%d' % (sST, sST, sT1))
            a('s_lshl_b32 s%d, s%d, 6' % (sST, sST))
            a('s_add_u32 s%d, s%d, s%d' % (sST, sST, sT3))
            a('s_lshl_b32 s%d, s%d, 10' % (sST, sST))
            a('s_lshl_b32 s%d, s%d, 1' % (sM, sI))
            a('s_add_u32 s%d, s%d, s%d' % (sT0, sT0, sM))
            for k in range(2):
                a('s_add_u32 s%d, s%d, %d' % (sM, sT0, k))
                a('s_lshl_b32 s%d, s%d, 7' % (sCOL + 1 + k, sM))
                a('s_lshl_b32 s%d, s%d, 2' % (sM, sM))
                a('s_add_u32 s%d, s%d, s%d' % (sM, sM, sT2))
                a('s_lshl_b32 s%d, s%d, 10' % (sM, sM))
                a('s_add_u32 s%d, s%d, 0x%x' % (sST + 1 + k, sM, WS_ACT))
            a('s_cmp_eq_u32 s%d, 0' % sI)
            a('s_cselect_b32 s%d, %s, 1.0' % (sQS, f32(SCALE)))
        else:
            for ty in range(3):
                a('s_lshl_b32 s%d, s%d, 7' % (sM, sQUAD))
                a('s_add_u32 s%d, s%d, %d' % (sCOL + ty, sM, 1024 * ty))
                a('s_lshl_b32 s%d, s%d, 2' % (sM, sQUAD))
                a('s_add_u32 s%d, s%d, %d' % (sM, sM, 32 * ty))
                a('s_add_u32 s%d, s%d, s%d' % (sM, sM, sT1))
                a('s_lshl_b32 s%d, s%d, 6' % (sM, sM))
                a('s_add_u32 s%d, s%d, s%d' % (sM, sM, sT3))
                a('s_lshl_b32 s%d, s%d, 10' % (sST + ty, sM))
            a('s_add_u32 s%d, s%d, 6' % (sM, sT0))
            a('s_lshl_b32 s%d, s%d, 7' % (sCOL + 3, sM))
            a('s_lshl_b32 s%d, s%d, 2' % (sM, sM))
            a('s_add_u32 s%d, s%d, s%d' % (sM, sM, sT2))
            a('s_lshl_b32 s%d, s%d, 10' % (sM, sM))
            a('s_add_u32 s%d, s%d, 0x%x' % (sST + 3, sM, WS_ACT))
            a('s_mov_b32 s%d, %s' % (sQS, f32(SCALE)))

    def warm_p1(self, typ):
        a = self.a
        t = self.TMP
        L = t + 9
        D0 = self.ACC[0] + 28
        R, U = t + 12, t + 13
        t = t + 8
        nrep = 8 // self.MAP
        a('s_bfe_u32 s%d, s2, 0x%x' % (sT0, 0x30003 if self.MAP == 8 else 0x20003))
        a('s_lshl_b32 s%d, s%d, 3' % (sT0, sT0))
        a('s_add_u32 s%d, s%d, s%d' % (sT0, sT0, sW))
        a('s_lshl_b32 s%d, s%d, %d' % (sT0, sT0, 3 if nrep == 1 else 4))
        a('v_and_b32 v%d, 7, v%d' % (R, L))
        a('v_add_u32 v%d, s%d, v%d' % (R, sT0, R))
        a('v_lshrrev_b32 v%d, 3, v%d' % (U, L))
        a('s_movk_i32 s%d, 3072' % sT0)
        a('s_movk_i32 s%d, 3584' % sT1)
        nq, ng = (1, 2) if typ == 'A' else (3, 1)
        cg_ = sCOL + 1 if typ == 'A' else sCOL + 3
        a('v_lshlrev_b32 v%d, 10, v%d' % (t + 6, U))
        a('v_mad_u32_u24 v%d, v%d, s%d, v%d' % (t + 6, R, sT0, t + 6))
        a('v_lshlrev_b32 v%d, 7, v%d' % (t + 7, U))
        a('v_mad_u32_u24 v%d, v%d, s%d, v%d' % (t + 7, R, sT1, t + 7))
        for rep in range(nrep):
            a('s_add_u32 s%d, s%d, %d' % (sT2, sCOL, rep * 8 * 3072))
            a('s_add_u32 s%d, s%d, %d' % (sT3, cg_, rep * 8 * 3584))
            a('s_mov_b64 exec, 0x%x' % ((1 << (8 * nq)) - 1))
            a('buffer_load_dword v%d, v%d, %s, s%d offen' % (D0, t + 6, sr(S_WQKV, 4), sT2), tag='warm')
            a('s_mov_b64 exec, 0x%x' % ((1 << (8 * ng)) - 1))
            a('buffer_load_dword v%d, v%d, %s, s%d offen' % (D0 + 1, t + 7, sr(S_GATE, 4), sT3), tag='warm')
            a('buffer_load_dword v%d, v%d, %s, s%d offen' % (D0 + 2, t + 7, sr(S_UP, 4), sT3), tag='warm')
        a('s_mov_b64 exec, -1')

    def tlb_touch(self, typ):
        a = self.a
        D0 = self.ACC[0] + 27
        for p in range(3 if typ == 'A' else 4):
            a('buffer_load_dword v%d, off, %s, s%d' % (D0, sr(S_WS, 4), sST + p), tag='warm')
        a('s_lshl_b32 s%d, s%d, 16' % (sT0, sTB))
        a('s_lshl_b32 s%d, s%d, 7' % (sT1, sNB))
        a('s_add_u32 s%d, s%d, s%d' % (sT0, sT0, sT1))
        a('buffer_load_dword v%d, off, %s, s%d' % (D0, sr(S_OUT, 4), sT0), tag='warm')
        a('buffer_load_dword v%d, off, %s, s%d' % (D0, sr(S_WO, 4), sT1), tag='warm')
        a('buffer_load_dword v%d, off, %s, s%d' % (D0, sr(S_DOWN, 4), sT1), tag='warm')

    def warm_p3(self):
        a = self.a
        t0, t1 = self.vFL, self.vFL + 1
        a('v_lshlrev_b32 v%d, 3, v%d' % (t0, self.vL16))
        a('s_lshl_b32 s%d, s2, 3' % sT2)
        a('s_add_u32 s%d, s%d, s%d' % (sT2, sT2, sW))
        a('s_mul_i32 s%d, s%d, 896' % (sT3, sT2))
        a('s_mov_b64 exec, 0x7f')
        a('buffer_load_dword v%d, v%d, %s, s%d offen' % (t1, t0, sr(S_DOWN, 4), sT3), tag='warm')
        a('s_lshl_b32 s%d, s%d, 8' % (sT3, sT2))
        a('s_mov_b64 exec, 3')
        a('buffer_load_dword v%d, v%d, %s, s%d offen' % (t1, t0, sr(S_WO, 4), sT3), tag='warm')
        a('s_mov_b64 exec, -1')

    def dma_p1(self, pidx, st, slot, gs):
        out = []
        for j in range(4):
            out.append((['s_add_u32 s%d, s%d, 0x%x' % (sT0, sCOL + pidx, (256 * st + 64 * j) * 3072),
                         's_add_u32 m0, s%d, 0x%x' % (sWB, slot * 32768 + 8192 * j),
                         'buffer_load_dwordx4 v%d, %s, s%d offen lds' % (self.vDQ, sr(S_WQKV, 4), sT0)], ('dma', gs)))
        return out

    def dma_p2(self, pidx, st, slot, gs):
        out = []
        for j in range(2):
            for pn, srd in enumerate((S_GATE, S_UP)):
                out.append((['s_add_u32 s%d, s%d, 0x%x' % (sT0, sCOL + pidx, (128 * st + 64 * j) * 3584),
                             's_add_u32 m0, s%d, 0x%x' % (sWB, slot * 32768 + 16384 * pn + 8192 * j),
                             'buffer_load_dwordx4 v%d, %s, s%d offen lds' % (self.vDG, sr(srd, 4), sT0)], ('dma', gs)))
        return out

    def emit_group(self, grp):
        texts, tag = grp
        for t in texts[:-1]:
            self.a(t)
        self.a(texts[-1], tag=tag)

    def layernorm(self, mid):
        a = self.a
        LA_ = self.ACC[1]
        R0 = 0
        S = self.ACC[0]
        t = self.TMP
        for k in range(8):
            a('v_mov_b32 v%d, 0' % (S + k))
        a.wait_vm(('xdma', 15))
        self.stamp(28, self.POOL)
        for s in range(16):
            a('ds_read_b128 %s, v%d offset:%d' % (vr(R0 + 4 * s, 4), LA_ + (s & 3), (s >> 2) * 256), tag=('x', s))
        for s in range(16):
            if s % 2 == 0:
                a.wait_lg(('x', s + 1))
            for d in range(4):
                x = R0 + 4 * s + d
                a('v_dot2c_f32_bf16 v%d, s%d, v%d' % (S + d, sONES, x))
                a('v_dot2c_f32_bf16 v%d, v%d, v%d' % (S + 4 + d, x, x))
        if ENV('MIDPOS', '1') == '0':
            mid()
        for q in range(2):
            b = S + 4 * q
            a('v_add_f32 v%d, v%d, v%d' % (b, b, b + 1))
            a('v_add_f32 v%d, v%d, v%d' % (b + 2, b + 2, b + 3))
        M, E = S + 8, S + 9
        a('v_add_f32 v%d, v%d, v%d' % (M, S, S + 2))
        a('v_add_f32 v%d, v%d, v%d' % (E, S + 4, S + 6))
        for sw in ('v_permlane16_swap_b32', 'v_permlane32_swap_b32'):
            for q in range(2):
                a('v_mov_b32 v%d, v%d' % (S + q, M + q))
            for q in range(2):
                a('%s v%d, v%d' % (sw, M + q, S + q))
            for q in range(2):
                a('v_add_f32 v%d, v%d, v%d' % (M + q, M + q, S + q))
        a('s_mov_b32 s%d, %s' % (sT0, f32(1.0 / 512)))
        a('s_mov_b32 s%d, %s' % (sT1, f32(1e-5)))
        a('v_mul_f32 v%d, s%d, v%d' % (M, sT0, M))
        a('v_mul_f32 v%d, s%d, v%d' % (E, sT0, E))
        a('v_fma_f32 v%d, -v%d, v%d, v%d' % (E, M, M, E))
        a('v_max_f32 v%d, 0, v%d' % (E, E))
        a('v_cvt_pk_bf16_f32 v%d, v%d, v%d' % (S, M, E))
        a('v_lshlrev_b32 v%d, 16, v%d' % (M, S))
        a('v_and_b32 v%d, s%d, v%d' % (E, sMASKHI, S))
        a('v_add_f32 v%d, s%d, v%d' % (E, sT1, E))
        a('v_cvt_pk_bf16_f32 v%d, v%d, v%d' % (S, E, E))
        a('v_and_b32 v%d, s%d, v%d' % (E, sMASKHI, S))
        a('v_sqrt_f32 v%d, v%d' % (E, E))
        a('v_cvt_pk_bf16_f32 v%d, v%d, v%d' % (S, E, E))
        a('v_and_b32 v%d, s%d, v%d' % (E, sMASKHI, S))
        a('v_rcp_f32 v%d, v%d' % (E, E))
        a('v_mul_f32 v%d, v%d, v%d' % (M, M, E))
        a('v_sub_f32 v%d, 0, v%d' % (M, M))
        for s in range(16):
            for d in range(4):
                x = R0 + 4 * s + d
                tt = t + 2 * d
                a('v_lshlrev_b32 v%d, 16, v%d' % (tt, x))
                a('v_and_b32 v%d, s%d, v%d' % (tt + 1, sMASKHI, x))
            for d in range(4):
                tt = t + 2 * d
                a('v_fma_f32 v%d, v%d, v%d, v%d' % (tt, tt, E, M))
                a('v_fma_f32 v%d, v%d, v%d, v%d' % (tt + 1, tt + 1, E, M))
            for d in range(4):
                tt = t + 2 * d
                a('v_cvt_pk_bf16_f32 v%d, v%d, v%d' % (R0 + 4 * s + d, tt, tt + 1))
            a('ds_write_b128 v%d, %s offset:%d' % (LA_ + (s & 3), vr(R0 + 4 * s, 4), (s >> 2) * 256))
        if ENV('MIDPOS', '1') == '1':
            mid()
        for q in range(1, 8):
            a('v_xor_b32 v%d, %d, v%d' % (LA_ + 4 + q, q << 5, LA_ + 4))
        a.wait_lg0()
        self.stamp(29, self.POOL)
        a('s_barrier')
        self.stamp(30, self.POOL)
        for s in range(32):
            a('ds_read_b128 %s, v%d offset:%d' % (vr(4 * s, 4), LA_ + 4 + (s & 7), (s >> 3) * 256), tag=('xf', s))
        a.wait_lg0()
        a.wait_vm(('dma', 0))
        a('s_barrier')

    def epi_qkv(self, acc, pidx, isv, scale):
        out = []
        if scale:
            for r in range(16):
                out.append(('v_mul_f32 v%d, s%d, v%d' % (acc + r, sQS, acc + r), None))
        for tl in range(2):
            q = self.TMP + 4 * tl
            for e in range(4):
                c = acc + 8 * tl + 2 * e
                out.append(('v_cvt_pk_bf16_f32 v%d, v%d, v%d' % (q + e, c, c + 1), None))
            if isv:
                out.append(('buffer_store_dwordx4 %s, v%d, %s, s%d offen offset:%d%s' % (
                    vr(q, 4), self.vSV, sr(S_WS, 4), sST + pidx, 256 * tl, self.sc), 'st'))
            else:
                so = 's%d' % (sST + pidx)
                if tl == 1:
                    out.append(('s_add_u32 s%d, s%d, 0x10000' % (sT1, sST + pidx), None))
                    so = 's%d' % sT1
                out.append(('buffer_store_dwordx4 %s, v%d, %s, %s offen%s' % (
                    vr(q, 4), self.vL16, sr(S_WS, 4), so, self.sc), 'st'))
        return out

    def epi_geglu(self, acc, pidx):
        out = []
        for tl in range(2):
            q = self.TMP + 4 * tl
            for hf in range(2):
                g0 = acc + 8 * tl + 4 * hf
                u0 = g0 + 16
                t0 = self.TMP + 8 + 4 * hf
                blk = []
                for e in range(4):
                    blk.append('v_mul_f32 v%d, v%d, v%d' % (t0 + e, g0 + e, g0 + e))
                for e in range(4):
                    blk.append('v_fma_f32 v%d, v%d, s%d, v%d' % (t0 + e, t0 + e, sK1, self.vK0))
                for e in range(4):
                    blk.append('v_mul_f32 v%d, v%d, v%d' % (t0 + e, t0 + e, g0 + e))
                for e in range(4):
                    blk.append('v_exp_f32 v%d, v%d' % (t0 + e, t0 + e))
                for e in range(4):
                    blk.append('v_mul_f32 v%d, v%d, v%d' % (g0 + e, g0 + e, u0 + e))
                for e in range(4):
                    blk.append('v_add_f32 v%d, 1.0, v%d' % (t0 + e, t0 + e))
                for e in range(4):
                    blk.append('v_rcp_f32 v%d, v%d' % (t0 + e, t0 + e))
                for e in range(4):
                    blk.append('v_mul_f32 v%d, v%d, v%d' % (g0 + e, g0 + e, t0 + e))
                blk.append('v_cvt_pk_bf16_f32 v%d, v%d, v%d' % (q + 2 * hf, g0, g0 + 1))
                blk.append('v_cvt_pk_bf16_f32 v%d, v%d, v%d' % (q + 2 * hf + 1, g0 + 2, g0 + 3))
                out += [(b, None) for b in blk]
            out.append(('buffer_store_dwordx4 %s, v%d, %s, s%d offen offset:%d%s' % (
                vr(q, 4), self.vL16, sr(S_WS, 4), sST + pidx, 1024 * tl, self.sc), 'st'))
        return out

    BGRATE = 4

    def run_passes(self, passes, stages, first_stage_ready, pre_ev, post_ev):
        a = self.a
        items = []
        for p in passes:
            nst = 2 if p['kind'] == 'p1' else 4
            kper = 32 // nst
            npan = 1 if p['kind'] == 'p1' else 2
            for st in range(nst):
                for ks in range(kper):
                    for pn in range(npan):
                        items.append(dict(gs=p['stages'][st], p=p, s=st * kper + ks, ks=ks, pn=pn))
        n = len(items)
        bg, dq = [], []
        if first_stage_ready == 0:
            dq = list(self.dq0)

        def issue_reads(k):
            it = items[k]
            if it['gs'] > self.covered:
                a.wait_vm(('dma', it['gs']))
                a('s_barrier')
                self.covered = it['gs']
            slot = it['gs'] % self.NS
            off = (slot & 1) * 32768 + it['pn'] * 16384 + it['ks'] * 2048
            addr = self.vTR + (slot >> 1)
            dst = self.POOL + 4 * (k % self.NP)
            a('ds_read_b64_tr_b16 %s, v%d offset:%d' % (vr(dst, 2), addr, off), tag=('f', k))
            a('ds_read_b64_tr_b16 %s, v%d offset:%d' % (vr(dst + 2, 2), addr, off + 512), tag=('f', k))

        def pop_bg(cnt):
            for _ in range(cnt):
                if not bg:
                    return
                t = bg.pop(0)
                a(t[0], tag=t[1])

        cur_gs, issued, kst, later = None, 0, 0, None
        for k in range(n):
            it = items[k]
            p = it['p']
            if it['gs'] != cur_gs:
                cur_gs = it['gs']
                if cur_gs != first_stage_ready:
                    if (cur_gs + 1) in stages:
                        a.wait_vm(('dma', cur_gs + 1))
                        self.covered = cur_gs + 1
                    for f in pre_ev.get(cur_gs, []):
                        f()
                    if self.STAMP2:
                        self.stamp(8 + 2 * cur_gs, 248)
                    a('s_barrier')
                    if self.STAMP2:
                        self.stamp(9 + 2 * cur_gs, 248)
                    for f in post_ev.get(cur_gs, []):
                        f()
                    assert not dq
                    if (cur_gs + self.NS - 1) in stages:
                        dq = list(stages[cur_gs + self.NS - 1])
                    kst = k
            while issued < n and issued <= k + self.LA:
                issue_reads(issued)
                issued += 1
            a.wait_lg(('f', k))
            w = self.POOL + 4 * (k % self.NP)
            acc = p['acc'] + 16 * it['pn']
            x = 4 * it['s']
            c = '0' if it['s'] == 0 else vr(acc, 16)
            if p.get('isv'):
                a('v_mfma_f32_32x32x16_bf16 %s, %s, %s, %s' % (vr(acc, 16), vr(x, 4), vr(w, 4), c))
            else:
                a('v_mfma_f32_32x32x16_bf16 %s, %s, %s, %s' % (vr(acc, 16), vr(w, 4), vr(x, 4), c))
            PR = int(ENV('PRIO', '8'))
            if PR and (k % 16) == 0:
                self.prio_young(1)
            if PR and (k % 16) == PR:
                self.prio_young(0)
            if later is not None and k >= later[0]:
                bg.extend(later[1])
                later = None
            if dq and ((k - kst) % 4 == 1 or cur_gs == 0):
                self.emit_group(dq.pop(0))
            pop_bg(self.BGRATE)
            if (k == n - 1) or (items[k + 1]['p'] is not p):
                assert later is None
                pop_bg(10 ** 6)
                if p['kind'] == 'p1':
                    e = self.epi_qkv(p['acc'], p['pidx'], p.get('isv'), p.get('scale'))
                else:
                    e = self.epi_geglu(p['acc'], p['pidx'])
                later = (k + 3, e)
        bg.extend(later[1])
        return bg

    def phase1(self, p3_stages):
        a = self.a
        vEP = self.vEP
        LB, LJ = self.lab('typeB'), self.lab('p1join')
        a('s_cmp_eq_u32 s%d, 3' % sI)
        a.branch('s_cbranch_scc1 ' + LB)
        vm0 = list(a.vm)
        for typ in ('A', 'B'):
            a.vm = list(vm0)
            if typ == 'B':
                a.label(LB)
            self.p1_scalar_setup(typ)
            if typ == 'A':
                plist = [('p1', 0), ('p2', 1), ('p2', 2)]
            else:
                plist = [('p1', 0), ('p1', 1), ('p1', 2), ('p2', 3)]
            stages, passes, gs = {}, [], 0
            for k, (kind, pidx) in enumerate(plist):
                nst = 2 if kind == 'p1' else 4
                ids = list(range(gs, gs + nst))
                for st, g_ in enumerate(ids):
                    stages[g_] = (self.dma_p1 if kind == 'p1' else self.dma_p2)(pidx, st, g_ % self.NS, g_)
                gs += nst
                passes.append(dict(kind=kind, pidx=pidx, stages=ids,
                                   acc=self.ACC[(k + 1) % 2 if typ == 'A' else k % 2],
                                   isv=(typ == 'B' and k == 2), scale=(k == 0)))
            for k, f in enumerate(p3_stages):
                stages[10 + k] = f((10 + k) % self.NS, 10 + k)
            WL = ENV('WARMLATE', '1')
            if WL == '0':
                self.warm_p1(typ)
            self.epoch_issue(vEP)
            if ENV('TLB', '1') == '1':
                self.tlb_touch(typ)

            def mid():
                for grp in stages[0]:
                    self.emit_group(grp)
                if WL == '1':
                    self.warm_p1(typ)
                if ENV('WARM3', '1') == '2':
                    self.warm_p3()
            self.layernorm(mid)
            for grp in stages[1]:
                self.emit_group(grp)
            self.dq0 = [grp for g_ in range(2, self.NS) for grp in stages[g_]]
            self.stamp(1, self.POOL)
            k0 = -2.0 * math.log2(math.e) * math.sqrt(2.0 / math.pi)
            a('s_mov_b32 s%d, %s' % (sK1, f32(k0 * 0.044715)))
            a('v_mov_b32 v%d, %s' % (self.vK0, f32(k0)))
            self.covered = 0
            self.stamp(2, self.POOL)
            gq = 4 if typ == 'A' else 7
            pre, post = {}, {}
            pre[4] = [lambda: self.epoch_get(vEP)]
            pre.setdefault(gq, []).append(lambda: a.wait_vm('st'))
            post[gq] = [lambda: self.publish(0, vEP)]
            if ENV('WARM3', '1') == '1':
                post.setdefault(int(ENV('W3ST', '3')), []).append(self.warm_p3)
            post.setdefault(11 - self.NS, []).append(self.p3_setup_dma)
            post.setdefault(9, []).append(lambda: self.flag_issue(0, sMB, 2, 'qflag'))
            if typ == 'A':
                LV, LA2 = self.lab('Av'), self.lab('Ajoin')
                a('s_cmp_eq_u32 s%d, 2' % sI)
                a.branch('s_cbranch_scc1 ' + LV)
                vm1, lg1 = list(a.vm), list(a.lg)
                for isv in (False, True):
                    a.vm, a.lg = list(vm1), list(lg1)
                    self.covered = 0
                    if isv:
                        a.label(LV)
                    passes[0]['isv'] = isv
                    passes[0]['scale'] = not isv
                    bg = self.run_passes(passes[:1], stages, 0, pre, post)
                    for t in bg:
                        a(t[0], tag=t[1])
                    if not isv:
                        a.branch('s_branch ' + LA2)
                a.label(LA2)
                self.stamp(3, self.POOL)
                bg = self.run_passes(passes[1:], stages, None, pre, post)
            else:
                bg = self.run_passes(passes, stages, 0, pre, post)
            self.stamp(4, self.POOL)
            self.flag_wait('qflag')
            self.attn_loads()
            for t in bg:
                a(t[0], tag=t[1])
            self.attn_loads_v()
            self.stamp(5, self.TMP)
            if typ == 'A':
                vmA = list(a.vm)
                a.branch('s_branch ' + LJ)
        tail = lambda q: [t for t in q[q.index('q'):]]
        assert tail(vmA) == tail(a.vm), (tail(vmA), tail(a.vm))
        if len(vmA) > len(a.vm):
            a.vm = vmA
        a.label(LJ)

    def KR(self, j):
        return 104 + 4 * j

    MERGE = ENV('MERGE', '0') == '1'

    def VR(self, j, m):
        if self.MERGE:
            return 144 + 4 * j if j < 4 else 192 + 4 * (j - 4)
        return (192 + 8 * j if j < 3 else 32 + 8 * (j - 3)) + 4 * m

    AQ = 140
    CB = 144
    aTQ, aNEG, aM = 248, 249, 251
    mM, mMJ, mLS = 244, 245, 246
    vPUB = 253
    vST = 103
    sVO = 76

    def v_load(self, j):
        a = self.a
        a('s_mov_b32 exec_lo, 0x0000ffff')
        a('s_mov_b32 exec_hi, 0x0000ffff')
        a('buffer_load_dwordx4 %s, v%d, %s, s%d offen%s' % (vr(self.VR(j, 0), 4), self.vL16, sr(S_WS, 4), self.sVO + j, self.sc), tag=('v', j))
        a('s_mov_b32 exec_lo, 0xffff0000')
        a('s_mov_b32 exec_hi, 0xffff0000')
        a('buffer_load_dwordx4 %s, v%d, %s, s%d offen%s' % (vr(self.VR(j, 1), 4), self.vL16, sr(S_WS, 4), self.sVO + j, self.sc), tag=('v', j))
        a('s_mov_b64 exec, -1')

    def attn_loads(self):
        a = self.a
        vL16 = self.vL16
        a('s_lshl_b32 s%d, s%d, 3' % (sHEAD, sQUAD))
        a('s_lshl_b32 s%d, s%d, 1' % (sT0, sI))
        a('s_add_u32 s%d, s%d, s%d' % (sHEAD, sHEAD, sT0))
        a('s_add_u32 s%d, s%d, s%d' % (sHEAD, sHEAD, sC))
        a('s_lshl_b32 s%d, s%d, 2' % (sQB, sMB))
        a('s_add_u32 s%d, s%d, s%d' % (sQB, sQB, sR))
        a('s_lshl_b32 s%d, s%d, 6' % (sT0, sHEAD))
        a('s_add_u32 s%d, s%d, s%d' % (sT1, sT0, sQB))
        a('s_lshl_b32 s%d, s%d, 10' % (sT1, sT1))
        a('buffer_load_dwordx4 %s, v%d, %s, s%d offen%s' % (vr(self.AQ, 4), vL16, sr(S_WS, 4), sT1, self.sc), tag='q')
        for j in range(8, -1, -1):
            a('s_add_i32 s%d, s%d, %d' % (sT1, sQB, j - 8))
            a('s_max_i32 s%d, s%d, 0' % (sT1, sT1))
            a('s_add_u32 s%d, s%d, s%d' % (sT1, sT1, sT0))
            a('s_lshl_b32 s%d, s%d, 10' % (sT1, sT1))
            a('s_add_u32 s%d, s%d, 0x%x' % (sT2, sT1, 2 << 20))
            a('buffer_load_dwordx4 %s, v%d, %s, s%d offen%s' % (vr(self.KR(j), 4), vL16, sr(S_WS, 4), sT2, self.sc), tag=('k', j))
            a('s_add_u32 s%d, s%d, 0x%x' % (self.sVO + j, sT1, 4 << 20))
    def attn_loads_v(self):
        a = self.a
        vL16 = self.vL16
        for j in range(9):
            if self.MERGE:
                a('buffer_load_dwordx4 %s, v%d, %s, s%d offen%s' % (vr(self.VR(j, 0), 4), vL16, sr(S_WS, 4), self.sVO + j, self.sc), tag=('v', j))
                continue
            for r in range(8):
                a('v_mov_b32 v%d, s%d' % (self.VR(j, 0) + r, sONES))
            self.v_load(j)

    def mask_ops(self, b, diag):
        out = []
        for q in range(4):
            for r in range(4 * q, 4 * q + 4):
                cr = (r & 3) + 8 * (r >> 2)
                out.append('v_cmp_le_i32 %s, %d, v%d' % (sr(86 + 2 * (r % 4), 2), cr, self.aTQ))
            for r in range(4 * q, 4 * q + 4):
                m = sr(86 + 2 * (r % 4), 2)
                if diag:
                    out.append('v_cndmask_b32 v%d, v%d, v%d, %s' % (b + r, self.aNEG, b + r, m))
                else:
                    out.append('v_cndmask_b32 v%d, v%d, v%d, %s' % (b + r, b + r, self.aNEG, m))
        return out

    MK = (80, 81, 82, 83, 92, 93, 94, 95)

    def merge_ops(self, b8, b0, mk=False):
        out = []
        for q in range(4):
            for r in range(4 * q, 4 * q + 4):
                cr = (r & 3) + 8 * (r >> 2)
                out.append('v_cmp_le_i32 %s, %d, v%d' % (sr(86 + 2 * (r % 4), 2), cr, self.aTQ))
            for r in range(4 * q, 4 * q + 4):
                out.append('v_cndmask_b32 v%d, v%d, v%d, %s' % (b8 + r, b0 + r, b8 + r, sr(86 + 2 * (r % 4), 2)))
            if mk:
                for e in range(2):
                    k = self.MK[2 * q + e]
                    out.append('v_cndmask_b32 v%d, 0, v%d, %s' % (k, self.vFFFF, sr(86 + 4 * e, 2)))
                    out.append('v_cndmask_b32 v%d, v%d, -1, %s' % (k, k, sr(88 + 4 * e, 2)))
        return out

    vFFFF = 253

    def h_publish(self):
        a = self.a
        a.wait_vm('st')
        a('s_lshl_b32 s%d, s%d, 7' % (sT2, sQB))
        a('s_lshl_b32 s%d, s%d, 1' % (sT3, sCG4))
        a('s_add_u32 s%d, s%d, s%d' % (sT2, sT2, sT3))
        a('s_lshl_b32 s%d, s%d, 2' % (sT3, sC))
        a('s_add_u32 s%d, s%d, s%d' % (sT2, sT2, sT3))
        a('s_add_u32 s%d, s%d, 0x%x' % (sT2, sT2, WS_FLAGH))
        a('v_mov_b32 v%d, s%d' % (self.vPUB, sEPOCH))
        a('s_mov_b64 exec, 1')
        a('buffer_store_dword v%d, off, %s, s%d sc0 sc1' % (self.vPUB, sr(S_WS, 4), sT2), tag='flagst')
        a('s_mov_b64 exec, -1')

    def h_flag_issue(self):
        a = self.a
        va = self.vFL
        a('s_lshl_b32 s%d, s%d, 8' % (sT3, sTB))
        a('v_lshrrev_b32 v%d, 2, v%d' % (va, self.vL16))
        a('v_add_u32 v%d, s%d, v%d' % (va, sT3, va))
        a('v_add_u32 v%d, 0x%x, v%d' % (va, WS_FLAGH, va))
        a('buffer_load_dword v%d, v%d, %s, 0 offen sc0 sc1' % (va + 1, va, sr(S_WS, 4)), tag='hflag')

    def attn_pass1(self):
        a = self.a
        vL16 = self.vL16
        self.stamp(0, self.vST)
        TQ, NEG, M = self.aTQ, self.aNEG, 96
        a('v_bfe_u32 v%d, v%d, 4, 5' % (TQ, vL16))
        a('v_lshrrev_b32 v%d, 9, v%d' % (NEG, vL16))
        a('v_lshlrev_b32 v%d, 2, v%d' % (NEG, NEG))
        a('v_sub_u32 v%d, v%d, v%d' % (TQ, TQ, NEG))
        a('v_mov_b32 v%d, %s' % (NEG, f32(-1e30)))
        for c in range(3):
            a('v_mov_b32 v%d, v%d' % (M + c, NEG))
        bufs = (0, 16, 160, 176)
        A_, B_, C_, D_ = bufs
        def qk1(j, b):
            a.wait_vm(('k', j))
            a('v_mfma_f32_32x32x16_bf16 %s, %s, %s, 0' % (vr(b, 16), vr(self.KR(j), 4), vr(self.AQ, 4)))
        qk1(8, A_)
        qk1(7, C_)
        qk1(6, D_)
        qk1(0, B_)
        LD = self.lab('p1done')
        def mx(b):
            for q in range(8):
                c = M + (q % 3)
                a('v_max3_f32 v%d, v%d, v%d, v%d' % (c, c, b + 2 * q, b + 2 * q + 1))
        def guarded(j, b):
            a.raw('    s_cmp_lt_u32 s%d, %d' % (sQB, 8 - j))
            a.raw('    s_cbranch_scc1 L_skip%d_%s' % (j, LD))
            mx(b)
            a.raw('L_skip%d_%s:' % (j, LD))
        guarded(7, C_)
        qk1(5, C_)
        self.h_publish()
        guarded(6, D_)
        qk1(4, D_)
        L0 = self.lab('t0ok')
        a.raw('    s_cmp_ge_u32 s%d, 8' % sQB)
        a.raw('    s_cbranch_scc1 ' + L0)
        a.raw('    s_nop 7')
        a.raw('    s_nop 7')
        for r in range(16):
            a.raw('    v_mov_b32 v%d, v%d' % (B_ + r, NEG))
        a.raw(L0 + ':')
        for t in self.merge_ops(A_, B_):
            a(t)
        mx(A_)
        qk1(3, A_)
        qk1(2, B_)
        guarded(5, C_)
        qk1(1, C_)
        guarded(4, D_)
        guarded(3, A_)
        guarded(2, B_)
        guarded(1, C_)
        a('s_nop 11')
        a.flush()
        a('v_max3_f32 v%d, v%d, v%d, v%d' % (M, M, M + 1, M + 2))
        a('v_mov_b32 v%d, v%d' % (M + 1, M))
        a('v_permlane32_swap_b32 v%d, v%d' % (M, M + 1))
        a('v_max_f32 v%d, v%d, v%d' % (M, M, M + 1))
        if self.MERGE:
            a('v_mov_b32 v%d, v%d' % (self.mM, M))
            a('v_mov_b32 v%d, 0' % self.mLS)
            a('v_mov_b32 v%d, 0' % (self.mLS + 1))
        a('v_sub_f32 v%d, 0, v%d' % (self.aM, M))
        a('s_cmp_ge_u32 s%d, 8' % sQB)
        a('s_cselect_b64 %s, -1, 0' % sr(86, 2))
        a('v_cndmask_b32 v%d, v%d, v%d, %s' % (M, NEG, self.aM, sr(86, 2)))
        for r in range(16):
            if not self.MERGE:
                a('v_mov_b32 v%d, v%d' % (self.CB + r, M))
        self.stamp(1, self.vST)
        self.stamp(2, self.vST)

    def attn_pass2_merge(self):
        a = self.a
        out = []
        D1, D2 = 212, 228
        LS, M, MJ = self.mLS, self.mM, self.mMJ
        SB = lambda j: 160 + 16 * (j & 1)
        qk = lambda j: ('v_mfma_f32_32x32x16_bf16 %s, %s, %s, 0' % (vr(SB(j), 16), vr(self.KR(j), 4), vr(self.AQ, 4)), None)
        out.append(qk(0))
        for j in range(9):
            b = SB(j)
            if j + 1 < 9:
                out.append(qk(j + 1))
            if j < 8:
                def mj(j=j):
                    a('s_cmp_ge_u32 s%d, %d' % (sQB, 8 - j))
                    a('s_cselect_b32 s%d, 0, %s' % (sCNT, f32(1e30)))
                    a('v_add_f32 v%d, s%d, v%d' % (MJ, sCNT, M))
                out.append(mj)
            else:
                out.append(('v_mov_b32 v%d, v%d' % (MJ, M), None))
            if j in (0, 8):
                out += [(t, None) for t in self.mask_ops(b, j == 8)]
            for q in range(4):
                for r in range(4 * q, 4 * q + 4):
                    out.append(('v_sub_f32 v%d, v%d, v%d' % (b + r, b + r, MJ), None))
                for r in range(4 * q, 4 * q + 4):
                    out.append(('v_exp_f32 v%d, v%d' % (b + r, b + r), None))
                if q:
                    for r in range(4 * q - 4, 4 * q):
                        out.append(('v_add_f32 v%d, v%d, v%d' % (LS + (r & 1), LS + (r & 1), b + r), None))
                    for r in range(2 * q - 2, 2 * q):
                        out.append(('v_cvt_pk_bf16_f32 v%d, v%d, v%d' % (b + r, b + 2 * r, b + 2 * r + 1), None))
            for r in range(12, 16):
                out.append(('v_add_f32 v%d, v%d, v%d' % (LS + (r & 1), LS + (r & 1), b + r), None))
            for r in range(6, 8):
                out.append(('v_cvt_pk_bf16_f32 v%d, v%d, v%d' % (b + r, b + 2 * r, b + 2 * r + 1), None))
            if j == 0:
                out.append(lambda: a.wait_vm(('v', 8)))
            out.append(('v_mfma_f32_32x32x16_bf16 %s, %s, %s, %s' % (vr(D1, 16), vr(self.VR(j, 0), 4), vr(b, 4), '0' if j == 0 else vr(D1, 16)), None))
            out.append(('v_mfma_f32_32x32x16_bf16 %s, %s, %s, %s' % (vr(D2, 16), vr(self.VR(j, 0), 4), vr(b + 4, 4), '0' if j == 0 else vr(D2, 16)), None))
        T_ = []
        T_.append('v_add_f32 v%d, v%d, v%d' % (LS, LS, LS + 1))
        T_.append('v_mov_b32 v%d, v%d' % (LS + 1, LS))
        T_.append('v_permlane32_swap_b32 v%d, v%d' % (LS, LS + 1))
        T_.append('v_add_f32 v%d, v%d, v%d' % (LS, LS, LS + 1))
        T_.append('v_rcp_f32 v%d, v%d' % (LS, LS))
        T_.append('s_mul_i32 s%d, s%d, %d' % (sT2, sQB, NACT))
        T_.append('s_add_u32 s%d, s%d, s%d' % (sT2, sT2, sHEAD))
        T_.append('s_add_u32 s%d, s%d, 112' % (sT2, sT2))
        T_.append('s_lshl_b32 s%d, s%d, 10' % (sT2, sT2))
        T_.append('s_add_u32 s%d, s%d, 0x%x' % (sT2, sT2, WS_ACT))
        for r in range(8):
            T_.append('v_add_f32 v%d, v%d, v%d' % (D1 + r, D1 + r, D2 + 8 + r))
        for r in range(8):
            T_.append('v_mul_f32 v%d, v%d, v%d' % (D1 + r, D1 + r, LS))
        O = 160
        for r in range(4):
            T_.append('v_cvt_pk_bf16_f32 v%d, v%d, v%d' % (O + r, D1 + 2 * r, D1 + 2 * r + 1))
        out += [(t, None) for t in T_]
        out.append(('buffer_store_dwordx4 %s, v%d, %s, s%d offen%s' % (vr(O, 4), self.vL16, sr(S_WS, 4), sT2, self.sc), 'st'))
        k = int(ENV('MARKAT', '130'))
        out.insert(k, ('MARK', 4))
        out.insert(k + 1, ('MARK', 6))
        return out

    def attn_pass2(self):
        if self.MERGE:
            return self.attn_pass2_merge()
        a = self.a
        out = []
        D1, D2 = 216, 232
        CB = self.CB
        SB = lambda j: 160 + 16 * (j & 1)

        def qk(j, dst=None):
            dst = SB(j) if dst is None else dst
            def f():
                if j >= 1:
                    L = self.lab('cs')
                    a.raw('    s_cmp_lg_u32 s%d, %d' % (sQB, 8 - j))
                    a.raw('    s_cbranch_scc1 ' + L)
                    a.raw('    s_nop 7')
                    for r in range(16):
                        a.raw('    v_mov_b32 v%d, v%d' % (CB + r, self.aM))
                    a.raw('    s_nop 1')
                    a.raw(L + ':')
                a('v_mfma_f32_32x32x16_bf16 %s, %s, %s, %s' % (vr(dst, 16), vr(self.KR(j), 4), vr(self.AQ, 4), vr(CB, 16)))
            return f
        P = 84

        def pv(j, m):
            D = D2 if m else D1
            o = []
            if m == 0:
                o.append(lambda: a.wait_vm(('v', j)))
            o.append(('v_mfma_f32_32x32x16_bf16 %s, %s, %s, %s' % (vr(D, 16), vr(self.VR(j, m), 4), vr(P + 4 * m, 4), '0' if j == 0 else vr(D, 16)), None))
            if m == 1 and j == 2:
                o.append(self.h_flag_issue)
            if m == 1 and j in (4, 6):
                o.append(('MARK', j))
            return o
        P8 = (self.KR(0), self.KR(8))
        b0, b8 = SB(0), SB(1)
        out.append(qk(0))
        out.append(('v_mfma_f32_32x32x16_bf16 %s, %s, %s, 0' % (vr(b8, 16), vr(self.KR(8), 4), vr(self.AQ, 4)), None))
        out.append(('v_mov_b32 v%d, 0xffff' % self.vFFFF, None))
        for r in range(16):
            out.append(('v_add_f32 v%d, v%d, v%d' % (b8 + r, b8 + r, self.aM), None))
        out += [(t, None) for t in self.merge_ops(b8, b0, True)]
        SJ = lambda j: SB(j + 1)
        qk2 = lambda j: qk(j, SJ(j))
        out.append(qk2(1))
        for r in range(16):
            out.append(('v_exp_f32 v%d, v%d' % (b8 + r, b8 + r), None))
        for r in range(8):
            out.append(('v_cvt_pk_bf16_f32 v%d, v%d, v%d' % (P + r, b8 + 2 * r, b8 + 2 * r + 1), None))
        for r in range(8):
            out.append(('v_and_b32 v%d, v%d, v%d' % (P8[r >> 2] + (r & 3), P + r, self.MK[r]), None))
        for r in range(8):
            out.append(('v_xor_b32 v%d, v%d, v%d' % (P + r, P + r, P8[r >> 2] + (r & 3)), None))
        pv8 = [lambda: a.wait_vm(('v', 8))]
        for m in range(2):
            D = D2 if m else D1
            pv8.append(('v_mfma_f32_32x32x16_bf16 %s, %s, %s, %s' % (vr(D, 16), vr(self.VR(8, m), 4), vr(P8[m], 4), vr(D, 16)), None))
        for j in range(1, 8):
            b = SJ(j)
            for r in range(16):
                out.append(('v_exp_f32 v%d, v%d' % (b + r, b + r), None))
                if r == 1:
                    out += pv(j - 1, 0)
                if r == 5:
                    out += pv(j - 1, 1)
                if r == 9 and j < 7:
                    out.append(qk2(j + 1))
                if r == 13 and j == 1:
                    out += pv8[:2]
                if r == 13 and j == 2:
                    out += pv8[2:]
            for r in range(8):
                out.append(('v_cvt_pk_bf16_f32 v%d, v%d, v%d' % (P + r, b + 2 * r, b + 2 * r + 1), None))
        out += pv(7, 0) + pv(7, 1)
        T_ = []
        LS = D1 + 8
        T_.append('s_mul_i32 s%d, s%d, %d' % (sT2, sQB, NACT))
        T_.append('s_add_u32 s%d, s%d, s%d' % (sT2, sT2, sHEAD))
        T_.append('s_add_u32 s%d, s%d, 112' % (sT2, sT2))
        T_.append('s_lshl_b32 s%d, s%d, 10' % (sT2, sT2))
        T_.append('s_add_u32 s%d, s%d, 0x%x' % (sT2, sT2, WS_ACT))
        T_.append('v_add_f32 v%d, v%d, v%d' % (LS, LS, D2))
        T_.append('v_rcp_f32 v%d, v%d' % (LS, LS))
        for r in range(8):
            T_.append('v_add_f32 v%d, v%d, v%d' % (D1 + r, D1 + r, D2 + 8 + r))
        for r in range(8):
            T_.append('v_mul_f32 v%d, v%d, v%d' % (D1 + r, D1 + r, LS))
        O = 160
        for r in range(4):
            T_.append('v_cvt_pk_bf16_f32 v%d, v%d, v%d' % (O + r, D1 + 2 * r, D1 + 2 * r + 1))
        out += [(t, None) for t in T_]
        out.append(('buffer_store_dwordx4 %s, v%d, %s, s%d offen%s' % (vr(O, 4), self.vL16, sr(S_WS, 4), sT2, self.sc), 'st'))
        return out

    v3D = 252

    def p3_setup_dma(self):
        a = self.a
        ROW, P_, S_ = self.vFL, self.vFL + 1, 253
        a('s_and_b32 s%d, s%d, 3' % (sKQ, sW))
        a('s_lshr_b32 s%d, s%d, 2' % (sTH, sW))
        a('v_lshrrev_b32 v%d, 7, v%d' % (ROW, self.vL16))
        a('v_bfe_u32 v%d, v%d, 4, 3' % (P_, self.vL16))
        a('v_bfe_u32 v%d, v%d, 1, 1' % (S_, ROW))
        a('v_lshlrev_b32 v%d, 2, v%d' % (S_, S_))
        a('v_xor_b32 v%d, v%d, v%d' % (P_, P_, S_))
        a('v_lshlrev_b32 v%d, 4, v%d' % (P_, P_))
        a('v_lshrrev_b32 v%d, 2, v%d' % (S_, ROW))
        a('v_and_b32 v%d, 3, v%d' % (ROW, ROW))
        a('v_lshl_add_u32 v%d, v%d, 3, v%d' % (ROW, S_, ROW))
        a('v_lshl_add_u32 v%d, v%d, 10, v%d' % (self.v3D, ROW, P_))
        a('s_lshl_b32 s%d, s%d, 7' % (sT0, sNB))
        a('s_lshl_b32 s%d, s%d, 5' % (sT1, sTH))
        a('s_mul_i32 s%d, s%d, 448' % (sT2, sKQ))
        a('s_add_u32 s%d, s%d, s%d' % (sT2, sT2, sT1))
        a('s_lshl_b32 s%d, s%d, 10' % (sT2, sT2))
        a('s_add_u32 s%d, s%d, s%d' % (sWD, sT2, sT0))
        a('s_lshl_b32 s%d, s%d, 7' % (sT2, sKQ))
        a('s_add_u32 s%d, s%d, s%d' % (sT2, sT2, sT1))
        a('s_lshl_b32 s%d, s%d, 10' % (sT2, sT2))
        a('s_add_u32 s%d, s%d, s%d' % (sWOo, sT2, sT0))
        a('s_lshl_b32 s%d, s%d, 13' % (sT2, sKQ))
        a('s_lshl_b32 s%d, s%d, 12' % (sT1, sTH))
        a('s_add_u32 s%d, s%d, s%d' % (sWB3, sT2, sT1))

    def p3_stage_fn(self, st):
        def f(slot, gs):
            out = []
            for j in range(4):
                base, srd, s_ = (sWD, S_DOWN, st) if st < 7 else (sWOo, S_WO, st - 7)
                so = (64 * s_ + 16 * (j >> 1) + 4 * (j & 1)) * 1024
                out.append((['s_add_u32 s%d, s%d, 0x%x' % (sT0, base, so),
                             's_add_u32 m0, s%d, 0x%x' % (sWB3, slot * 32768 + 1024 * j),
                             'buffer_load_dwordx4 v%d, %s, s%d offen lds' % (self.v3D, sr(srd, 4), sT0)], ('dma', gs)))
            return out
        return f

    def act_touch(self, isO, vt, vd):
        a = self.a
        per_wg, per_w, base = (64, 8, 112 * 1024) if isO else (224, 28, 0)
        a('s_lshr_b32 s%d, s%d, 2' % (sT2, sNB))
        a('s_lshl_b32 s%d, s%d, 1' % (sT3, sTB))
        a('s_add_u32 s%d, s%d, s%d' % (sT2, sT2, sT3))
        a('s_mul_i32 s%d, s%d, %d' % (sT2, sT2, NACT * 1024))
        a('s_and_b32 s%d, s%d, 3' % (sT3, sNB))
        a('s_mul_i32 s%d, s%d, %d' % (sT3, sT3, per_wg * 128))
        a('s_add_u32 s%d, s%d, s%d' % (sT2, sT2, sT3))
        a('s_mul_i32 s%d, s%d, %d' % (sT3, sW, per_w * 128))
        a('s_add_u32 s%d, s%d, s%d' % (sT2, sT2, sT3))
        a('s_add_u32 s%d, s%d, 0x%x' % (sT2, sT2, WS_ACT + base))
        a('v_lshlrev_b32 v%d, 3, v%d' % (vt, self.vL16))
        a('s_mov_b64 exec, 0x%x' % ((1 << per_w) - 1))
        a('buffer_load_dword v%d, v%d, %s, s%d offen%s' % (vd, vt, sr(S_WS, 4), sT2, self.sc), tag='warm')
        a('s_mov_b64 exec, -1')

    def phase3(self, gs0, dma_issued):
        a = self.a
        ACC, AB, PB = 0, 32, 80
        NP, LA = 4, 3
        vL16 = self.vL16
        TRa, vO, XR = 96, 102, 104
        att = self.attn_pass2()
        ATR = int(ENV('ATR', '14'))
        self.stamp(0, self.vST)
        a('s_lshl_b32 s%d, s%d, 1' % (sT0, sTB))
        a('s_add_u32 s%d, s%d, s%d' % (sT0, sT0, sTH))
        a('s_mul_i32 s%d, s%d, %d' % (sT1, sT0, NACT))
        a('s_mul_i32 s%d, s%d, 28' % (sT2, sKQ))
        a('s_add_u32 s%d, s%d, s%d' % (sT2, sT2, sT1))
        a('s_lshl_b32 s%d, s%d, 10' % (sT2, sT2))
        a('s_add_u32 s%d, s%d, 0x%x' % (sACT, sT2, WS_ACT))
        a('s_lshl_b32 s%d, s%d, 3' % (sT2, sKQ))
        a('s_add_u32 s%d, s%d, s%d' % (sT2, sT2, sT1))
        a('s_add_u32 s%d, s%d, 112' % (sT2, sT2))
        a('s_lshl_b32 s%d, s%d, 10' % (sT2, sT2))
        a('s_add_u32 s%d, s%d, 0x%x' % (sACTO, sT2, WS_ACT))

        def act_loads(st):
            base, off = (sACT, st * 4096) if st < 7 else (sACTO, (st - 7) * 4096)
            out = [('s_add_u32 s%d, s%d, 0x%x' % (sT1, base, off), None)]
            for j in range(4):
                out.append(('buffer_load_dwordx4 %s, v%d, %s, s%d offen offset:%d%s' % (
                    vr(AB + 16 * (st % 3) + 4 * j, 4), vL16, sr(S_WS, 4), sT1, 1024 * j, self.sc), ('act', st, j)))
            return out

        NS = self.NS
        stages = {gs0 + st: self.p3_stage_fn(st)((gs0 + st) % NS, gs0 + st) for st in range(9)}

        def pop_att(cnt):
            for _ in range(cnt):
                if not att:
                    return
                e = att.pop(0)
                if callable(e):
                    e()
                elif e[0] == 'MARK':
                    if e[1] == 4:
                        self.flag_wait('hflag')
                    for tx, tg in act_loads(0 if e[1] == 4 else 1):
                        a(tx, tag=tg)
                else:
                    a(e[0], tag=e[1])

        A_, B_, C_ = 80, 81, 82
        a('v_lshrrev_b32 v%d, 9, v%d' % (A_, vL16))
        a('v_bfe_u32 v%d, v%d, 6, 2' % (B_, vL16))
        a('v_lshl_add_u32 v%d, v%d, 3, v%d' % (B_, A_, B_))
        a('v_lshlrev_b32 v%d, 7, v%d' % (B_, B_))
        a('v_bfe_u32 v%d, v%d, 8, 1' % (C_, vL16))
        a('v_lshl_add_u32 v%d, v%d, 5, v%d' % (B_, C_, B_))
        a('v_bfe_u32 v%d, v%d, 4, 2' % (C_, vL16))
        a('v_lshl_add_u32 v%d, v%d, 3, v%d' % (B_, C_, B_))
        a('s_lshl_b32 s%d, s%d, 13' % (sT0, sKQ))
        a('v_add_u32 v%d, s%d, v%d' % (B_, sT0, B_))
        a('v_bfe_u32 v%d, v%d, 7, 1' % (C_, vL16))
        a('v_lshl_add_u32 v%d, v%d, 6, v%d' % (TRa, C_, B_))
        a('v_xor_b32 v%d, 1, v%d' % (C_, C_))
        a('v_lshl_add_u32 v%d, v%d, 6, v%d' % (TRa + 1, C_, B_))
        a('v_add_u32 v%d, 0x10000, v%d' % (TRa + 2, TRa))
        a('v_add_u32 v%d, 0x10000, v%d' % (TRa + 3, TRa + 1))
        a('v_add_u32 v%d, 0x20000, v%d' % (TRa + 4, TRa))
        a('v_add_u32 v%d, 0x20000, v%d' % (TRa + 5, TRa + 1))
        a('s_lshl_b32 s%d, s%d, 1' % (sT0, sTB))
        a('s_add_u32 s%d, s%d, s%d' % (sT0, sT0, sTH))
        a('s_lshl_b32 s%d, s%d, 5' % (sT0, sT0))
        a('v_bfe_u32 v%d, v%d, 4, 5' % (B_, vL16))
        a('v_add_u32 v%d, s%d, v%d' % (B_, sT0, B_))
        a('v_lshlrev_b32 v%d, 10, v%d' % (B_, B_))
        a('v_lshl_add_u32 v%d, v%d, 4, v%d' % (B_, A_, B_))
        a('s_lshl_b32 s%d, s%d, 7' % (sT0, sNB))
        a('s_lshl_b32 s%d, s%d, 5' % (sT1, sKQ))
        a('s_add_u32 s%d, s%d, s%d' % (sT0, sT0, sT1))
        a('v_add_u32 v%d, s%d, v%d' % (vO, sT0, B_))

        items = [(st, j, ft) for st in range(9) for j in range(4) for ft in range(2)]
        n = len(items)
        bg = []

        def issue_reads(k):
            st, j, ft = items[k]
            slot = (gs0 + st) % NS
            off = (slot & 1) * 32768 + j * 2048
            addr = TRa + ft + 2 * (slot >> 1)
            dst = PB + 4 * (k % NP)
            a('ds_read_b64_tr_b16 %s, v%d offset:%d' % (vr(dst, 2), addr, off), tag=('f', k))
            a('ds_read_b64_tr_b16 %s, v%d offset:%d' % (vr(dst + 2, 2), addr, off + 512), tag=('f', k))

        def pop_bg(cnt):
            for _ in range(cnt):
                if not bg:
                    return
                tt = bg.pop(0)
                if isinstance(tt[0], list):
                    self.emit_group(tt)
                else:
                    a(tt[0], tag=tt[1])

        pop_att(int(ENV('ATPRE', '160' if self.MERGE else '9999')))
        if self.STAMP2:
            self.stamp(28, self.vST)
        pop_att(int(ENV('ATPRE2', '30')))
        a.wait_vm(('dma', gs0 + 1))
        a('s_barrier')
        for tx, tg in act_loads(2):
            a(tx, tag=tg)
        for st in range(dma_issued, NS):
            for grp in stages[gs0 + st]:
                self.emit_group(grp)
        self.stamp(1, self.vST)
        issued, cur = 0, 0
        opub = None
        for k in range(n):
            st, j, ft = items[k]
            if st != cur:
                cur = st
                if st + 1 < 9:
                    a.wait_vm(('dma', gs0 + st + 1))
                if opub is None and not att:
                    a.wait_vm('st')
                if self.STAMP2:
                    self.stamp(8 + 2 * st, self.vST)
                a('s_barrier')
                if self.STAMP2:
                    self.stamp(9 + 2 * st, self.vST)
                if opub is None and not att:
                    opub = st
                    self.publish(2, self.vPUB)
                    self.stamp(5, self.vST)
                dm = list(stages[gs0 + st + NS - 1]) if st + NS - 1 < 9 else []
                if st == 7:
                    self.epoch_chk_issue()
                if st == 5:
                    assert opub is not None
                    self.flag_issue(2, sTB, 0, 'oflag', shr=1)
                if st == 6:
                    self.flag_wait('oflag')
                    self.stamp(6, self.vST)
                al = []
                if st + 2 < 7:
                    al = act_loads(st + 2)
                elif st == 6:
                    al = act_loads(7) + act_loads(8)[0:]
                if st == 6:
                    bg.extend(al)
                else:
                    bg.extend(al[:1])
                    al = al[1:]
                    for q in range(4):
                        bg.extend(al[q:q + 1])
                        bg.extend(dm[q:q + 1])
                if st == 6:
                    bg.append(('buffer_load_dwordx4 %s, v%d, %s, 0 offen' % (vr(XR, 4), vO, sr(S_X, 4)), 'xr'))
            while issued < n and issued <= k + LA:
                issue_reads(issued)
                issued += 1
            a.wait_vm(('act', st, j))
            a.wait_lg(('f', k))
            acc = ACC + 16 * ft
            c = '0' if (st == 0 and j == 0) else vr(acc, 16)
            a('v_mfma_f32_32x32x16_bf16 %s, %s, %s, %s' % (vr(acc, 16), vr(PB + 4 * (k % NP), 4),
                                                         vr(AB + 16 * (st % 3) + 4 * j, 4), c))
            pop_att(ATR)
            while bg:
                isvm = isinstance(bg[0][0], list) or bg[0][1] is not None
                pop_bg(1)
                if isvm:
                    break
        pop_bg(10 ** 6)
        self.stamp(2, self.vST)
        last = (gs0 + 8) % NS
        rb = 0 if last >= 2 else 65536
        vW = A_
        a('s_mul_i32 s%d, s%d, 24576' % (sT0, sTH))
        a('s_add_u32 s%d, s%d, %d' % (sT0, sT0, rb))
        a('v_add_u32 v%d, s%d, v%d' % (vW, sT0, vL16))
        LBL = [self.lab('red%d' % q) for q in range(4)]
        LE = self.lab('rede')
        for q in range(1, 4):
            a('s_cmp_eq_u32 s%d, %d' % (sKQ, q))
            a.branch('s_cbranch_scc1 ' + LBL[q])
        RES = 64
        assert not att
        for q in range(4):
            if q:
                a.label(LBL[q])
            for o in range(4):
                if o == q:
                    continue
                off = o * 6144 + ((q - o - 1) & 3) * 2048
                a('ds_write_b128 v%d, %s offset:%d' % (vW, vr(ACC + 8 * o, 4), off))
                a('ds_write_b128 v%d, %s offset:%d' % (vW, vr(ACC + 8 * o + 4, 4), off + 1024))
            for e in range(8):
                a('v_mov_b32 v%d, v%d' % (RES + e, ACC + 8 * q + e))
            if q < 3:
                a.branch('s_branch ' + LE)
        a.label(LE)
        a('s_mul_i32 s%d, s%d, 6144' % (sT0, sKQ))
        a('v_add_u32 v%d, s%d, v%d' % (vW, sT0, vW))
        a.wait_lg0()
        a('s_barrier')
        RB = 32
        for sl in range(3):
            a('ds_read_b128 %s, v%d offset:%d' % (vr(RB + 8 * sl, 4), vW, sl * 2048), tag=('r', sl))
            a('ds_read_b128 %s, v%d offset:%d' % (vr(RB + 8 * sl + 4, 4), vW, sl * 2048 + 1024), tag=('r', sl))
        for sl in range(3):
            a.wait_lg(('r', sl))
            for e in range(8):
                a('v_add_f32 v%d, v%d, v%d' % (RES + e, RES + e, RB + 8 * sl + e))
        for e in range(4):
            a('v_permlane32_swap_b32 v%d, v%d' % (RES + e, RES + 4 + e))
        a.wait_vm('xr')
        for e in range(4):
            a('v_lshlrev_b32 v%d, 16, v%d' % (RB + 2 * e, XR + e))
            a('v_and_b32 v%d, s%d, v%d' % (RB + 2 * e + 1, sMASKHI, XR + e))
        for e in range(8):
            a('v_add_f32 v%d, v%d, v%d' % (RES + e, RES + e, RB + e))
        for e in range(4):
            a('v_cvt_pk_bf16_f32 v%d, v%d, v%d' % (RB + 8 + e, RES + 2 * e, RES + 2 * e + 1))
        a('buffer_store_dwordx4 %s, v%d, %s, 0 offen' % (vr(RB + 8, 4), vO, sr(S_OUT, 4)), tag='st')
        self.epoch_clear()
        self.stamp(3, self.vST)
        if self.STAMPS:
            a.wait_vm0()
            self.stamp(4, self.vST)


HEADER = open('cdna_kernels/%s.s.ref' % NAME).read().split('; Override launch geometry')[0]

KD = '''.section .rodata,"a"
.p2align 6
.amdhsa_kernel %s
  .amdhsa_next_free_vgpr 256
  .amdhsa_next_free_sgpr 102
  .amdhsa_accum_offset 256
  .amdhsa_group_segment_fixed_size 0
  .amdhsa_kernarg_size 80
  .amdhsa_user_sgpr_count 2
  .amdhsa_user_sgpr_kernarg_segment_ptr 1
  .amdhsa_system_sgpr_workgroup_id_x 1
.end_amdhsa_kernel
'''


def build():
    g = Gen()
    g.prologue()
    g.phase1([g.p3_stage_fn(st) for st in range(g.NS - 1)])
    g.KIDX = 1
    g.attn_pass1()
    g.KIDX = 2
    g.phase3(10, g.NS - 1)
    g.a.label('L_end')
    g.a('s_endpgm')
    g.a.raw('L_kend:')
    out = HEADER
    out += '; @launch grid=(256,1,1) block=(512,1,1) lds=163840\n'
    out += '.amdgcn_target "amdgcn-amd-amdhsa--gfx950"\n'
    out += '.text\n.globl %s\n.p2align 8\n.type %s,@function\n%s:\n' % (KNAME, KNAME, KNAME)
    out += g.a.text() + KD % KNAME
    return out


if __name__ == '__main__':
    dst = sys.argv[1] if len(sys.argv) > 1 else 'cdna_kernels/%s.s' % NAME
    txt = build()
    if ENV('ALIGN', '4') != '0':
        from alignpass import align
        txt, nn = align(txt, int(ENV('ALIGN', '4')))
        print('alignment nops:', nn)
    open(dst, 'w').write(txt)
    print('wrote', dst, len(txt), 'bytes')
```

```python
import math
import os
import struct
import sys
from asmlib import Asm, vr, sr

NAME = 'parallel_sum__sliding_block__glu_gated_geglu__prompt'
KNAME = NAME + '_kernel'
ENV = os.environ.get

T, D, F, H = 2048, 512, 1792, 32
WS_QKV = 0
WS_ACT = 6 << 20
WS_FLAG = 16 << 20
WS_FLAGH = WS_FLAG + 8192
WS_BYTES = WS_FLAGH + 8192
NACT = 144

S_X, S_WQKV, S_GATE, S_UP, S_DOWN, S_WO, S_OUT, S_WS, S_DBG = 4, 8, 12, 16, 20, 24, 28, 32, 36
sW, sMB, sQUAD, sI, sR, sC, sWB = 40, 41, 42, 43, 44, 45, 46
sCOL = 47
sST = 51
sCNT = 55
sT0, sT1, sT2, sT3 = 56, 57, 58, 59
sONES, sMASKHI, sK0, sK1, sQS = 60, 61, 62, 63, 64
sTB, sNB, sKQ, sTH = 65, 66, 67, 68
sACT, sACTO, sWD, sWOo, sWB3 = 69, 70, 71, 72, 73
sQB, sHEAD = 74, 75
sM = 76
sEPOCH, sCG4 = 94, 95
SCALE = 0.25 * math.log2(math.e)


def f32(x):
    return '0x%08x' % struct.unpack('<I', struct.pack('<f', x))[0]


class Gen:
    STAMPS = bool(ENV('STAMPS'))
    STAMP2 = bool(ENV('STAMP2'))

    def __init__(self):
        self.a = Asm()
        self.sc = ' sc1'
        self.uid = 0
        self.KIDX = 0

    def lab(self, s):
        self.uid += 1
        return 'L_%s_%d' % (s, self.uid)

    def stamp(self, i, vtmp):
        if not self.STAMPS:
            return
        a = self.a
        a('s_memrealtime s[98:99]')
        a('s_memtime s[96:97]')
        a('s_lshl_b32 s100, s2, 3')
        a('s_add_u32 s100, s100, s%d' % sW)
        a('s_lshl_b32 s100, s100, 8')
        a('s_add_u32 s100, s100, 0x%x' % ((32 << 20) + self.KIDX * (1 << 20)))
        a.wait_lg0()
        a('v_mov_b32 v%d, s98' % vtmp)
        a('buffer_store_dword v%d, off, %s, s100 offset:%d' % (vtmp, sr(S_WS, 4), 4 * i), tag='stamp')
        a('s_nop 1')
        a('v_mov_b32 v%d, s96' % vtmp)
        a('buffer_store_dword v%d, off, %s, s100 offset:%d' % (vtmp, sr(S_WS, 4), 128 + 4 * i), tag='stamp')

    def prio_young(self, p):
        L = self.lab('pr')
        self.a.raw('    s_cmp_lt_u32 s%d, 4' % sW)
        self.a.raw('    s_cbranch_scc1 ' + L)
        self.a.raw('    s_setprio %d' % p)
        self.a.raw(L + ':')

    def lane(self, v):
        self.a('v_mbcnt_lo_u32_b32 v%d, -1, 0' % v)
        self.a('v_mbcnt_hi_u32_b32 v%d, -1, v%d' % (v, v))

    XB = 0
    ACC = (128, 160)
    POOL = 192
    NP = 8
    LA = int(ENV('LA', '6'))
    TMP = 224
    vTR = 243
    vL16 = 250
    vSV = 251
    vDQ, vDG = 252, 253
    vFL = 254
    vK0 = 246
    vEP = 247
    XLDS = 32768
    MAP = int(ENV('MAP', '8'))
    NS = int(ENV('NS', '5'))

    def srd(self, srd, p, n):
        a = self.a
        a('s_mov_b32 s%d, s%d' % (srd, p))
        a('s_and_b32 s%d, s%d, 0xffff' % (srd + 1, p + 1))
        a('s_mov_b32 s%d, 0x%x' % (srd + 2, n))
        a('s_mov_b32 s%d, 0x00020000' % (srd + 3))

    def prologue(self):
        a = self.a
        t = self.TMP
        L = self.vL16 + 1
        a('s_cmp_ge_u32 s2, 256')
        a.branch('s_cbranch_scc1 L_end')
        if self.STAMPS:
            a('s_memrealtime s[%d:%d]' % (sK0, sK0 + 1))
        a('s_load_dwordx16 s[76:91], s[0:1], 0')
        a('s_load_dwordx4 s[92:95], s[0:1], 64')
        if ENV('CODEPF', '0') == '1':
            a('s_getpc_b64 s[%d:%d]' % (sT2, sT3))
            a.raw('L_pc:')
            a('s_sub_u32 s%d, s%d, L_pc-%s' % (sT2, sT2, KNAME))
            a('s_subb_u32 s%d, s%d, 0' % (sT3, sT3))
            a('v_lshlrev_b32 v1, 7, v0')
            a('v_min_u32 v1, L_kend-%s-4, v1' % KNAME)
            a('global_load_dword v%d, v1, s[%d:%d]' % (self.ACC[0] + 31, sT2, sT3), tag='warm')
        a('v_lshrrev_b32 v1, 6, v0')
        a('v_and_b32 v%d, 63, v0' % L)
        a('v_readfirstlane_b32 s%d, v1' % sW)
        a('s_and_b32 s%d, s2, 7' % sT0)
        a('s_lshr_b32 s%d, s2, 3' % sT1)
        if self.MAP == 8:
            a('s_and_b32 s%d, s%d, 1' % (sT2, sT0))
            a('s_lshl_b32 s%d, s%d, 3' % (sT2, sT2))
            a('s_and_b32 s%d, s%d, 7' % (sT3, sT1))
            a('s_add_u32 s%d, s%d, s%d' % (sMB, sT2, sT3))
            a('s_lshr_b32 s%d, s%d, 1' % (sQUAD, sT0))
            a('s_lshr_b32 s%d, s%d, 3' % (sI, sT1))
        else:
            a('s_and_b32 s%d, s%d, 3' % (sT2, sT0))
            a('s_lshl_b32 s%d, s%d, 2' % (sT2, sT2))
            a('s_and_b32 s%d, s%d, 3' % (sT3, sT1))
            a('s_add_u32 s%d, s%d, s%d' % (sMB, sT2, sT3))
            a('s_lshr_b32 s%d, s%d, 2' % (sT2, sT0))
            a('s_lshl_b32 s%d, s%d, 1' % (sT2, sT2))
            a('s_lshr_b32 s%d, s%d, 4' % (sT3, sT1))
            a('s_add_u32 s%d, s%d, s%d' % (sQUAD, sT2, sT3))
            a('s_bfe_u32 s%d, s%d, 0x20002' % (sI, sT1))
        a('s_lshl_b32 s%d, s%d, 2' % (sT2, sT0))
        a('s_and_b32 s%d, s%d, 3' % (sT3, sT1))
        a('s_add_u32 s%d, s%d, s%d' % (sTB, sT2, sT3))
        a('s_lshr_b32 s%d, s%d, 2' % (sNB, sT1))
        a('v_lshlrev_b32 v%d, 4, v%d' % (self.vL16, L))
        a('s_lshl_b32 s%d, s%d, 7' % (sT0, sMB))
        a('s_lshl_b32 s%d, s%d, 4' % (sT1, sW))
        a('s_add_u32 s%d, s%d, s%d' % (sT0, sT0, sT1))
        a('s_lshl_b32 s%d, s%d, 10' % (sT0, sT0))
        a('s_lshl_b32 s%d, s%d, 14' % (sT1, sW))
        a('s_waitcnt lgkmcnt(0)')
        self.srd(S_X, 76, T * D * 2)
        for n in range(16):
            a('v_xor_b32 v%d, %d, v%d' % (t + (n & 1), 16 * n, self.vL16))
            a('s_add_u32 s%d, s%d, %d' % (sT2, sT0, 1024 * n))
            a('s_add_u32 m0, s%d, %d' % (sT1, self.XLDS + 1024 * n))
            a('buffer_load_dwordx4 v%d, %s, s%d offen lds' % (t + (n & 1), sr(S_X, 4), sT2), tag=('xdma', n))
        for srd, p, n in ((S_WQKV, 78, D * 3 * D * 2), (S_WO, 80, D * D * 2), (S_GATE, 84, D * F * 2),
                          (S_UP, 86, D * F * 2), (S_DOWN, 88, F * D * 2), (S_OUT, 90, T * D * 2),
                          (S_DBG, 92, 256), (S_WS, 94, (64 << 20) if self.STAMPS else WS_BYTES)):
            self.srd(srd, p, n)
        self.stamp(0, t + 8)
        if self.STAMPS:
            a('v_mov_b32 v%d, s%d' % (t + 8, sK0))
            a('buffer_store_dword v%d, off, %s, s100 offset:%d' % (t + 8, sr(S_WS, 4), 4 * 31), tag='stamp')
        a('s_and_b32 s%d, s%d, 3' % (sR, sW))
        a('s_lshr_b32 s%d, s%d, 2' % (sC, sW))
        a('s_lshl_b32 s%d, s%d, 10' % (sWB, sW))
        a('s_mov_b32 s%d, 0x3f803f80' % sONES)
        a('s_mov_b32 s%d, 0xffff0000' % sMASKHI)
        a('s_lshl_b32 s%d, s%d, 2' % (sCG4, sQUAD))
        a('s_add_u32 s%d, s%d, s%d' % (sCG4, sCG4, sI))
        a('s_lshl_b32 s%d, s%d, 2' % (sCG4, sCG4))
        self.epoch_publish(self.vEP)
        I, G, A_, B_, C_ = t + 2, t + 3, t + 4, t + 5, t + 6
        a('v_and_b32 v%d, 15, v%d' % (I, L))
        a('v_lshrrev_b32 v%d, 4, v%d' % (G, L))
        LA_ = self.ACC[1]
        a('s_add_u32 s%d, s%d, %d' % (sT0, sT1, self.XLDS))
        a('v_lshlrev_b32 v%d, 10, v%d' % (A_, I))
        a('v_add_u32 v%d, s%d, v%d' % (A_, sT0, A_))
        a('v_and_b32 v%d, 3, v%d' % (B_, I))
        a('v_xor_b32 v%d, v%d, v%d' % (B_, B_, G))
        a('v_lshl_add_u32 v%d, v%d, 4, v%d' % (A_, B_, A_))
        a('v_lshrrev_b32 v%d, 2, v%d' % (B_, I))
        for q in range(4):
            a('v_xor_b32 v%d, %d, v%d' % (C_, q, B_))
            a('v_lshl_add_u32 v%d, v%d, 6, v%d' % (LA_ + q, C_, A_))
        a('s_lshl_b32 s%d, s%d, 15' % (sT0, sR))
        a('s_add_u32 s%d, s%d, %d' % (sT0, sT0, self.XLDS))
        a('v_and_b32 v%d, 31, v%d' % (A_, L))
        a('v_lshlrev_b32 v%d, 10, v%d' % (A_, A_))
        a('v_add_u32 v%d, s%d, v%d' % (A_, sT0, A_))
        a('v_lshrrev_b32 v%d, 5, v%d' % (B_, L))
        a('v_xor_b32 v%d, v%d, v%d' % (C_, B_, I))
        a('v_lshl_add_u32 v%d, v%d, 4, v%d' % (LA_ + 4, C_, A_))
        a('v_lshrrev_b32 v%d, 2, v%d' % (A_, I))
        a('v_lshl_add_u32 v%d, v%d, 3, v%d' % (A_, B_, A_))
        a('v_lshlrev_b32 v%d, 7, v%d' % (A_, A_))
        a('v_and_b32 v%d, 1, v%d' % (C_, G))
        a('v_lshl_add_u32 v%d, v%d, 5, v%d' % (A_, C_, A_))
        a('v_lshlrev_b32 v%d, 16, v%d' % (t + 7, C_))
        a('v_lshl_add_u32 v%d, v%d, 9, v%d' % (t + 7, B_, t + 7))
        a('v_lshl_add_u32 v%d, v%d, 4, v%d' % (t + 7, I, t + 7))
        a('v_and_b32 v%d, 3, v%d' % (C_, I))
        a('v_lshl_add_u32 v%d, v%d, 3, v%d' % (A_, C_, A_))
        a('v_bfe_u32 v%d, v%d, 3, 1' % (C_, I))
        a('v_xor_b32 v%d, s%d, v%d' % (C_, sC, C_))
        a('v_lshl_add_u32 v%d, v%d, 6, v%d' % (self.vTR, C_, A_))
        a('v_add_u32 v%d, 0x10000, v%d' % (self.vTR + 1, self.vTR))
        a('v_add_u32 v%d, 0x20000, v%d' % (self.vTR + 2, self.vTR))
        a('v_lshrrev_b32 v%d, 3, v%d' % (A_, L))
        a('v_and_b32 v%d, 7, v%d' % (B_, L))
        a('v_bfe_u32 v%d, v%d, 1, 1' % (C_, A_))
        a('v_lshlrev_b32 v%d, 2, v%d' % (C_, C_))
        a('v_xor_b32 v%d, v%d, v%d' % (B_, B_, C_))
        a('v_lshlrev_b32 v%d, 4, v%d' % (B_, B_))
        a('s_lshl_b32 s%d, s%d, 3' % (sT0, sW))
        a('v_add_u32 v%d, s%d, v%d' % (A_, sT0, A_))
        a('s_movk_i32 s%d, 3072' % sT0)
        a('s_movk_i32 s%d, 3584' % sT1)
        a('v_mad_u32_u24 v%d, v%d, s%d, v%d' % (self.vDQ, A_, sT0, B_))
        a('v_mad_u32_u24 v%d, v%d, s%d, v%d' % (self.vDG, A_, sT1, B_))
        a('v_mov_b32 v%d, v%d' % (t + 9, L))
        a('v_mov_b32 v%d, v%d' % (self.vSV, t + 7))

    def epoch_publish(self, vt):
        a = self.a
        L = self.lab('noep')
        a('s_or_b32 s%d, s2, s%d' % (sT0, sW))
        a('s_cmp_lg_u32 s%d, 0' % sT0)
        a.branch('s_cbranch_scc1 ' + L)
        a('s_memrealtime s[%d:%d]' % (sT2, sT3))
        a('s_waitcnt lgkmcnt(0)')
        a('s_or_b32 s%d, s%d, 1' % (sT2, sT2))
        a('v_mov_b32 v%d, s%d' % (vt, sT2))
        n = len(a.vm)
        a('buffer_store_dword v%d, off, %s, 0 sc0 sc1' % (vt, sr(S_DBG, 4)))
        del a.vm[n:]
        a.label(L)

    def epoch_issue(self, vt):
        self.a('buffer_load_dword v%d, off, %s, 0 sc0 sc1' % (vt, sr(S_DBG, 4)), tag='epoch')

    def epoch_get(self, vt):
        a = self.a
        Lr, Ld = self.lab('epr'), self.lab('epd')
        a.wait_vm('epoch')
        a('s_mov_b32 s%d, 0' % sCNT)
        a.label(Lr)
        a('v_readfirstlane_b32 s%d, v%d' % (sEPOCH, vt))
        a('s_cmp_lg_u32 s%d, 0' % sEPOCH)
        a.branch('s_cbranch_scc1 ' + Ld)
        a('s_sleep 4')
        n = len(a.vm)
        a('buffer_load_dword v%d, off, %s, 0 sc0 sc1' % (vt, sr(S_DBG, 4)))
        del a.vm[n:]
        a('s_waitcnt vmcnt(0)')
        a('s_add_u32 s%d, s%d, 1' % (sCNT, sCNT))
        a('s_cmp_lt_u32 s%d, 0x100000' % sCNT)
        a.branch('s_cbranch_scc1 ' + Lr)
        a.label(Ld)

    vEC = 148

    def epoch_chk_issue(self):
        a = self.a
        L = self.lab('noec')
        a('s_or_b32 s%d, s2, s%d' % (sT2, sW))
        a('s_cmp_lg_u32 s%d, 0' % sT2)
        a.branch('s_cbranch_scc1 ' + L)
        self._ec_loads()
        a.label(L)

    def _ec_loads(self):
        a = self.a
        v = self.vEC
        a('v_lshrrev_b32 v%d, 8, v%d' % (v, self.vL16))
        a('v_lshlrev_b32 v%d, 7, v%d' % (v, v))
        a('v_bfe_u32 v%d, v%d, 4, 4' % (v + 1, self.vL16))
        a('v_lshl_add_u32 v%d, v%d, 2, v%d' % (v, v + 1, v))
        a('v_add_u32 v%d, 0x%x, v%d' % (v, WS_FLAG + 4096, v))
        n = len(a.vm)
        for q in range(4):
            a('buffer_load_dword v%d, v%d, %s, 0 offen offset:%d sc0 sc1' % (v + 1 + q, v, sr(S_WS, 4), 512 * q))
        del a.vm[n:]

    def epoch_clear(self):
        a = self.a
        v = self.vEC
        L, Lr, Lc = self.lab('noclr'), self.lab('ecr'), self.lab('ecc')
        a('s_or_b32 s%d, s2, s%d' % (sT2, sW))
        a('s_cmp_lg_u32 s%d, 0' % sT2)
        a.branch('s_cbranch_scc1 ' + L)
        a('s_mov_b32 s%d, 0' % sCNT)
        a.label(Lr)
        for q in range(4):
            a('v_xor_b32 v%d, s%d, v%d' % (v + 1 + q, sEPOCH, v + 1 + q))
        a('v_or_b32 v%d, v%d, v%d' % (v + 1, v + 1, v + 2))
        a('v_or_b32 v%d, v%d, v%d' % (v + 3, v + 3, v + 4))
        a('v_or_b32 v%d, v%d, v%d' % (v + 1, v + 1, v + 3))
        a('v_cmp_ne_u32 vcc, 0, v%d' % (v + 1))
        a.branch('s_cbranch_vccz ' + Lc)
        a('s_sleep 4')
        self._ec_loads()
        a('s_waitcnt vmcnt(0)')
        a('s_add_u32 s%d, s%d, 1' % (sCNT, sCNT))
        a('s_cmp_lt_u32 s%d, 0x100000' % sCNT)
        a.branch('s_cbranch_scc1 ' + Lr)
        a.label(Lc)
        a('v_mov_b32 v%d, 0' % v)
        n = len(a.vm)
        a('buffer_store_dword v%d, off, %s, 0 sc0 sc1' % (v, sr(S_DBG, 4)))
        del a.vm[n:]
        a.label(L)

    def publish(self, kind, vt):
        a = self.a
        L = self.lab('nopub')
        a('s_cmp_lg_u32 s%d, 0' % sW)
        a.branch('s_cbranch_scc1 ' + L)
        a('s_lshl_b32 s%d, s%d, 7' % (sT2, sMB))
        a('s_add_u32 s%d, s%d, s%d' % (sT2, sT2, sCG4))
        a('s_add_u32 s%d, s%d, 0x%x' % (sT2, sT2, WS_FLAG + kind * 2048))
        a('v_mov_b32 v%d, s%d' % (vt, sEPOCH))
        a('s_mov_b64 exec, 1')
        n = len(a.vm)
        a('buffer_store_dword v%d, off, %s, s%d sc0 sc1' % (vt, sr(S_WS, 4), sT2))
        del a.vm[n:]
        a('s_mov_b64 exec, -1')
        a.label(L)

    def flag_issue(self, kind, smb, nback, tag, shr=0):
        a = self.a
        va = self.vFL
        if shr:
            a('s_lshr_b32 s%d, s%d, %d' % (sT3, smb, shr))
            smb = sT3
        a('v_lshrrev_b32 v%d, 8, v%d' % (va + 1, self.vL16))
        a('v_min_u32 v%d, %d, v%d' % (va + 1, nback, va + 1))
        a('v_sub_u32 v%d, s%d, v%d' % (va + 1, smb, va + 1))
        a('v_max_i32 v%d, 0, v%d' % (va + 1, va + 1))
        a('v_bfe_u32 v%d, v%d, 4, 4' % (va, self.vL16))
        a('v_lshlrev_b32 v%d, 2, v%d' % (va, va))
        a('v_lshl_add_u32 v%d, v%d, 7, v%d' % (va, va + 1, va))
        a('v_add_u32 v%d, 0x%x, v%d' % (va, WS_FLAG + kind * 2048, va))
        a('buffer_load_dword v%d, v%d, %s, 0 offen sc0 sc1' % (va + 1, va, sr(S_WS, 4)), tag=tag)

    def flag_wait(self, tag):
        a = self.a
        va = self.vFL
        Lr, Ld = self.lab('flr'), self.lab('fld')
        a.wait_vm(tag)
        a('s_mov_b32 s%d, 0' % sCNT)
        a.label(Lr)
        a('v_cmp_ne_u32 vcc, s%d, v%d' % (sEPOCH, va + 1))
        a.branch('s_cbranch_vccz ' + Ld)
        a('s_sleep 1')
        n = len(a.vm)
        a('buffer_load_dword v%d, v%d, %s, 0 offen sc0 sc1' % (va + 1, va, sr(S_WS, 4)))
        del a.vm[n:]
        a('s_waitcnt vmcnt(0)')
        a('s_add_u32 s%d, s%d, 1' % (sCNT, sCNT))
        a('s_cmp_lt_u32 s%d, 0x100000' % sCNT)
        a.branch('s_cbranch_scc1 ' + Lr)
        a.label(Ld)

    def p1_scalar_setup(self, typ):
        a = self.a
        a('s_lshl_b32 s%d, s%d, 2' % (sT3, sMB))
        a('s_add_u32 s%d, s%d, s%d' % (sT3, sT3, sR))
        a('s_mul_i32 s%d, s%d, %d' % (sT2, sT3, NACT))
        a('s_lshl_b32 s%d, s%d, 1' % (sT1, sC))
        a('s_add_u32 s%d, s%d, s%d' % (sT2, sT2, sT1))
        a('s_mul_i32 s%d, s%d, 7' % (sT0, sQUAD))
        if typ == 'A':
            a('s_lshl_b32 s%d, s%d, 10' % (sCOL, sI))
            a('s_lshl_b32 s%d, s%d, 7' % (sM, sQUAD))
            a('s_add_u32 s%d, s%d, s%d' % (sCOL, sCOL, sM))
            a('s_add_u32 s%d, s%d, 512' % (sCOL, sCOL))
            a('s_lshl_b32 s%d, s%d, 5' % (sST, sI))
            a('s_lshl_b32 s%d, s%d, 2' % (sM, sQUAD))
            a('s_add_u32 s%d, s%d, s%d' % (sST, sST, sM))
            a('s_add_u32 s%d, s%d, 16' % (sST, sST))
            a('s_add_u32 s%d, s%d, s%d' % (sST, sST, sT1))
            a('s_lshl_b32 s%d, s%d, 6' % (sST, sST))
            a('s_add_u32 s%d, s%d, s%d' % (sST, sST, sT3))
            a('s_lshl_b32 s%d, s%d, 10' % (sST, sST))
            a('s_lshl_b32 s%d, s%d, 1' % (sM, sI))
            a('s_add_u32 s%d, s%d, s%d' % (sT0, sT0, sM))
            for k in range(2):
                a('s_add_u32 s%d, s%d, %d' % (sM, sT0, k))
                a('s_lshl_b32 s%d, s%d, 7' % (sCOL + 1 + k, sM))
                a('s_lshl_b32 s%d, s%d, 2' % (sM, sM))
                a('s_add_u32 s%d, s%d, s%d' % (sM, sM, sT2))
                a('s_lshl_b32 s%d, s%d, 10' % (sM, sM))
                a('s_add_u32 s%d, s%d, 0x%x' % (sST + 1 + k, sM, WS_ACT))
            a('s_cmp_eq_u32 s%d, 0' % sI)
            a('s_cselect_b32 s%d, %s, 1.0' % (sQS, f32(SCALE)))
        else:
            for ty in range(3):
                a('s_lshl_b32 s%d, s%d, 7' % (sM, sQUAD))
                a('s_add_u32 s%d, s%d, %d' % (sCOL + ty, sM, 1024 * ty))
                a('s_lshl_b32 s%d, s%d, 2' % (sM, sQUAD))
                a('s_add_u32 s%d, s%d, %d' % (sM, sM, 32 * ty))
                a('s_add_u32 s%d, s%d, s%d' % (sM, sM, sT1))
                a('s_lshl_b32 s%d, s%d, 6' % (sM, sM))
                a('s_add_u32 s%d, s%d, s%d' % (sM, sM, sT3))
                a('s_lshl_b32 s%d, s%d, 10' % (sST + ty, sM))
            a('s_add_u32 s%d, s%d, 6' % (sM, sT0))
            a('s_lshl_b32 s%d, s%d, 7' % (sCOL + 3, sM))
            a('s_lshl_b32 s%d, s%d, 2' % (sM, sM))
            a('s_add_u32 s%d, s%d, s%d' % (sM, sM, sT2))
            a('s_lshl_b32 s%d, s%d, 10' % (sM, sM))
            a('s_add_u32 s%d, s%d, 0x%x' % (sST + 3, sM, WS_ACT))
            a('s_mov_b32 s%d, %s' % (sQS, f32(SCALE)))

    def warm_p1(self, typ):
        a = self.a
        t = self.TMP
        L = t + 9
        D0 = self.ACC[0] + 28
        R, U = t + 12, t + 13
        t = t + 8
        nrep = 8 // self.MAP
        a('s_bfe_u32 s%d, s2, 0x%x' % (sT0, 0x30003 if self.MAP == 8 else 0x20003))
        a('s_lshl_b32 s%d, s%d, 3' % (sT0, sT0))
        a('s_add_u32 s%d, s%d, s%d' % (sT0, sT0, sW))
        a('s_lshl_b32 s%d, s%d, %d' % (sT0, sT0, 3 if nrep == 1 else 4))
        a('v_and_b32 v%d, 7, v%d' % (R, L))
        a('v_add_u32 v%d, s%d, v%d' % (R, sT0, R))
        a('v_lshrrev_b32 v%d, 3, v%d' % (U, L))
        a('s_movk_i32 s%d, 3072' % sT0)
        a('s_movk_i32 s%d, 3584' % sT1)
        nq, ng = (1, 2) if typ == 'A' else (3, 1)
        cg_ = sCOL + 1 if typ == 'A' else sCOL + 3
        a('v_lshlrev_b32 v%d, 10, v%d' % (t + 6, U))
        a('v_mad_u32_u24 v%d, v%d, s%d, v%d' % (t + 6, R, sT0, t + 6))
        a('v_lshlrev_b32 v%d, 7, v%d' % (t + 7, U))
        a('v_mad_u32_u24 v%d, v%d, s%d, v%d' % (t + 7, R, sT1, t + 7))
        for rep in range(nrep):
            a('s_add_u32 s%d, s%d, %d' % (sT2, sCOL, rep * 8 * 3072))
            a('s_add_u32 s%d, s%d, %d' % (sT3, cg_, rep * 8 * 3584))
            a('s_mov_b64 exec, 0x%x' % ((1 << (8 * nq)) - 1))
            a('buffer_load_dword v%d, v%d, %s, s%d offen' % (D0, t + 6, sr(S_WQKV, 4), sT2), tag='warm')
            a('s_mov_b64 exec, 0x%x' % ((1 << (8 * ng)) - 1))
            a('buffer_load_dword v%d, v%d, %s, s%d offen' % (D0 + 1, t + 7, sr(S_GATE, 4), sT3), tag='warm')
            a('buffer_load_dword v%d, v%d, %s, s%d offen' % (D0 + 2, t + 7, sr(S_UP, 4), sT3), tag='warm')
        a('s_mov_b64 exec, -1')

    def tlb_touch(self, typ):
        a = self.a
        D0 = self.ACC[0] + 27
        for p in range(3 if typ == 'A' else 4):
            a('buffer_load_dword v%d, off, %s, s%d' % (D0, sr(S_WS, 4), sST + p), tag='warm')
        a('s_lshl_b32 s%d, s%d, 16' % (sT0, sTB))
        a('s_lshl_b32 s%d, s%d, 7' % (sT1, sNB))
        a('s_add_u32 s%d, s%d, s%d' % (sT0, sT0, sT1))
        a('buffer_load_dword v%d, off, %s, s%d' % (D0, sr(S_OUT, 4), sT0), tag='warm')
        a('buffer_load_dword v%d, off, %s, s%d' % (D0, sr(S_WO, 4), sT1), tag='warm')
        a('buffer_load_dword v%d, off, %s, s%d' % (D0, sr(S_DOWN, 4), sT1), tag='warm')

    def warm_p3(self):
        a = self.a
        t0, t1 = self.vFL, self.vFL + 1
        a('v_lshlrev_b32 v%d, 3, v%d' % (t0, self.vL16))
        a('s_lshl_b32 s%d, s2, 3' % sT2)
        a('s_add_u32 s%d, s%d, s%d' % (sT2, sT2, sW))
        a('s_mul_i32 s%d, s%d, 896' % (sT3, sT2))
        a('s_mov_b64 exec, 0x7f')
        a('buffer_load_dword v%d, v%d, %s, s%d offen' % (t1, t0, sr(S_DOWN, 4), sT3), tag='warm')
        a('s_lshl_b32 s%d, s%d, 8' % (sT3, sT2))
        a('s_mov_b64 exec, 3')
        a('buffer_load_dword v%d, v%d, %s, s%d offen' % (t1, t0, sr(S_WO, 4), sT3), tag='warm')
        a('s_mov_b64 exec, -1')

    def warm_p3_l2(self):
        a = self.a
        t0, t1 = 240, 241
        a('v_lshlrev_b32 v%d, 3, v%d' % (t0, self.vL16))
        a('s_lshr_b32 s%d, s2, 3' % sT2)
        a('s_mul_i32 s%d, s%d, 57344' % (sT3, sT2))
        a('s_mul_i32 s%d, s%d, 7168' % (sM, sW))
        a('s_add_u32 s%d, s%d, s%d' % (sT3, sT3, sM))
        a('s_mov_b32 exec_hi, 0x00ffffff')
        a('buffer_load_dword v%d, v%d, %s, s%d offen' % (t1, t0, sr(S_DOWN, 4), sT3), tag='warm')
        a('s_lshl_b32 s%d, s%d, 14' % (sT3, sT2))
        a('s_lshl_b32 s%d, s%d, 11' % (sM, sW))
        a('s_add_u32 s%d, s%d, s%d' % (sT3, sT3, sM))
        a('s_mov_b64 exec, 0xffff')
        a('buffer_load_dword v%d, v%d, %s, s%d offen' % (t1, t0, sr(S_WO, 4), sT3), tag='warm')
        a('s_mov_b64 exec, -1')

    def dma_p1(self, pidx, st, slot, gs):
        out = []
        for j in range(4):
            out.append((['s_add_u32 s%d, s%d, 0x%x' % (sT0, sCOL + pidx, (256 * st + 64 * j) * 3072),
                         's_add_u32 m0, s%d, 0x%x' % (sWB, slot * 32768 + 8192 * j),
                         'buffer_load_dwordx4 v%d, %s, s%d offen lds' % (self.vDQ, sr(S_WQKV, 4), sT0)], ('dma', gs)))
        return out

    def dma_p2(self, pidx, st, slot, gs):
        out = []
        for j in range(2):
            for pn, srd in enumerate((S_GATE, S_UP)):
                out.append((['s_add_u32 s%d, s%d, 0x%x' % (sT0, sCOL + pidx, (128 * st + 64 * j) * 3584),
                             's_add_u32 m0, s%d, 0x%x' % (sWB, slot * 32768 + 16384 * pn + 8192 * j),
                             'buffer_load_dwordx4 v%d, %s, s%d offen lds' % (self.vDG, sr(srd, 4), sT0)], ('dma', gs)))
        return out

    def emit_group(self, grp):
        texts, tag = grp
        for t in texts[:-1]:
            self.a(t)
        self.a(texts[-1], tag=tag)

    def layernorm(self, mid):
        a = self.a
        LA_ = self.ACC[1]
        R0 = 0
        S = self.ACC[0]
        t = self.TMP
        for k in range(8):
            a('v_mov_b32 v%d, 0' % (S + k))
        a.wait_vm(('xdma', 15))
        self.stamp(28, self.POOL)
        for s in range(16):
            a('ds_read_b128 %s, v%d offset:%d' % (vr(R0 + 4 * s, 4), LA_ + (s & 3), (s >> 2) * 256), tag=('x', s))
        for s in range(16):
            if s % 2 == 0:
                a.wait_lg(('x', s + 1))
            for d in range(4):
                x = R0 + 4 * s + d
                a('v_dot2c_f32_bf16 v%d, s%d, v%d' % (S + d, sONES, x))
                a('v_dot2c_f32_bf16 v%d, v%d, v%d' % (S + 4 + d, x, x))
        if ENV('MIDPOS', '1') == '0':
            mid()
        for q in range(2):
            b = S + 4 * q
            a('v_add_f32 v%d, v%d, v%d' % (b, b, b + 1))
            a('v_add_f32 v%d, v%d, v%d' % (b + 2, b + 2, b + 3))
        M, E = S + 8, S + 9
        a('v_add_f32 v%d, v%d, v%d' % (M, S, S + 2))
        a('v_add_f32 v%d, v%d, v%d' % (E, S + 4, S + 6))
        for sw in ('v_permlane16_swap_b32', 'v_permlane32_swap_b32'):
            for q in range(2):
                a('v_mov_b32 v%d, v%d' % (S + q, M + q))
            for q in range(2):
                a('%s v%d, v%d' % (sw, M + q, S + q))
            for q in range(2):
                a('v_add_f32 v%d, v%d, v%d' % (M + q, M + q, S + q))
        a('s_mov_b32 s%d, %s' % (sT0, f32(1.0 / 512)))
        a('s_mov_b32 s%d, %s' % (sT1, f32(1e-5)))
        a('v_mul_f32 v%d, s%d, v%d' % (M, sT0, M))
        a('v_mul_f32 v%d, s%d, v%d' % (E, sT0, E))
        a('v_fma_f32 v%d, -v%d, v%d, v%d' % (E, M, M, E))
        a('v_max_f32 v%d, 0, v%d' % (E, E))
        a('v_cvt_pk_bf16_f32 v%d, v%d, v%d' % (S, M, E))
        a('v_lshlrev_b32 v%d, 16, v%d' % (M, S))
        a('v_and_b32 v%d, s%d, v%d' % (E, sMASKHI, S))
        a('v_add_f32 v%d, s%d, v%d' % (E, sT1, E))
        a('v_cvt_pk_bf16_f32 v%d, v%d, v%d' % (S, E, E))
        a('v_and_b32 v%d, s%d, v%d' % (E, sMASKHI, S))
        a('v_sqrt_f32 v%d, v%d' % (E, E))
        a('v_cvt_pk_bf16_f32 v%d, v%d, v%d' % (S, E, E))
        a('v_and_b32 v%d, s%d, v%d' % (E, sMASKHI, S))
        a('v_rcp_f32 v%d, v%d' % (E, E))
        a('v_mul_f32 v%d, v%d, v%d' % (M, M, E))
        a('v_sub_f32 v%d, 0, v%d' % (M, M))
        for s in range(16):
            for d in range(4):
                x = R0 + 4 * s + d
                tt = t + 2 * d
                a('v_lshlrev_b32 v%d, 16, v%d' % (tt, x))
                a('v_and_b32 v%d, s%d, v%d' % (tt + 1, sMASKHI, x))
            for d in range(4):
                tt = t + 2 * d
                a('v_fma_f32 v%d, v%d, v%d, v%d' % (tt, tt, E, M))
                a('v_fma_f32 v%d, v%d, v%d, v%d' % (tt + 1, tt + 1, E, M))
            for d in range(4):
                tt = t + 2 * d
                a('v_cvt_pk_bf16_f32 v%d, v%d, v%d' % (R0 + 4 * s + d, tt, tt + 1))
            a('ds_write_b128 v%d, %s offset:%d' % (LA_ + (s & 3), vr(R0 + 4 * s, 4), (s >> 2) * 256))
        if ENV('MIDPOS', '1') == '1':
            mid()
        for q in range(1, 8):
            a('v_xor_b32 v%d, %d, v%d' % (LA_ + 4 + q, q << 5, LA_ + 4))
        a.wait_lg0()
        self.stamp(29, self.POOL)
        a('s_barrier')
        self.stamp(30, self.POOL)
        for s in range(32):
            a('ds_read_b128 %s, v%d offset:%d' % (vr(4 * s, 4), LA_ + 4 + (s & 7), (s >> 3) * 256), tag=('xf', s))
        a.wait_lg0()
        a.wait_vm(('dma', 0))
        a('s_barrier')

    def epi_qkv(self, acc, pidx, isv, scale):
        out = []
        if scale:
            for r in range(16):
                out.append(('v_mul_f32 v%d, s%d, v%d' % (acc + r, sQS, acc + r), None))
        for tl in range(2):
            q = self.TMP + 4 * tl
            for e in range(4):
                c = acc + 8 * tl + 2 * e
                out.append(('v_cvt_pk_bf16_f32 v%d, v%d, v%d' % (q + e, c, c + 1), None))
            if isv:
                out.append(('buffer_store_dwordx4 %s, v%d, %s, s%d offen offset:%d%s' % (
                    vr(q, 4), self.vSV, sr(S_WS, 4), sST + pidx, 256 * tl, self.sc), 'st'))
            else:
                so = 's%d' % (sST + pidx)
                if tl == 1:
                    out.append(('s_add_u32 s%d, s%d, 0x10000' % (sT1, sST + pidx), None))
                    so = 's%d' % sT1
                out.append(('buffer_store_dwordx4 %s, v%d, %s, %s offen%s' % (
                    vr(q, 4), self.vL16, sr(S_WS, 4), so, self.sc), 'st'))
        return out

    def epi_geglu(self, acc, pidx):
        out = []
        for tl in range(2):
            q = self.TMP + 4 * tl
            for hf in range(2):
                g0 = acc + 8 * tl + 4 * hf
                u0 = g0 + 16
                t0 = self.TMP + 8 + 4 * hf
                blk = []
                for e in range(4):
                    blk.append('v_mul_f32 v%d, v%d, v%d' % (t0 + e, g0 + e, g0 + e))
                for e in range(4):
                    blk.append('v_fma_f32 v%d, v%d, s%d, v%d' % (t0 + e, t0 + e, sK1, self.vK0))
                for e in range(4):
                    blk.append('v_mul_f32 v%d, v%d, v%d' % (t0 + e, t0 + e, g0 + e))
                for e in range(4):
                    blk.append('v_exp_f32 v%d, v%d' % (t0 + e, t0 + e))
                for e in range(4):
                    blk.append('v_mul_f32 v%d, v%d, v%d' % (g0 + e, g0 + e, u0 + e))
                for e in range(4):
                    blk.append('v_add_f32 v%d, 1.0, v%d' % (t0 + e, t0 + e))
                for e in range(4):
                    blk.append('v_rcp_f32 v%d, v%d' % (t0 + e, t0 + e))
                for e in range(4):
                    blk.append('v_mul_f32 v%d, v%d, v%d' % (g0 + e, g0 + e, t0 + e))
                blk.append('v_cvt_pk_bf16_f32 v%d, v%d, v%d' % (q + 2 * hf, g0, g0 + 1))
                blk.append('v_cvt_pk_bf16_f32 v%d, v%d, v%d' % (q + 2 * hf + 1, g0 + 2, g0 + 3))
                out += [(b, None) for b in blk]
            out.append(('buffer_store_dwordx4 %s, v%d, %s, s%d offen offset:%d%s' % (
                vr(q, 4), self.vL16, sr(S_WS, 4), sST + pidx, 1024 * tl, self.sc), 'st'))
        return out

    BGRATE = 4

    def run_passes(self, passes, stages, first_stage_ready, pre_ev, post_ev):
        a = self.a
        items = []
        for p in passes:
            nst = 2 if p['kind'] == 'p1' else 4
            kper = 32 // nst
            npan = 1 if p['kind'] == 'p1' else 2
            for st in range(nst):
                for ks in range(kper):
                    for pn in range(npan):
                        items.append(dict(gs=p['stages'][st], p=p, s=st * kper + ks, ks=ks, pn=pn))
        n = len(items)
        bg, dq = [], []
        if first_stage_ready == 0:
            dq = list(self.dq0)

        def issue_reads(k):
            it = items[k]
            if it['gs'] > self.covered:
                a.wait_vm(('dma', it['gs']))
                a('s_barrier')
                self.covered = it['gs']
            slot = it['gs'] % self.NS
            off = (slot & 1) * 32768 + it['pn'] * 16384 + it['ks'] * 2048
            addr = self.vTR + (slot >> 1)
            dst = self.POOL + 4 * (k % self.NP)
            a('ds_read_b64_tr_b16 %s, v%d offset:%d' % (vr(dst, 2), addr, off), tag=('f', k))
            a('ds_read_b64_tr_b16 %s, v%d offset:%d' % (vr(dst + 2, 2), addr, off + 512), tag=('f', k))

        def pop_bg(cnt):
            for _ in range(cnt):
                if not bg:
                    return
                t = bg.pop(0)
                a(t[0], tag=t[1])

        cur_gs, issued, kst, later = None, 0, 0, None
        for k in range(n):
            it = items[k]
            p = it['p']
            if it['gs'] != cur_gs:
                cur_gs = it['gs']
                if cur_gs != first_stage_ready:
                    if (cur_gs + 1) in stages:
                        a.wait_vm(('dma', cur_gs + 1))
                        self.covered = cur_gs + 1
                    for f in pre_ev.get(cur_gs, []):
                        f()
                    if self.STAMP2:
                        self.stamp(8 + 2 * cur_gs, 248)
                    a('s_barrier')
                    if self.STAMP2:
                        self.stamp(9 + 2 * cur_gs, 248)
                    for f in post_ev.get(cur_gs, []):
                        f()
                    assert not dq
                    if (cur_gs + self.NS - 1) in stages:
                        dq = list(stages[cur_gs + self.NS - 1])
                    kst = k
            while issued < n and issued <= k + self.LA:
                issue_reads(issued)
                issued += 1
            a.wait_lg(('f', k))
            w = self.POOL + 4 * (k % self.NP)
            acc = p['acc'] + 16 * it['pn']
            x = 4 * it['s']
            c = '0' if it['s'] == 0 else vr(acc, 16)
            if p.get('isv'):
                a('v_mfma_f32_32x32x16_bf16 %s, %s, %s, %s' % (vr(acc, 16), vr(x, 4), vr(w, 4), c))
            else:
                a('v_mfma_f32_32x32x16_bf16 %s, %s, %s, %s' % (vr(acc, 16), vr(w, 4), vr(x, 4), c))
            PR = int(ENV('PRIO', '8'))
            if PR and (k % 16) == 0:
                self.prio_young(1)
            if PR and (k % 16) == PR:
                self.prio_young(0)
            if later is not None and k >= later[0]:
                bg.extend(later[1])
                later = None
            if dq and ((k - kst) % 4 == 1 or cur_gs == 0):
                self.emit_group(dq.pop(0))
            pop_bg(self.BGRATE)
            if (k == n - 1) or (items[k + 1]['p'] is not p):
                assert later is None
                pop_bg(10 ** 6)
                if p['kind'] == 'p1':
                    e = self.epi_qkv(p['acc'], p['pidx'], p.get('isv'), p.get('scale'))
                else:
                    e = self.epi_geglu(p['acc'], p['pidx'])
                later = (k + 3, e)
        bg.extend(later[1])
        return bg

    def phase1(self, p3_stages):
        a = self.a
        vEP = self.vEP
        LB, LJ = self.lab('typeB'), self.lab('p1join')
        a('s_cmp_eq_u32 s%d, 3' % sI)
        a.branch('s_cbranch_scc1 ' + LB)
        vm0 = list(a.vm)
        for typ in ('A', 'B'):
            a.vm = list(vm0)
            if typ == 'B':
                a.label(LB)
            self.p1_scalar_setup(typ)
            if typ == 'A':
                plist = [('p1', 0), ('p2', 1), ('p2', 2)]
            else:
                plist = [('p1', 0), ('p1', 1), ('p1', 2), ('p2', 3)]
            stages, passes, gs = {}, [], 0
            for k, (kind, pidx) in enumerate(plist):
                nst = 2 if kind == 'p1' else 4
                ids = list(range(gs, gs + nst))
                for st, g_ in enumerate(ids):
                    stages[g_] = (self.dma_p1 if kind == 'p1' else self.dma_p2)(pidx, st, g_ % self.NS, g_)
                gs += nst
                passes.append(dict(kind=kind, pidx=pidx, stages=ids,
                                   acc=self.ACC[(k + 1) % 2 if typ == 'A' else k % 2],
                                   isv=(typ == 'B' and k == 2), scale=(k == 0)))
            for k, f in enumerate(p3_stages):
                stages[10 + k] = f((10 + k) % self.NS, 10 + k)
            WL = ENV('WARMLATE', '1')
            if WL == '0':
                self.warm_p1(typ)
            self.epoch_issue(vEP)
            if ENV('TLB', '1') == '1':
                self.tlb_touch(typ)

            def mid():
                for grp in stages[0]:
                    self.emit_group(grp)
                if WL == '1':
                    self.warm_p1(typ)
                if ENV('WARM3', '1') == '2':
                    self.warm_p3()
            self.layernorm(mid)
            for grp in stages[1]:
                self.emit_group(grp)
            self.dq0 = [grp for g_ in range(2, self.NS) for grp in stages[g_]]
            self.stamp(1, self.POOL)
            k0 = -2.0 * math.log2(math.e) * math.sqrt(2.0 / math.pi)
            a('s_mov_b32 s%d, %s' % (sK1, f32(k0 * 0.044715)))
            a('v_mov_b32 v%d, %s' % (self.vK0, f32(k0)))
            self.covered = 0
            self.stamp(2, self.POOL)
            gq = 4 if typ == 'A' else 7
            pre, post = {}, {}
            pre[4] = [lambda: self.epoch_get(vEP)]
            pre.setdefault(gq, []).append(lambda: a.wait_vm('st'))
            post[gq] = [lambda: self.publish(0, vEP)]
            if ENV('WARM3', '1') == '1':
                post.setdefault(int(ENV('W3ST', '3')), []).append(self.warm_p3)
            post.setdefault(11 - self.NS, []).append(self.p3_setup_dma)
            if ENV('W3L2'):
                post.setdefault(int(ENV('W3L2')), []).append(self.warm_p3_l2)
            post.setdefault(9, []).append(lambda: self.flag_issue(0, sMB, 2, 'qflag'))
            if typ == 'A':
                LV, LA2 = self.lab('Av'), self.lab('Ajoin')
                a('s_cmp_eq_u32 s%d, 2' % sI)
                a.branch('s_cbranch_scc1 ' + LV)
                vm1, lg1 = list(a.vm), list(a.lg)
                for isv in (False, True):
                    a.vm, a.lg = list(vm1), list(lg1)
                    self.covered = 0
                    if isv:
                        a.label(LV)
                    passes[0]['isv'] = isv
                    passes[0]['scale'] = not isv
                    bg = self.run_passes(passes[:1], stages, 0, pre, post)
                    for t in bg:
                        a(t[0], tag=t[1])
                    if not isv:
                        a.branch('s_branch ' + LA2)
                a.label(LA2)
                self.stamp(3, self.POOL)
                bg = self.run_passes(passes[1:], stages, None, pre, post)
            else:
                bg = self.run_passes(passes, stages, 0, pre, post)
            self.stamp(4, self.POOL)
            self.flag_wait('qflag')
            self.attn_loads()
            for t in bg:
                a(t[0], tag=t[1])
            self.attn_loads_v()
            self.stamp(5, self.TMP)
            if typ == 'A':
                vmA = list(a.vm)
                a.branch('s_branch ' + LJ)
        tail = lambda q: [t for t in q[q.index('q'):]]
        assert tail(vmA) == tail(a.vm), (tail(vmA), tail(a.vm))
        if len(vmA) > len(a.vm):
            a.vm = vmA
        a.label(LJ)

    def KR(self, j):
        return 104 + 4 * j

    MERGE = ENV('MERGE', '0') == '1'

    def VR(self, j, m):
        if self.MERGE:
            return 144 + 4 * j if j < 4 else 192 + 4 * (j - 4)
        return (192 + 8 * j if j < 3 else 32 + 8 * (j - 3)) + 4 * m

    AQ = 140
    CB = 144
    aTQ, aNEG, aM = 248, 249, 251
    mM, mMJ, mLS = 244, 245, 246
    vPUB = 253
    vST = 103
    sVO = 76

    def v_load(self, j):
        a = self.a
        a('s_mov_b32 exec_lo, 0x0000ffff')
        a('s_mov_b32 exec_hi, 0x0000ffff')
        a('buffer_load_dwordx4 %s, v%d, %s, s%d offen%s' % (vr(self.VR(j, 0), 4), self.vL16, sr(S_WS, 4), self.sVO + j, self.sc), tag=('v', j))
        a('s_mov_b32 exec_lo, 0xffff0000')
        a('s_mov_b32 exec_hi, 0xffff0000')
        a('buffer_load_dwordx4 %s, v%d, %s, s%d offen%s' % (vr(self.VR(j, 1), 4), self.vL16, sr(S_WS, 4), self.sVO + j, self.sc), tag=('v', j))
        a('s_mov_b64 exec, -1')

    def attn_loads(self):
        a = self.a
        vL16 = self.vL16
        a('s_lshl_b32 s%d, s%d, 3' % (sHEAD, sQUAD))
        a('s_lshl_b32 s%d, s%d, 1' % (sT0, sI))
        a('s_add_u32 s%d, s%d, s%d' % (sHEAD, sHEAD, sT0))
        a('s_add_u32 s%d, s%d, s%d' % (sHEAD, sHEAD, sC))
        a('s_lshl_b32 s%d, s%d, 2' % (sQB, sMB))
        a('s_add_u32 s%d, s%d, s%d' % (sQB, sQB, sR))
        a('s_lshl_b32 s%d, s%d, 6' % (sT0, sHEAD))
        a('s_add_u32 s%d, s%d, s%d' % (sT1, sT0, sQB))
        a('s_lshl_b32 s%d, s%d, 10' % (sT1, sT1))
        a('buffer_load_dwordx4 %s, v%d, %s, s%d offen%s' % (vr(self.AQ, 4), vL16, sr(S_WS, 4), sT1, self.sc), tag='q')
        for j in range(8, -1, -1):
            a('s_add_i32 s%d, s%d, %d' % (sT1, sQB, j - 8))
            a('s_max_i32 s%d, s%d, 0' % (sT1, sT1))
            a('s_add_u32 s%d, s%d, s%d' % (sT1, sT1, sT0))
            a('s_lshl_b32 s%d, s%d, 10' % (sT1, sT1))
            a('s_add_u32 s%d, s%d, 0x%x' % (sT2, sT1, 2 << 20))
            a('buffer_load_dwordx4 %s, v%d, %s, s%d offen%s' % (vr(self.KR(j), 4), vL16, sr(S_WS, 4), sT2, self.sc), tag=('k', j))
            a('s_add_u32 s%d, s%d, 0x%x' % (self.sVO + j, sT1, 4 << 20))
    def attn_loads_v(self):
        a = self.a
        vL16 = self.vL16
        for j in range(9):
            if self.MERGE:
                a('buffer_load_dwordx4 %s, v%d, %s, s%d offen%s' % (vr(self.VR(j, 0), 4), vL16, sr(S_WS, 4), self.sVO + j, self.sc), tag=('v', j))
                continue
            for r in range(8):
                a('v_mov_b32 v%d, s%d' % (self.VR(j, 0) + r, sONES))
            self.v_load(j)

    def mask_ops(self, b, diag):
        out = []
        for q in range(4):
            for r in range(4 * q, 4 * q + 4):
                cr = (r & 3) + 8 * (r >> 2)
                out.append('v_cmp_le_i32 %s, %d, v%d' % (sr(86 + 2 * (r % 4), 2), cr, self.aTQ))
            for r in range(4 * q, 4 * q + 4):
                m = sr(86 + 2 * (r % 4), 2)
                if diag:
                    out.append('v_cndmask_b32 v%d, v%d, v%d, %s' % (b + r, self.aNEG, b + r, m))
                else:
                    out.append('v_cndmask_b32 v%d, v%d, v%d, %s' % (b + r, b + r, self.aNEG, m))
        return out

    MK = (80, 81, 82, 83, 92, 93, 94, 95)

    def merge_ops(self, b8, b0, mk=False):
        out = []
        for q in range(4):
            for r in range(4 * q, 4 * q + 4):
                cr = (r & 3) + 8 * (r >> 2)
                out.append('v_cmp_le_i32 %s, %d, v%d' % (sr(86 + 2 * (r % 4), 2), cr, self.aTQ))
            for r in range(4 * q, 4 * q + 4):
                out.append('v_cndmask_b32 v%d, v%d, v%d, %s' % (b8 + r, b0 + r, b8 + r, sr(86 + 2 * (r % 4), 2)))
            if mk:
                for e in range(2):
                    k = self.MK[2 * q + e]
                    out.append('v_cndmask_b32 v%d, 0, v%d, %s' % (k, self.vFFFF, sr(86 + 4 * e, 2)))
                    out.append('v_cndmask_b32 v%d, v%d, -1, %s' % (k, k, sr(88 + 4 * e, 2)))
        return out

    vFFFF = 253

    def h_publish(self):
        a = self.a
        a.wait_vm('st')
        a('s_lshl_b32 s%d, s%d, 7' % (sT2, sQB))
        a('s_lshl_b32 s%d, s%d, 1' % (sT3, sCG4))
        a('s_add_u32 s%d, s%d, s%d' % (sT2, sT2, sT3))
        a('s_lshl_b32 s%d, s%d, 2' % (sT3, sC))
        a('s_add_u32 s%d, s%d, s%d' % (sT2, sT2, sT3))
        a('s_add_u32 s%d, s%d, 0x%x' % (sT2, sT2, WS_FLAGH))
        a('v_mov_b32 v%d, s%d' % (self.vPUB, sEPOCH))
        a('s_mov_b64 exec, 1')
        a('buffer_store_dword v%d, off, %s, s%d sc0 sc1' % (self.vPUB, sr(S_WS, 4), sT2), tag='flagst')
        a('s_mov_b64 exec, -1')

    def h_flag_issue(self):
        a = self.a
        va = self.vFL
        a('s_lshl_b32 s%d, s%d, 8' % (sT3, sTB))
        a('v_lshrrev_b32 v%d, 2, v%d' % (va, self.vL16))
        a('v_add_u32 v%d, s%d, v%d' % (va, sT3, va))
        a('v_add_u32 v%d, 0x%x, v%d' % (va, WS_FLAGH, va))
        a('buffer_load_dword v%d, v%d, %s, 0 offen sc0 sc1' % (va + 1, va, sr(S_WS, 4)), tag='hflag')

    def attn_pass1(self):
        a = self.a
        vL16 = self.vL16
        self.stamp(0, self.vST)
        TQ, NEG, M = self.aTQ, self.aNEG, 96
        a('v_bfe_u32 v%d, v%d, 4, 5' % (TQ, vL16))
        a('v_lshrrev_b32 v%d, 9, v%d' % (NEG, vL16))
        a('v_lshlrev_b32 v%d, 2, v%d' % (NEG, NEG))
        a('v_sub_u32 v%d, v%d, v%d' % (TQ, TQ, NEG))
        a('v_mov_b32 v%d, %s' % (NEG, f32(-1e30)))
        for c in range(3):
            a('v_mov_b32 v%d, v%d' % (M + c, NEG))
        bufs = (0, 16, 160, 176)
        A_, B_, C_, D_ = bufs
        def qk1(j, b):
            a.wait_vm(('k', j))
            a('v_mfma_f32_32x32x16_bf16 %s, %s, %s, 0' % (vr(b, 16), vr(self.KR(j), 4), vr(self.AQ, 4)))
        qk1(8, A_)
        qk1(7, C_)
        qk1(6, D_)
        qk1(0, B_)
        LD = self.lab('p1done')
        def mx(b):
            for q in range(8):
                c = M + (q % 3)
                a('v_max3_f32 v%d, v%d, v%d, v%d' % (c, c, b + 2 * q, b + 2 * q + 1))
        def guarded(j, b):
            a.raw('    s_cmp_lt_u32 s%d, %d' % (sQB, 8 - j))
            a.raw('    s_cbranch_scc1 L_skip%d_%s' % (j, LD))
            mx(b)
            a.raw('L_skip%d_%s:' % (j, LD))
        guarded(7, C_)
        qk1(5, C_)
        self.h_publish()
        guarded(6, D_)
        qk1(4, D_)
        L0 = self.lab('t0ok')
        a.raw('    s_cmp_ge_u32 s%d, 8' % sQB)
        a.raw('    s_cbranch_scc1 ' + L0)
        a.raw('    s_nop 7')
        a.raw('    s_nop 7')
        for r in range(16):
            a.raw('    v_mov_b32 v%d, v%d' % (B_ + r, NEG))
        a.raw(L0 + ':')
        for t in self.merge_ops(A_, B_):
            a(t)
        mx(A_)
        qk1(3, A_)
        qk1(2, B_)
        guarded(5, C_)
        qk1(1, C_)
        guarded(4, D_)
        guarded(3, A_)
        guarded(2, B_)
        guarded(1, C_)
        a('s_nop 11')
        a.flush()
        a('v_max3_f32 v%d, v%d, v%d, v%d' % (M, M, M + 1, M + 2))
        a('v_mov_b32 v%d, v%d' % (M + 1, M))
        a('v_permlane32_swap_b32 v%d, v%d' % (M, M + 1))
        a('v_max_f32 v%d, v%d, v%d' % (M, M, M + 1))
        if self.MERGE:
            a('v_mov_b32 v%d, v%d' % (self.mM, M))
            a('v_mov_b32 v%d, 0' % self.mLS)
            a('v_mov_b32 v%d, 0' % (self.mLS + 1))
        a('v_sub_f32 v%d, 0, v%d' % (self.aM, M))
        a('s_cmp_ge_u32 s%d, 8' % sQB)
        a('s_cselect_b64 %s, -1, 0' % sr(86, 2))
        a('v_cndmask_b32 v%d, v%d, v%d, %s' % (M, NEG, self.aM, sr(86, 2)))
        for r in range(16):
            if not self.MERGE:
                a('v_mov_b32 v%d, v%d' % (self.CB + r, M))
        self.stamp(1, self.vST)
        self.stamp(2, self.vST)

    def attn_pass2_merge(self):
        a = self.a
        out = []
        D1, D2 = 212, 228
        LS, M, MJ = self.mLS, self.mM, self.mMJ
        SB = lambda j: 160 + 16 * (j & 1)
        qk = lambda j: ('v_mfma_f32_32x32x16_bf16 %s, %s, %s, 0' % (vr(SB(j), 16), vr(self.KR(j), 4), vr(self.AQ, 4)), None)
        out.append(qk(0))
        for j in range(9):
            b = SB(j)
            if j + 1 < 9:
                out.append(qk(j + 1))
            if j < 8:
                def mj(j=j):
                    a('s_cmp_ge_u32 s%d, %d' % (sQB, 8 - j))
                    a('s_cselect_b32 s%d, 0, %s' % (sCNT, f32(1e30)))
                    a('v_add_f32 v%d, s%d, v%d' % (MJ, sCNT, M))
                out.append(mj)
            else:
                out.append(('v_mov_b32 v%d, v%d' % (MJ, M), None))
            if j in (0, 8):
                out += [(t, None) for t in self.mask_ops(b, j == 8)]
            for q in range(4):
                for r in range(4 * q, 4 * q + 4):
                    out.append(('v_sub_f32 v%d, v%d, v%d' % (b + r, b + r, MJ), None))
                for r in range(4 * q, 4 * q + 4):
                    out.append(('v_exp_f32 v%d, v%d' % (b + r, b + r), None))
                if q:
                    for r in range(4 * q - 4, 4 * q):
                        out.append(('v_add_f32 v%d, v%d, v%d' % (LS + (r & 1), LS + (r & 1), b + r), None))
                    for r in range(2 * q - 2, 2 * q):
                        out.append(('v_cvt_pk_bf16_f32 v%d, v%d, v%d' % (b + r, b + 2 * r, b + 2 * r + 1), None))
            for r in range(12, 16):
                out.append(('v_add_f32 v%d, v%d, v%d' % (LS + (r & 1), LS + (r & 1), b + r), None))
            for r in range(6, 8):
                out.append(('v_cvt_pk_bf16_f32 v%d, v%d, v%d' % (b + r, b + 2 * r, b + 2 * r + 1), None))
            if j == 0:
                out.append(lambda: a.wait_vm(('v', 8)))
            out.append(('v_mfma_f32_32x32x16_bf16 %s, %s, %s, %s' % (vr(D1, 16), vr(self.VR(j, 0), 4), vr(b, 4), '0' if j == 0 else vr(D1, 16)), None))
            out.append(('v_mfma_f32_32x32x16_bf16 %s, %s, %s, %s' % (vr(D2, 16), vr(self.VR(j, 0), 4), vr(b + 4, 4), '0' if j == 0 else vr(D2, 16)), None))
        T_ = []
        T_.append('v_add_f32 v%d, v%d, v%d' % (LS, LS, LS + 1))
        T_.append('v_mov_b32 v%d, v%d' % (LS + 1, LS))
        T_.append('v_permlane32_swap_b32 v%d, v%d' % (LS, LS + 1))
        T_.append('v_add_f32 v%d, v%d, v%d' % (LS, LS, LS + 1))
        T_.append('v_rcp_f32 v%d, v%d' % (LS, LS))
        T_.append('s_mul_i32 s%d, s%d, %d' % (sT2, sQB, NACT))
        T_.append('s_add_u32 s%d, s%d, s%d' % (sT2, sT2, sHEAD))
        T_.append('s_add_u32 s%d, s%d, 112' % (sT2, sT2))
        T_.append('s_lshl_b32 s%d, s%d, 10' % (sT2, sT2))
        T_.append('s_add_u32 s%d, s%d, 0x%x' % (sT2, sT2, WS_ACT))
        for r in range(8):
            T_.append('v_add_f32 v%d, v%d, v%d' % (D1 + r, D1 + r, D2 + 8 + r))
        for r in range(8):
            T_.append('v_mul_f32 v%d, v%d, v%d' % (D1 + r, D1 + r, LS))
        O = 160
        for r in range(4):
            T_.append('v_cvt_pk_bf16_f32 v%d, v%d, v%d' % (O + r, D1 + 2 * r, D1 + 2 * r + 1))
        out += [(t, None) for t in T_]
        out.append(('buffer_store_dwordx4 %s, v%d, %s, s%d offen%s' % (vr(O, 4), self.vL16, sr(S_WS, 4), sT2, self.sc), 'st'))
        k = int(ENV('MARKAT', '130'))
        out.insert(k, ('MARK', 4))
        out.insert(k + 1, ('MARK', 6))
        return out

    def attn_pass2(self):
        if self.MERGE:
            return self.attn_pass2_merge()
        a = self.a
        out = []
        D1, D2 = 216, 232
        CB = self.CB
        SB = lambda j: 160 + 16 * (j & 1)

        def qk(j, dst=None):
            dst = SB(j) if dst is None else dst
            def f():
                if j >= 1:
                    L = self.lab('cs')
                    a.raw('    s_cmp_lg_u32 s%d, %d' % (sQB, 8 - j))
                    a.raw('    s_cbranch_scc1 ' + L)
                    a.raw('    s_nop 7')
                    for r in range(16):
                        a.raw('    v_mov_b32 v%d, v%d' % (CB + r, self.aM))
                    a.raw('    s_nop 1')
                    a.raw(L + ':')
                a('v_mfma_f32_32x32x16_bf16 %s, %s, %s, %s' % (vr(dst, 16), vr(self.KR(j), 4), vr(self.AQ, 4), vr(CB, 16)))
            return f
        P = 84

        def pv(j, m):
            D = D2 if m else D1
            o = []
            if m == 0:
                o.append(lambda: a.wait_vm(('v', j)))
            o.append(('v_mfma_f32_32x32x16_bf16 %s, %s, %s, %s' % (vr(D, 16), vr(self.VR(j, m), 4), vr(P + 4 * m, 4), '0' if j == 0 else vr(D, 16)), None))
            if m == 1 and j == 2:
                o.append(self.h_flag_issue)
            if m == 1 and j in (4, 6):
                o.append(('MARK', j))
            return o
        P8 = (self.KR(0), self.KR(8))
        b0, b8 = SB(0), SB(1)
        out.append(qk(0))
        out.append(('v_mfma_f32_32x32x16_bf16 %s, %s, %s, 0' % (vr(b8, 16), vr(self.KR(8), 4), vr(self.AQ, 4)), None))
        out.append(('v_mov_b32 v%d, 0xffff' % self.vFFFF, None))
        for r in range(16):
            out.append(('v_add_f32 v%d, v%d, v%d' % (b8 + r, b8 + r, self.aM), None))
        out += [(t, None) for t in self.merge_ops(b8, b0, True)]
        SJ = lambda j: SB(j + 1)
        qk2 = lambda j: qk(j, SJ(j))
        out.append(qk2(1))
        for r in range(16):
            out.append(('v_exp_f32 v%d, v%d' % (b8 + r, b8 + r), None))
        for r in range(8):
            out.append(('v_cvt_pk_bf16_f32 v%d, v%d, v%d' % (P + r, b8 + 2 * r, b8 + 2 * r + 1), None))
        for r in range(8):
            out.append(('v_and_b32 v%d, v%d, v%d' % (P8[r >> 2] + (r & 3), P + r, self.MK[r]), None))
        for r in range(8):
            out.append(('v_xor_b32 v%d, v%d, v%d' % (P + r, P + r, P8[r >> 2] + (r & 3)), None))
        pv8 = [lambda: a.wait_vm(('v', 8))]
        for m in range(2):
            D = D2 if m else D1
            pv8.append(('v_mfma_f32_32x32x16_bf16 %s, %s, %s, %s' % (vr(D, 16), vr(self.VR(8, m), 4), vr(P8[m], 4), vr(D, 16)), None))
        for j in range(1, 8):
            b = SJ(j)
            for r in range(16):
                out.append(('v_exp_f32 v%d, v%d' % (b + r, b + r), None))
                if r == 1:
                    out += pv(j - 1, 0)
                if r == 5:
                    out += pv(j - 1, 1)
                if r == 9 and j < 7:
                    out.append(qk2(j + 1))
                if r == 13 and j == 1:
                    out += pv8[:2]
                if r == 13 and j == 2:
                    out += pv8[2:]
            for r in range(8):
                out.append(('v_cvt_pk_bf16_f32 v%d, v%d, v%d' % (P + r, b + 2 * r, b + 2 * r + 1), None))
        out += pv(7, 0) + pv(7, 1)
        T_ = []
        LS = D1 + 8
        T_.append('s_mul_i32 s%d, s%d, %d' % (sT2, sQB, NACT))
        T_.append('s_add_u32 s%d, s%d, s%d' % (sT2, sT2, sHEAD))
        T_.append('s_add_u32 s%d, s%d, 112' % (sT2, sT2))
        T_.append('s_lshl_b32 s%d, s%d, 10' % (sT2, sT2))
        T_.append('s_add_u32 s%d, s%d, 0x%x' % (sT2, sT2, WS_ACT))
        T_.append('v_add_f32 v%d, v%d, v%d' % (LS, LS, D2))
        T_.append('v_rcp_f32 v%d, v%d' % (LS, LS))
        for r in range(8):
            T_.append('v_add_f32 v%d, v%d, v%d' % (D1 + r, D1 + r, D2 + 8 + r))
        for r in range(8):
            T_.append('v_mul_f32 v%d, v%d, v%d' % (D1 + r, D1 + r, LS))
        O = 160
        for r in range(4):
            T_.append('v_cvt_pk_bf16_f32 v%d, v%d, v%d' % (O + r, D1 + 2 * r, D1 + 2 * r + 1))
        out += [(t, None) for t in T_]
        out.append(('buffer_store_dwordx4 %s, v%d, %s, s%d offen%s' % (vr(O, 4), self.vL16, sr(S_WS, 4), sT2, self.sc), 'st'))
        return out

    v3D = 252

    def p3_setup_dma(self):
        a = self.a
        ROW, P_, S_ = self.vFL, self.vFL + 1, 253
        a('s_and_b32 s%d, s%d, 3' % (sKQ, sW))
        a('s_lshr_b32 s%d, s%d, 2' % (sTH, sW))
        a('v_lshrrev_b32 v%d, 7, v%d' % (ROW, self.vL16))
        a('v_bfe_u32 v%d, v%d, 4, 3' % (P_, self.vL16))
        a('v_bfe_u32 v%d, v%d, 1, 1' % (S_, ROW))
        a('v_lshlrev_b32 v%d, 2, v%d' % (S_, S_))
        a('v_xor_b32 v%d, v%d, v%d' % (P_, P_, S_))
        a('v_lshlrev_b32 v%d, 4, v%d' % (P_, P_))
        a('v_lshrrev_b32 v%d, 2, v%d' % (S_, ROW))
        a('v_and_b32 v%d, 3, v%d' % (ROW, ROW))
        a('v_lshl_add_u32 v%d, v%d, 3, v%d' % (ROW, S_, ROW))
        a('v_lshl_add_u32 v%d, v%d, 10, v%d' % (self.v3D, ROW, P_))
        a('s_lshl_b32 s%d, s%d, 7' % (sT0, sNB))
        a('s_lshl_b32 s%d, s%d, 5' % (sT1, sTH))
        a('s_mul_i32 s%d, s%d, 448' % (sT2, sKQ))
        a('s_add_u32 s%d, s%d, s%d' % (sT2, sT2, sT1))
        a('s_lshl_b32 s%d, s%d, 10' % (sT2, sT2))
        a('s_add_u32 s%d, s%d, s%d' % (sWD, sT2, sT0))
        a('s_lshl_b32 s%d, s%d, 7' % (sT2, sKQ))
        a('s_add_u32 s%d, s%d, s%d' % (sT2, sT2, sT1))
        a('s_lshl_b32 s%d, s%d, 10' % (sT2, sT2))
        a('s_add_u32 s%d, s%d, s%d' % (sWOo, sT2, sT0))
        a('s_lshl_b32 s%d, s%d, 13' % (sT2, sKQ))
        a('s_lshl_b32 s%d, s%d, 12' % (sT1, sTH))
        a('s_add_u32 s%d, s%d, s%d' % (sWB3, sT2, sT1))

    def p3_stage_fn(self, st):
        def f(slot, gs):
            out = []
            for j in range(4):
                base, srd, s_ = (sWD, S_DOWN, st) if st < 7 else (sWOo, S_WO, st - 7)
                so = (64 * s_ + 16 * (j >> 1) + 4 * (j & 1)) * 1024
                out.append((['s_add_u32 s%d, s%d, 0x%x' % (sT0, base, so),
                             's_add_u32 m0, s%d, 0x%x' % (sWB3, slot * 32768 + 1024 * j),
                             'buffer_load_dwordx4 v%d, %s, s%d offen lds' % (self.v3D, sr(srd, 4), sT0)], ('dma', gs)))
            return out
        return f

    def act_touch(self, isO, vt, vd):
        a = self.a
        per_wg, per_w, base = (64, 8, 112 * 1024) if isO else (224, 28, 0)
        a('s_lshr_b32 s%d, s%d, 2' % (sT2, sNB))
        a('s_lshl_b32 s%d, s%d, 1' % (sT3, sTB))
        a('s_add_u32 s%d, s%d, s%d' % (sT2, sT2, sT3))
        a('s_mul_i32 s%d, s%d, %d' % (sT2, sT2, NACT * 1024))
        a('s_and_b32 s%d, s%d, 3' % (sT3, sNB))
        a('s_mul_i32 s%d, s%d, %d' % (sT3, sT3, per_wg * 128))
        a('s_add_u32 s%d, s%d, s%d' % (sT2, sT2, sT3))
        a('s_mul_i32 s%d, s%d, %d' % (sT3, sW, per_w * 128))
        a('s_add_u32 s%d, s%d, s%d' % (sT2, sT2, sT3))
        a('s_add_u32 s%d, s%d, 0x%x' % (sT2, sT2, WS_ACT + base))
        a('v_lshlrev_b32 v%d, 3, v%d' % (vt, self.vL16))
        a('s_mov_b64 exec, 0x%x' % ((1 << per_w) - 1))
        a('buffer_load_dword v%d, v%d, %s, s%d offen%s' % (vd, vt, sr(S_WS, 4), sT2, self.sc), tag='warm')
        a('s_mov_b64 exec, -1')

    def phase3(self, gs0, dma_issued):
        a = self.a
        ACC, AB, PB = 0, 32, 80
        NP, LA = 4, 3
        vL16 = self.vL16
        TRa, vO, XR = 96, 102, 104
        att = self.attn_pass2()
        ATR = int(ENV('ATR', '14'))
        self.stamp(0, self.vST)
        a('s_lshl_b32 s%d, s%d, 1' % (sT0, sTB))
        a('s_add_u32 s%d, s%d, s%d' % (sT0, sT0, sTH))
        a('s_mul_i32 s%d, s%d, %d' % (sT1, sT0, NACT))
        a('s_mul_i32 s%d, s%d, 28' % (sT2, sKQ))
        a('s_add_u32 s%d, s%d, s%d' % (sT2, sT2, sT1))
        a('s_lshl_b32 s%d, s%d, 10' % (sT2, sT2))
        a('s_add_u32 s%d, s%d, 0x%x' % (sACT, sT2, WS_ACT))
        a('s_lshl_b32 s%d, s%d, 3' % (sT2, sKQ))
        a('s_add_u32 s%d, s%d, s%d' % (sT2, sT2, sT1))
        a('s_add_u32 s%d, s%d, 112' % (sT2, sT2))
        a('s_lshl_b32 s%d, s%d, 10' % (sT2, sT2))
        a('s_add_u32 s%d, s%d, 0x%x' % (sACTO, sT2, WS_ACT))

        def act_loads(st):
            base, off = (sACT, st * 4096) if st < 7 else (sACTO, (st - 7) * 4096)
            out = [('s_add_u32 s%d, s%d, 0x%x' % (sT1, base, off), None)]
            for j in range(4):
                out.append(('buffer_load_dwordx4 %s, v%d, %s, s%d offen offset:%d%s' % (
                    vr(AB + 16 * (st % 3) + 4 * j, 4), vL16, sr(S_WS, 4), sT1, 1024 * j, self.sc), ('act', st, j)))
            return out

        NS = self.NS
        stages = {gs0 + st: self.p3_stage_fn(st)((gs0 + st) % NS, gs0 + st) for st in range(9)}

        def pop_att(cnt):
            for _ in range(cnt):
                if not att:
                    return
                e = att.pop(0)
                if callable(e):
                    e()
                elif e[0] == 'MARK':
                    if e[1] == 4:
                        self.flag_wait('hflag')
                    for tx, tg in act_loads(0 if e[1] == 4 else 1):
                        a(tx, tag=tg)
                else:
                    a(e[0], tag=e[1])

        A_, B_, C_ = 80, 81, 82
        a('v_lshrrev_b32 v%d, 9, v%d' % (A_, vL16))
        a('v_bfe_u32 v%d, v%d, 6, 2' % (B_, vL16))
        a('v_lshl_add_u32 v%d, v%d, 3, v%d' % (B_, A_, B_))
        a('v_lshlrev_b32 v%d, 7, v%d' % (B_, B_))
        a('v_bfe_u32 v%d, v%d, 8, 1' % (C_, vL16))
        a('v_lshl_add_u32 v%d, v%d, 5, v%d' % (B_, C_, B_))
        a('v_bfe_u32 v%d, v%d, 4, 2' % (C_, vL16))
        a('v_lshl_add_u32 v%d, v%d, 3, v%d' % (B_, C_, B_))
        a('s_lshl_b32 s%d, s%d, 13' % (sT0, sKQ))
        a('v_add_u32 v%d, s%d, v%d' % (B_, sT0, B_))
        a('v_bfe_u32 v%d, v%d, 7, 1' % (C_, vL16))
        a('v_lshl_add_u32 v%d, v%d, 6, v%d' % (TRa, C_, B_))
        a('v_xor_b32 v%d, 1, v%d' % (C_, C_))
        a('v_lshl_add_u32 v%d, v%d, 6, v%d' % (TRa + 1, C_, B_))
        a('v_add_u32 v%d, 0x10000, v%d' % (TRa + 2, TRa))
        a('v_add_u32 v%d, 0x10000, v%d' % (TRa + 3, TRa + 1))
        a('v_add_u32 v%d, 0x20000, v%d' % (TRa + 4, TRa))
        a('v_add_u32 v%d, 0x20000, v%d' % (TRa + 5, TRa + 1))
        a('s_lshl_b32 s%d, s%d, 1' % (sT0, sTB))
        a('s_add_u32 s%d, s%d, s%d' % (sT0, sT0, sTH))
        a('s_lshl_b32 s%d, s%d, 5' % (sT0, sT0))
        a('v_bfe_u32 v%d, v%d, 4, 5' % (B_, vL16))
        a('v_add_u32 v%d, s%d, v%d' % (B_, sT0, B_))
        a('v_lshlrev_b32 v%d, 10, v%d' % (B_, B_))
        a('v_lshl_add_u32 v%d, v%d, 4, v%d' % (B_, A_, B_))
        a('s_lshl_b32 s%d, s%d, 7' % (sT0, sNB))
        a('s_lshl_b32 s%d, s%d, 5' % (sT1, sKQ))
        a('s_add_u32 s%d, s%d, s%d' % (sT0, sT0, sT1))
        a('v_add_u32 v%d, s%d, v%d' % (vO, sT0, B_))

        items = [(st, j, ft) for st in range(9) for j in range(4) for ft in range(2)]
        n = len(items)
        bg = []

        def issue_reads(k):
            st, j, ft = items[k]
            slot = (gs0 + st) % NS
            off = (slot & 1) * 32768 + j * 2048
            addr = TRa + ft + 2 * (slot >> 1)
            dst = PB + 4 * (k % NP)
            a('ds_read_b64_tr_b16 %s, v%d offset:%d' % (vr(dst, 2), addr, off), tag=('f', k))
            a('ds_read_b64_tr_b16 %s, v%d offset:%d' % (vr(dst + 2, 2), addr, off + 512), tag=('f', k))

        def pop_bg(cnt):
            for _ in range(cnt):
                if not bg:
                    return
                tt = bg.pop(0)
                if isinstance(tt[0], list):
                    self.emit_group(tt)
                else:
                    a(tt[0], tag=tt[1])

        pop_att(int(ENV('ATPRE', '160' if self.MERGE else '9999')))
        if self.STAMP2:
            self.stamp(28, self.vST)
        pop_att(int(ENV('ATPRE2', '30')))
        a.wait_vm(('dma', gs0 + 1))
        a('s_barrier')
        for tx, tg in act_loads(2):
            a(tx, tag=tg)
        for st in range(dma_issued, NS):
            for grp in stages[gs0 + st]:
                self.emit_group(grp)
        self.stamp(1, self.vST)
        issued, cur = 0, 0
        opub = None
        for k in range(n):
            st, j, ft = items[k]
            if st != cur:
                cur = st
                if st + 1 < 9:
                    a.wait_vm(('dma', gs0 + st + 1))
                if opub is None and not att:
                    a.wait_vm('st')
                if self.STAMP2:
                    self.stamp(8 + 2 * st, self.vST)
                a('s_barrier')
                if self.STAMP2:
                    self.stamp(9 + 2 * st, self.vST)
                if opub is None and not att:
                    opub = st
                    self.publish(2, self.vPUB)
                    self.stamp(5, self.vST)
                dm = list(stages[gs0 + st + NS - 1]) if st + NS - 1 < 9 else []
                if st == 7:
                    self.epoch_chk_issue()
                if st == 5:
                    assert opub is not None
                    self.flag_issue(2, sTB, 0, 'oflag', shr=1)
                if st == 6:
                    self.flag_wait('oflag')
                    self.stamp(6, self.vST)
                al = []
                if st + 2 < 7:
                    al = act_loads(st + 2)
                elif st == 6:
                    al = act_loads(7) + act_loads(8)[0:]
                if st == 6:
                    bg.extend(al)
                else:
                    bg.extend(al[:1])
                    al = al[1:]
                    for q in range(4):
                        bg.extend(al[q:q + 1])
                        bg.extend(dm[q:q + 1])
                if st == 6:
                    bg.append(('buffer_load_dwordx4 %s, v%d, %s, 0 offen' % (vr(XR, 4), vO, sr(S_X, 4)), 'xr'))
            while issued < n and issued <= k + LA:
                issue_reads(issued)
                issued += 1
            a.wait_vm(('act', st, j))
            a.wait_lg(('f', k))
            acc = ACC + 16 * ft
            c = '0' if (st == 0 and j == 0) else vr(acc, 16)
            a('v_mfma_f32_32x32x16_bf16 %s, %s, %s, %s' % (vr(acc, 16), vr(PB + 4 * (k % NP), 4),
                                                         vr(AB + 16 * (st % 3) + 4 * j, 4), c))
            pop_att(ATR)
            while bg:
                isvm = isinstance(bg[0][0], list) or bg[0][1] is not None
                pop_bg(1)
                if isvm:
                    break
        pop_bg(10 ** 6)
        self.stamp(2, self.vST)
        last = (gs0 + 8) % NS
        rb = 0 if last >= 2 else 65536
        vW = A_
        a('s_mul_i32 s%d, s%d, 24576' % (sT0, sTH))
        a('s_add_u32 s%d, s%d, %d' % (sT0, sT0, rb))
        a('v_add_u32 v%d, s%d, v%d' % (vW, sT0, vL16))
        LBL = [self.lab('red%d' % q) for q in range(4)]
        LE = self.lab('rede')
        for q in range(1, 4):
            a('s_cmp_eq_u32 s%d, %d' % (sKQ, q))
            a.branch('s_cbranch_scc1 ' + LBL[q])
        RES = 64
        assert not att
        for q in range(4):
            if q:
                a.label(LBL[q])
            for o in range(4):
                if o == q:
                    continue
                off = o * 6144 + ((q - o - 1) & 3) * 2048
                a('ds_write_b128 v%d, %s offset:%d' % (vW, vr(ACC + 8 * o, 4), off))
                a('ds_write_b128 v%d, %s offset:%d' % (vW, vr(ACC + 8 * o + 4, 4), off + 1024))
            for e in range(8):
                a('v_mov_b32 v%d, v%d' % (RES + e, ACC + 8 * q + e))
            if q < 3:
                a.branch('s_branch ' + LE)
        a.label(LE)
        a('s_mul_i32 s%d, s%d, 6144' % (sT0, sKQ))
        a('v_add_u32 v%d, s%d, v%d' % (vW, sT0, vW))
        a.wait_lg0()
        a('s_barrier')
        RB = 32
        for sl in range(3):
            a('ds_read_b128 %s, v%d offset:%d' % (vr(RB + 8 * sl, 4), vW, sl * 2048), tag=('r', sl))
            a('ds_read_b128 %s, v%d offset:%d' % (vr(RB + 8 * sl + 4, 4), vW, sl * 2048 + 1024), tag=('r', sl))
        for sl in range(3):
            a.wait_lg(('r', sl))
            for e in range(8):
                a('v_add_f32 v%d, v%d, v%d' % (RES + e, RES + e, RB + 8 * sl + e))
        for e in range(4):
            a('v_permlane32_swap_b32 v%d, v%d' % (RES + e, RES + 4 + e))
        a.wait_vm('xr')
        for e in range(4):
            a('v_lshlrev_b32 v%d, 16, v%d' % (RB + 2 * e, XR + e))
            a('v_and_b32 v%d, s%d, v%d' % (RB + 2 * e + 1, sMASKHI, XR + e))
        for e in range(8):
            a('v_add_f32 v%d, v%d, v%d' % (RES + e, RES + e, RB + e))
        for e in range(4):
            a('v_cvt_pk_bf16_f32 v%d, v%d, v%d' % (RB + 8 + e, RES + 2 * e, RES + 2 * e + 1))
        a('buffer_store_dwordx4 %s, v%d, %s, 0 offen' % (vr(RB + 8, 4), vO, sr(S_OUT, 4)), tag='st')
        self.epoch_clear()
        self.stamp(3, self.vST)
        if self.STAMPS:
            a.wait_vm0()
            self.stamp(4, self.vST)


HEADER = open('cdna_kernels/%s.s.ref' % NAME).read().split('; Override launch geometry')[0]

KD = '''.section .rodata,"a"
.p2align 6
.amdhsa_kernel %s
  .amdhsa_next_free_vgpr 256
  .amdhsa_next_free_sgpr 102
  .amdhsa_accum_offset 256
  .amdhsa_group_segment_fixed_size 0
  .amdhsa_kernarg_size 80
  .amdhsa_user_sgpr_count 2
  .amdhsa_user_sgpr_kernarg_segment_ptr 1
  .amdhsa_system_sgpr_workgroup_id_x 1
.end_amdhsa_kernel
'''


def build():
    g = Gen()
    g.prologue()
    g.phase1([g.p3_stage_fn(st) for st in range(g.NS - 1)])
    g.KIDX = 1
    g.attn_pass1()
    g.KIDX = 2
    g.phase3(10, g.NS - 1)
    g.a.label('L_end')
    g.a('s_endpgm')
    g.a.raw('L_kend:')
    out = HEADER
    out += '; @launch grid=(256,1,1) block=(512,1,1) lds=163840\n'
    out += '.amdgcn_target "amdgcn-amd-amdhsa--gfx950"\n'
    out += '.text\n.globl %s\n.p2align 8\n.type %s,@function\n%s:\n' % (KNAME, KNAME, KNAME)
    out += g.a.text() + KD % KNAME
    return out


if __name__ == '__main__':
    dst = sys.argv[1] if len(sys.argv) > 1 else 'cdna_kernels/%s.s' % NAME
    txt = build()
    if ENV('ALIGN', '4') != '0':
        from alignpass import align
        txt, nn = align(txt, int(ENV('ALIGN', '4')))
        print('alignment nops:', nn)
    open(dst, 'w').write(txt)
    print('wrote', dst, len(txt), 'bytes')
```

```python
import math
import os
import struct
import sys
from asmlib import Asm, vr, sr

NAME = 'parallel_sum__sliding_block__glu_gated_geglu__prompt'
KNAME = NAME + '_kernel'
ENV = os.environ.get

T, D, F, H = 2048, 512, 1792, 32
WS_QKV = 0
WS_ACT = 6 << 20
WS_FLAG = 16 << 20
WS_FLAGH = WS_FLAG + 8192
WS_BYTES = WS_FLAGH + 8192
NACT = 144

S_X, S_WQKV, S_GATE, S_UP, S_DOWN, S_WO, S_OUT, S_WS, S_DBG = 4, 8, 12, 16, 20, 24, 28, 32, 36
sW, sMB, sQUAD, sI, sR, sC, sWB = 40, 41, 42, 43, 44, 45, 46
sCOL = 47
sST = 51
sCNT = 55
sT0, sT1, sT2, sT3 = 56, 57, 58, 59
sONES, sMASKHI, sK0, sK1, sQS = 60, 61, 62, 63, 64
sTB, sNB, sKQ, sTH = 65, 66, 67, 68
sACT, sACTO, sWD, sWOo, sWB3 = 69, 70, 71, 72, 73
sQB, sHEAD = 74, 75
sM = 76
sEPOCH, sCG4 = 94, 95
SCALE = 0.25 * math.log2(math.e)


def f32(x):
    return '0x%08x' % struct.unpack('<I', struct.pack('<f', x))[0]


class Gen:
    STAMPS = bool(ENV('STAMPS'))
    STAMP2 = bool(ENV('STAMP2'))

    def __init__(self):
        self.a = Asm()
        self.sc = ' sc1'
        self.uid = 0
        self.KIDX = 0

    def lab(self, s):
        self.uid += 1
        return 'L_%s_%d' % (s, self.uid)

    def stamp(self, i, vtmp):
        if not self.STAMPS:
            return
        a = self.a
        a('s_memrealtime s[98:99]')
        a('s_memtime s[96:97]')
        a('s_lshl_b32 s100, s2, 3')
        a('s_add_u32 s100, s100, s%d' % sW)
        a('s_lshl_b32 s100, s100, 8')
        a('s_add_u32 s100, s100, 0x%x' % ((32 << 20) + self.KIDX * (1 << 20)))
        a.wait_lg0()
        a('v_mov_b32 v%d, s98' % vtmp)
        a('buffer_store_dword v%d, off, %s, s100 offset:%d' % (vtmp, sr(S_WS, 4), 4 * i), tag='stamp')
        a('s_nop 1')
        a('v_mov_b32 v%d, s96' % vtmp)
        a('buffer_store_dword v%d, off, %s, s100 offset:%d' % (vtmp, sr(S_WS, 4), 128 + 4 * i), tag='stamp')

    def prio_young(self, p):
        L = self.lab('pr')
        self.a.raw('    s_cmp_lt_u32 s%d, 4' % sW)
        self.a.raw('    s_cbranch_scc1 ' + L)
        self.a.raw('    s_setprio %d' % p)
        self.a.raw(L + ':')

    def lane(self, v):
        self.a('v_mbcnt_lo_u32_b32 v%d, -1, 0' % v)
        self.a('v_mbcnt_hi_u32_b32 v%d, -1, v%d' % (v, v))

    XB = 0
    ACC = (128, 160)
    POOL = 192
    NP = 8
    LA = int(ENV('LA', '6'))
    TMP = 224
    vTR = 243
    vL16 = 250
    vSV = 251
    vDQ, vDG = 252, 253
    vFL = 254
    vK0 = 246
    vEP = 247
    XLDS = 32768
    EARLYW = ENV('EARLYW', '1') == '1'
    MAP = int(ENV('MAP', '8'))
    NS = int(ENV('NS', '5'))

    def srd(self, srd, p, n):
        a = self.a
        a('s_mov_b32 s%d, s%d' % (srd, p))
        a('s_and_b32 s%d, s%d, 0xffff' % (srd + 1, p + 1))
        a('s_mov_b32 s%d, 0x%x' % (srd + 2, n))
        a('s_mov_b32 s%d, 0x00020000' % (srd + 3))

    def prologue(self):
        a = self.a
        t = self.TMP
        L = self.vL16 + 1
        a('s_cmp_ge_u32 s2, 256')
        a.branch('s_cbranch_scc1 L_end')
        if self.STAMPS:
            a('s_memrealtime s[%d:%d]' % (sK0, sK0 + 1))
        a('s_load_dwordx16 s[76:91], s[0:1], 0')
        a('s_load_dwordx4 s[92:95], s[0:1], 64')
        if ENV('CODEPF', '0') == '1':
            a('s_getpc_b64 s[%d:%d]' % (sT2, sT3))
            a.raw('L_pc:')
            a('s_sub_u32 s%d, s%d, L_pc-%s' % (sT2, sT2, KNAME))
            a('s_subb_u32 s%d, s%d, 0' % (sT3, sT3))
            a('v_lshlrev_b32 v1, 7, v0')
            a('v_min_u32 v1, L_kend-%s-4, v1' % KNAME)
            a('global_load_dword v%d, v1, s[%d:%d]' % (self.ACC[0] + 31, sT2, sT3), tag='warm')
        a('v_lshrrev_b32 v1, 6, v0')
        a('v_and_b32 v%d, 63, v0' % L)
        a('v_readfirstlane_b32 s%d, v1' % sW)
        a('s_and_b32 s%d, s2, 7' % sT0)
        a('s_lshr_b32 s%d, s2, 3' % sT1)
        if self.MAP == 8:
            a('s_and_b32 s%d, s%d, 1' % (sT2, sT0))
            a('s_lshl_b32 s%d, s%d, 3' % (sT2, sT2))
            a('s_and_b32 s%d, s%d, 7' % (sT3, sT1))
            a('s_add_u32 s%d, s%d, s%d' % (sMB, sT2, sT3))
            a('s_lshr_b32 s%d, s%d, 1' % (sQUAD, sT0))
            a('s_lshr_b32 s%d, s%d, 3' % (sI, sT1))
        else:
            a('s_and_b32 s%d, s%d, 3' % (sT2, sT0))
            a('s_lshl_b32 s%d, s%d, 2' % (sT2, sT2))
            a('s_and_b32 s%d, s%d, 3' % (sT3, sT1))
            a('s_add_u32 s%d, s%d, s%d' % (sMB, sT2, sT3))
            a('s_lshr_b32 s%d, s%d, 2' % (sT2, sT0))
            a('s_lshl_b32 s%d, s%d, 1' % (sT2, sT2))
            a('s_lshr_b32 s%d, s%d, 4' % (sT3, sT1))
            a('s_add_u32 s%d, s%d, s%d' % (sQUAD, sT2, sT3))
            a('s_bfe_u32 s%d, s%d, 0x20002' % (sI, sT1))
        a('s_lshl_b32 s%d, s%d, 2' % (sT2, sT0))
        a('s_and_b32 s%d, s%d, 3' % (sT3, sT1))
        a('s_add_u32 s%d, s%d, s%d' % (sTB, sT2, sT3))
        a('s_lshr_b32 s%d, s%d, 2' % (sNB, sT1))
        a('v_lshlrev_b32 v%d, 4, v%d' % (self.vL16, L))
        a('s_lshl_b32 s%d, s%d, 7' % (sT0, sMB))
        a('s_lshl_b32 s%d, s%d, 4' % (sT1, sW))
        a('s_add_u32 s%d, s%d, s%d' % (sT0, sT0, sT1))
        a('s_lshl_b32 s%d, s%d, 10' % (sT0, sT0))
        a('s_lshl_b32 s%d, s%d, 14' % (sT1, sW))
        a('s_waitcnt lgkmcnt(0)')
        self.srd(S_X, 76, T * D * 2)
        for n in range(16):
            a('v_xor_b32 v%d, %d, v%d' % (t + (n & 1), 16 * n, self.vL16))
            a('s_add_u32 s%d, s%d, %d' % (sT2, sT0, 1024 * n))
            a('s_add_u32 m0, s%d, %d' % (sT1, self.XLDS + 1024 * n))
            a('buffer_load_dwordx4 v%d, %s, s%d offen lds' % (t + (n & 1), sr(S_X, 4), sT2), tag=('xdma', n))
        for srd, p, n in ((S_WQKV, 78, D * 3 * D * 2), (S_WO, 80, D * D * 2), (S_GATE, 84, D * F * 2),
                          (S_UP, 86, D * F * 2), (S_DOWN, 88, F * D * 2), (S_OUT, 90, T * D * 2),
                          (S_DBG, 92, 256), (S_WS, 94, (64 << 20) if self.STAMPS else WS_BYTES)):
            self.srd(srd, p, n)
        self.stamp(0, t + 8)
        if self.STAMPS:
            a('v_mov_b32 v%d, s%d' % (t + 8, sK0))
            a('buffer_store_dword v%d, off, %s, s100 offset:%d' % (t + 8, sr(S_WS, 4), 4 * 31), tag='stamp')
        a('s_and_b32 s%d, s%d, 3' % (sR, sW))
        a('s_lshr_b32 s%d, s%d, 2' % (sC, sW))
        a('s_lshl_b32 s%d, s%d, 10' % (sWB, sW))
        a('s_mov_b32 s%d, 0x3f803f80' % sONES)
        a('s_mov_b32 s%d, 0xffff0000' % sMASKHI)
        a('s_lshl_b32 s%d, s%d, 2' % (sCG4, sQUAD))
        a('s_add_u32 s%d, s%d, s%d' % (sCG4, sCG4, sI))
        a('s_lshl_b32 s%d, s%d, 2' % (sCG4, sCG4))
        self.epoch_publish(self.vEP)
        I, G, A_, B_, C_ = t + 2, t + 3, t + 4, t + 5, t + 6
        a('v_and_b32 v%d, 15, v%d' % (I, L))
        a('v_lshrrev_b32 v%d, 4, v%d' % (G, L))
        LA_ = self.ACC[1]
        a('s_add_u32 s%d, s%d, %d' % (sT0, sT1, self.XLDS))
        a('v_lshlrev_b32 v%d, 10, v%d' % (A_, I))
        a('v_add_u32 v%d, s%d, v%d' % (A_, sT0, A_))
        a('v_and_b32 v%d, 3, v%d' % (B_, I))
        a('v_xor_b32 v%d, v%d, v%d' % (B_, B_, G))
        a('v_lshl_add_u32 v%d, v%d, 4, v%d' % (A_, B_, A_))
        a('v_lshrrev_b32 v%d, 2, v%d' % (B_, I))
        for q in range(4):
            a('v_xor_b32 v%d, %d, v%d' % (C_, q, B_))
            a('v_lshl_add_u32 v%d, v%d, 6, v%d' % (LA_ + q, C_, A_))
        a('s_lshl_b32 s%d, s%d, 15' % (sT0, sR))
        a('s_add_u32 s%d, s%d, %d' % (sT0, sT0, self.XLDS))
        a('v_and_b32 v%d, 31, v%d' % (A_, L))
        a('v_lshlrev_b32 v%d, 10, v%d' % (A_, A_))
        a('v_add_u32 v%d, s%d, v%d' % (A_, sT0, A_))
        a('v_lshrrev_b32 v%d, 5, v%d' % (B_, L))
        a('v_xor_b32 v%d, v%d, v%d' % (C_, B_, I))
        a('v_lshl_add_u32 v%d, v%d, 4, v%d' % (LA_ + 4, C_, A_))
        a('v_lshrrev_b32 v%d, 2, v%d' % (A_, I))
        a('v_lshl_add_u32 v%d, v%d, 3, v%d' % (A_, B_, A_))
        a('v_lshlrev_b32 v%d, 7, v%d' % (A_, A_))
        a('v_and_b32 v%d, 1, v%d' % (C_, G))
        a('v_lshl_add_u32 v%d, v%d, 5, v%d' % (A_, C_, A_))
        a('v_lshlrev_b32 v%d, 16, v%d' % (t + 7, C_))
        a('v_lshl_add_u32 v%d, v%d, 9, v%d' % (t + 7, B_, t + 7))
        a('v_lshl_add_u32 v%d, v%d, 4, v%d' % (t + 7, I, t + 7))
        a('v_and_b32 v%d, 3, v%d' % (C_, I))
        a('v_lshl_add_u32 v%d, v%d, 3, v%d' % (A_, C_, A_))
        a('v_bfe_u32 v%d, v%d, 3, 1' % (C_, I))
        a('v_xor_b32 v%d, s%d, v%d' % (C_, sC, C_))
        a('v_lshl_add_u32 v%d, v%d, 6, v%d' % (self.vTR, C_, A_))
        a('v_add_u32 v%d, 0x10000, v%d' % (self.vTR + 1, self.vTR))
        a('v_add_u32 v%d, 0x20000, v%d' % (self.vTR + 2, self.vTR))
        a('v_lshrrev_b32 v%d, 3, v%d' % (A_, L))
        a('v_and_b32 v%d, 7, v%d' % (B_, L))
        a('v_bfe_u32 v%d, v%d, 1, 1' % (C_, A_))
        a('v_lshlrev_b32 v%d, 2, v%d' % (C_, C_))
        a('v_xor_b32 v%d, v%d, v%d' % (B_, B_, C_))
        a('v_lshlrev_b32 v%d, 4, v%d' % (B_, B_))
        a('s_lshl_b32 s%d, s%d, 3' % (sT0, sW))
        a('v_add_u32 v%d, s%d, v%d' % (A_, sT0, A_))
        a('s_movk_i32 s%d, 3072' % sT0)
        a('s_movk_i32 s%d, 3584' % sT1)
        a('v_mad_u32_u24 v%d, v%d, s%d, v%d' % (self.vDQ, A_, sT0, B_))
        a('v_mad_u32_u24 v%d, v%d, s%d, v%d' % (self.vDG, A_, sT1, B_))
        a('v_mov_b32 v%d, v%d' % (t + 9, L))
        a('v_mov_b32 v%d, v%d' % (self.vSV, t + 7))

    def epoch_publish(self, vt):
        a = self.a
        L = self.lab('noep')
        a('s_or_b32 s%d, s2, s%d' % (sT0, sW))
        a('s_cmp_lg_u32 s%d, 0' % sT0)
        a.branch('s_cbranch_scc1 ' + L)
        a('s_memrealtime s[%d:%d]' % (sT2, sT3))
        a('s_waitcnt lgkmcnt(0)')
        a('s_or_b32 s%d, s%d, 1' % (sT2, sT2))
        a('v_mov_b32 v%d, s%d' % (vt, sT2))
        n = len(a.vm)
        a('buffer_store_dword v%d, off, %s, 0 sc0 sc1' % (vt, sr(S_DBG, 4)))
        del a.vm[n:]
        a.label(L)

    def epoch_issue(self, vt):
        self.a('buffer_load_dword v%d, off, %s, 0 sc0 sc1' % (vt, sr(S_DBG, 4)), tag='epoch')

    def epoch_get(self, vt):
        a = self.a
        Lr, Ld = self.lab('epr'), self.lab('epd')
        a.wait_vm('epoch')
        a('s_mov_b32 s%d, 0' % sCNT)
        a.label(Lr)
        a('v_readfirstlane_b32 s%d, v%d' % (sEPOCH, vt))
        a('s_cmp_lg_u32 s%d, 0' % sEPOCH)
        a.branch('s_cbranch_scc1 ' + Ld)
        a('s_sleep 4')
        n = len(a.vm)
        a('buffer_load_dword v%d, off, %s, 0 sc0 sc1' % (vt, sr(S_DBG, 4)))
        del a.vm[n:]
        a('s_waitcnt vmcnt(0)')
        a('s_add_u32 s%d, s%d, 1' % (sCNT, sCNT))
        a('s_cmp_lt_u32 s%d, 0x100000' % sCNT)
        a.branch('s_cbranch_scc1 ' + Lr)
        a.label(Ld)

    vEC = 148

    def epoch_chk_issue(self):
        a = self.a
        L = self.lab('noec')
        a('s_or_b32 s%d, s2, s%d' % (sT2, sW))
        a('s_cmp_lg_u32 s%d, 0' % sT2)
        a.branch('s_cbranch_scc1 ' + L)
        self._ec_loads()
        a.label(L)

    def _ec_loads(self):
        a = self.a
        v = self.vEC
        a('v_lshrrev_b32 v%d, 8, v%d' % (v, self.vL16))
        a('v_lshlrev_b32 v%d, 7, v%d' % (v, v))
        a('v_bfe_u32 v%d, v%d, 4, 4' % (v + 1, self.vL16))
        a('v_lshl_add_u32 v%d, v%d, 2, v%d' % (v, v + 1, v))
        a('v_add_u32 v%d, 0x%x, v%d' % (v, WS_FLAG + 4096, v))
        n = len(a.vm)
        for q in range(4):
            a('buffer_load_dword v%d, v%d, %s, 0 offen offset:%d sc0 sc1' % (v + 1 + q, v, sr(S_WS, 4), 512 * q))
        del a.vm[n:]

    def epoch_clear(self):
        a = self.a
        v = self.vEC
        L, Lr, Lc = self.lab('noclr'), self.lab('ecr'), self.lab('ecc')
        a('s_or_b32 s%d, s2, s%d' % (sT2, sW))
        a('s_cmp_lg_u32 s%d, 0' % sT2)
        a.branch('s_cbranch_scc1 ' + L)
        a('s_mov_b32 s%d, 0' % sCNT)
        a.label(Lr)
        for q in range(4):
            a('v_xor_b32 v%d, s%d, v%d' % (v + 1 + q, sEPOCH, v + 1 + q))
        a('v_or_b32 v%d, v%d, v%d' % (v + 1, v + 1, v + 2))
        a('v_or_b32 v%d, v%d, v%d' % (v + 3, v + 3, v + 4))
        a('v_or_b32 v%d, v%d, v%d' % (v + 1, v + 1, v + 3))
        a('v_cmp_ne_u32 vcc, 0, v%d' % (v + 1))
        a.branch('s_cbranch_vccz ' + Lc)
        a('s_sleep 4')
        self._ec_loads()
        a('s_waitcnt vmcnt(0)')
        a('s_add_u32 s%d, s%d, 1' % (sCNT, sCNT))
        a('s_cmp_lt_u32 s%d, 0x100000' % sCNT)
        a.branch('s_cbranch_scc1 ' + Lr)
        a.label(Lc)
        a('v_mov_b32 v%d, 0' % v)
        n = len(a.vm)
        a('buffer_store_dword v%d, off, %s, 0 sc0 sc1' % (v, sr(S_DBG, 4)))
        del a.vm[n:]
        a.label(L)

    def publish(self, kind, vt):
        a = self.a
        L = self.lab('nopub')
        a('s_cmp_lg_u32 s%d, 0' % sW)
        a.branch('s_cbranch_scc1 ' + L)
        a('s_lshl_b32 s%d, s%d, 7' % (sT2, sMB))
        a('s_add_u32 s%d, s%d, s%d' % (sT2, sT2, sCG4))
        a('s_add_u32 s%d, s%d, 0x%x' % (sT2, sT2, WS_FLAG + kind * 2048))
        a('v_mov_b32 v%d, s%d' % (vt, sEPOCH))
        a('s_mov_b64 exec, 1')
        n = len(a.vm)
        a('buffer_store_dword v%d, off, %s, s%d sc0 sc1' % (vt, sr(S_WS, 4), sT2))
        del a.vm[n:]
        a('s_mov_b64 exec, -1')
        a.label(L)

    def flag_issue(self, kind, smb, nback, tag, shr=0):
        a = self.a
        va = self.vFL
        if shr:
            a('s_lshr_b32 s%d, s%d, %d' % (sT3, smb, shr))
            smb = sT3
        a('v_lshrrev_b32 v%d, 8, v%d' % (va + 1, self.vL16))
        a('v_min_u32 v%d, %d, v%d' % (va + 1, nback, va + 1))
        a('v_sub_u32 v%d, s%d, v%d' % (va + 1, smb, va + 1))
        a('v_max_i32 v%d, 0, v%d' % (va + 1, va + 1))
        a('v_bfe_u32 v%d, v%d, 4, 4' % (va, self.vL16))
        a('v_lshlrev_b32 v%d, 2, v%d' % (va, va))
        a('v_lshl_add_u32 v%d, v%d, 7, v%d' % (va, va + 1, va))
        a('v_add_u32 v%d, 0x%x, v%d' % (va, WS_FLAG + kind * 2048, va))
        a('buffer_load_dword v%d, v%d, %s, 0 offen sc0 sc1' % (va + 1, va, sr(S_WS, 4)), tag=tag)

    def flag_wait(self, tag):
        a = self.a
        va = self.vFL
        Lr, Ld = self.lab('flr'), self.lab('fld')
        a.wait_vm(tag)
        a('s_mov_b32 s%d, 0' % sCNT)
        a.label(Lr)
        a('v_cmp_ne_u32 vcc, s%d, v%d' % (sEPOCH, va + 1))
        a.branch('s_cbranch_vccz ' + Ld)
        a('s_sleep 1')
        n = len(a.vm)
        a('buffer_load_dword v%d, v%d, %s, 0 offen sc0 sc1' % (va + 1, va, sr(S_WS, 4)))
        del a.vm[n:]
        a('s_waitcnt vmcnt(0)')
        a('s_add_u32 s%d, s%d, 1' % (sCNT, sCNT))
        a('s_cmp_lt_u32 s%d, 0x100000' % sCNT)
        a.branch('s_cbranch_scc1 ' + Lr)
        a.label(Ld)

    def p1_scalar_setup(self, typ):
        a = self.a
        a('s_lshl_b32 s%d, s%d, 2' % (sT3, sMB))
        a('s_add_u32 s%d, s%d, s%d' % (sT3, sT3, sR))
        a('s_mul_i32 s%d, s%d, %d' % (sT2, sT3, NACT))
        a('s_lshl_b32 s%d, s%d, 1' % (sT1, sC))
        a('s_add_u32 s%d, s%d, s%d' % (sT2, sT2, sT1))
        a('s_mul_i32 s%d, s%d, 7' % (sT0, sQUAD))
        if typ == 'A':
            a('s_lshl_b32 s%d, s%d, 10' % (sCOL, sI))
            a('s_lshl_b32 s%d, s%d, 7' % (sM, sQUAD))
            a('s_add_u32 s%d, s%d, s%d' % (sCOL, sCOL, sM))
            a('s_add_u32 s%d, s%d, 512' % (sCOL, sCOL))
            a('s_lshl_b32 s%d, s%d, 5' % (sST, sI))
            a('s_lshl_b32 s%d, s%d, 2' % (sM, sQUAD))
            a('s_add_u32 s%d, s%d, s%d' % (sST, sST, sM))
            a('s_add_u32 s%d, s%d, 16' % (sST, sST))
            a('s_add_u32 s%d, s%d, s%d' % (sST, sST, sT1))
            a('s_lshl_b32 s%d, s%d, 6' % (sST, sST))
            a('s_add_u32 s%d, s%d, s%d' % (sST, sST, sT3))
            a('s_lshl_b32 s%d, s%d, 10' % (sST, sST))
            a('s_lshl_b32 s%d, s%d, 1' % (sM, sI))
            a('s_add_u32 s%d, s%d, s%d' % (sT0, sT0, sM))
            for k in range(2):
                a('s_add_u32 s%d, s%d, %d' % (sM, sT0, k))
                a('s_lshl_b32 s%d, s%d, 7' % (sCOL + 1 + k, sM))
                a('s_lshl_b32 s%d, s%d, 2' % (sM, sM))
                a('s_add_u32 s%d, s%d, s%d' % (sM, sM, sT2))
                a('s_lshl_b32 s%d, s%d, 10' % (sM, sM))
                a('s_add_u32 s%d, s%d, 0x%x' % (sST + 1 + k, sM, WS_ACT))
            a('s_cmp_eq_u32 s%d, 0' % sI)
            a('s_cselect_b32 s%d, %s, 1.0' % (sQS, f32(SCALE)))
        else:
            for ty in range(3):
                a('s_lshl_b32 s%d, s%d, 7' % (sM, sQUAD))
                a('s_add_u32 s%d, s%d, %d' % (sCOL + ty, sM, 1024 * ty))
                a('s_lshl_b32 s%d, s%d, 2' % (sM, sQUAD))
                a('s_add_u32 s%d, s%d, %d' % (sM, sM, 32 * ty))
                a('s_add_u32 s%d, s%d, s%d' % (sM, sM, sT1))
                a('s_lshl_b32 s%d, s%d, 6' % (sM, sM))
                a('s_add_u32 s%d, s%d, s%d' % (sM, sM, sT3))
                a('s_lshl_b32 s%d, s%d, 10' % (sST + ty, sM))
            a('s_add_u32 s%d, s%d, 6' % (sM, sT0))
            a('s_lshl_b32 s%d, s%d, 7' % (sCOL + 3, sM))
            a('s_lshl_b32 s%d, s%d, 2' % (sM, sM))
            a('s_add_u32 s%d, s%d, s%d' % (sM, sM, sT2))
            a('s_lshl_b32 s%d, s%d, 10' % (sM, sM))
            a('s_add_u32 s%d, s%d, 0x%x' % (sST + 3, sM, WS_ACT))
            a('s_mov_b32 s%d, %s' % (sQS, f32(SCALE)))

    def warm_p1(self, typ, early=False):
        a = self.a
        t = self.TMP
        L = t + 9
        D0 = self.ACC[0] + 28
        R, U = t + 12, t + 13
        t = t + 8
        nrep = 8 // self.MAP
        a('s_bfe_u32 s%d, s2, 0x%x' % (sT0, 0x30003 if self.MAP == 8 else 0x20003))
        a('s_lshl_b32 s%d, s%d, 3' % (sT0, sT0))
        a('s_add_u32 s%d, s%d, s%d' % (sT0, sT0, sW))
        a('s_lshl_b32 s%d, s%d, %d' % (sT0, sT0, 3 if nrep == 1 else 4))
        a('v_and_b32 v%d, 7, v%d' % (R, L))
        a('v_add_u32 v%d, s%d, v%d' % (R, sT0, R))
        a('v_lshrrev_b32 v%d, 3, v%d' % (U, L))
        a('s_movk_i32 s%d, 3072' % sT0)
        a('s_movk_i32 s%d, 3584' % sT1)
        nq, ng = (1, 2) if typ == 'A' else (3, 1)
        cg_ = sCOL + 1 if typ == 'A' else sCOL + 3
        a('v_lshlrev_b32 v%d, 10, v%d' % (t + 6, U))
        a('v_mad_u32_u24 v%d, v%d, s%d, v%d' % (t + 6, R, sT0, t + 6))
        a('v_lshlrev_b32 v%d, 7, v%d' % (t + 7, U))
        a('v_mad_u32_u24 v%d, v%d, s%d, v%d' % (t + 7, R, sT1, t + 7))
        for rep in range(nrep):
            a('s_add_u32 s%d, s%d, %d' % (sT2, sCOL, rep * 8 * 3072))
            a('s_add_u32 s%d, s%d, %d' % (sT3, cg_, rep * 8 * 3584))
            if early:
                a('s_mov_b64 exec, 0xff')
                a('buffer_load_dword v%d, v%d, %s, s%d offen' % (D0, t + 6, sr(S_WQKV, 4), sT2), tag='warm')
                continue
            if not (self.EARLYW and nq == 1):
                a('s_mov_b64 exec, 0x%x' % (((1 << (8 * nq)) - 1) & (~0xff if self.EARLYW else -1)))
                a('buffer_load_dword v%d, v%d, %s, s%d offen' % (D0, t + 6, sr(S_WQKV, 4), sT2), tag='warm')
            a('s_mov_b64 exec, 0x%x' % ((1 << (8 * ng)) - 1))
            a('buffer_load_dword v%d, v%d, %s, s%d offen' % (D0 + 1, t + 7, sr(S_GATE, 4), sT3), tag='warm')
            a('buffer_load_dword v%d, v%d, %s, s%d offen' % (D0 + 2, t + 7, sr(S_UP, 4), sT3), tag='warm')
        a('s_mov_b64 exec, -1')

    def tlb_touch(self, typ):
        a = self.a
        D0 = self.ACC[0] + 27
        for p in range(3 if typ == 'A' else 4):
            a('buffer_load_dword v%d, off, %s, s%d' % (D0, sr(S_WS, 4), sST + p), tag='warm')
        a('s_lshl_b32 s%d, s%d, 16' % (sT0, sTB))
        a('s_lshl_b32 s%d, s%d, 7' % (sT1, sNB))
        a('s_add_u32 s%d, s%d, s%d' % (sT0, sT0, sT1))
        a('buffer_load_dword v%d, off, %s, s%d' % (D0, sr(S_OUT, 4), sT0), tag='warm')
        a('buffer_load_dword v%d, off, %s, s%d' % (D0, sr(S_WO, 4), sT1), tag='warm')
        a('buffer_load_dword v%d, off, %s, s%d' % (D0, sr(S_DOWN, 4), sT1), tag='warm')

    def warm_p3(self):
        a = self.a
        t0, t1 = self.vFL, self.vFL + 1
        a('v_lshlrev_b32 v%d, 3, v%d' % (t0, self.vL16))
        a('s_lshl_b32 s%d, s2, 3' % sT2)
        a('s_add_u32 s%d, s%d, s%d' % (sT2, sT2, sW))
        a('s_mul_i32 s%d, s%d, 896' % (sT3, sT2))
        a('s_mov_b64 exec, 0x7f')
        a('buffer_load_dword v%d, v%d, %s, s%d offen' % (t1, t0, sr(S_DOWN, 4), sT3), tag='warm')
        a('s_lshl_b32 s%d, s%d, 8' % (sT3, sT2))
        a('s_mov_b64 exec, 3')
        a('buffer_load_dword v%d, v%d, %s, s%d offen' % (t1, t0, sr(S_WO, 4), sT3), tag='warm')
        a('s_mov_b64 exec, -1')

    def warm_p3_l2(self):
        a = self.a
        t0, t1 = 240, 241
        a('v_lshlrev_b32 v%d, 3, v%d' % (t0, self.vL16))
        a('s_lshr_b32 s%d, s2, 3' % sT2)
        a('s_mul_i32 s%d, s%d, 57344' % (sT3, sT2))
        a('s_mul_i32 s%d, s%d, 7168' % (sM, sW))
        a('s_add_u32 s%d, s%d, s%d' % (sT3, sT3, sM))
        a('s_mov_b32 exec_hi, 0x00ffffff')
        a('buffer_load_dword v%d, v%d, %s, s%d offen' % (t1, t0, sr(S_DOWN, 4), sT3), tag='warm')
        a('s_lshl_b32 s%d, s%d, 14' % (sT3, sT2))
        a('s_lshl_b32 s%d, s%d, 11' % (sM, sW))
        a('s_add_u32 s%d, s%d, s%d' % (sT3, sT3, sM))
        a('s_mov_b64 exec, 0xffff')
        a('buffer_load_dword v%d, v%d, %s, s%d offen' % (t1, t0, sr(S_WO, 4), sT3), tag='warm')
        a('s_mov_b64 exec, -1')

    def dma_p1(self, pidx, st, slot, gs):
        out = []
        for j in range(4):
            out.append((['s_add_u32 s%d, s%d, 0x%x' % (sT0, sCOL + pidx, (256 * st + 64 * j) * 3072),
                         's_add_u32 m0, s%d, 0x%x' % (sWB, slot * 32768 + 8192 * j),
                         'buffer_load_dwordx4 v%d, %s, s%d offen lds' % (self.vDQ, sr(S_WQKV, 4), sT0)], ('dma', gs)))
        return out

    def dma_p2(self, pidx, st, slot, gs):
        out = []
        for j in range(2):
            for pn, srd in enumerate((S_GATE, S_UP)):
                out.append((['s_add_u32 s%d, s%d, 0x%x' % (sT0, sCOL + pidx, (128 * st + 64 * j) * 3584),
                             's_add_u32 m0, s%d, 0x%x' % (sWB, slot * 32768 + 16384 * pn + 8192 * j),
                             'buffer_load_dwordx4 v%d, %s, s%d offen lds' % (self.vDG, sr(srd, 4), sT0)], ('dma', gs)))
        return out

    def emit_group(self, grp):
        texts, tag = grp
        for t in texts[:-1]:
            self.a(t)
        self.a(texts[-1], tag=tag)

    def layernorm(self, mid):
        a = self.a
        LA_ = self.ACC[1]
        R0 = 0
        S = self.ACC[0]
        t = self.TMP
        for k in range(8):
            a('v_mov_b32 v%d, 0' % (S + k))
        a.wait_vm(('xdma', 15))
        self.stamp(28, self.POOL)
        for s in range(16):
            a('ds_read_b128 %s, v%d offset:%d' % (vr(R0 + 4 * s, 4), LA_ + (s & 3), (s >> 2) * 256), tag=('x', s))
        for s in range(16):
            if s % 2 == 0:
                a.wait_lg(('x', s + 1))
            for d in range(4):
                x = R0 + 4 * s + d
                a('v_dot2c_f32_bf16 v%d, s%d, v%d' % (S + d, sONES, x))
                a('v_dot2c_f32_bf16 v%d, v%d, v%d' % (S + 4 + d, x, x))
        if ENV('MIDPOS', '1') == '0':
            mid()
        for q in range(2):
            b = S + 4 * q
            a('v_add_f32 v%d, v%d, v%d' % (b, b, b + 1))
            a('v_add_f32 v%d, v%d, v%d' % (b + 2, b + 2, b + 3))
        M, E = S + 8, S + 9
        a('v_add_f32 v%d, v%d, v%d' % (M, S, S + 2))
        a('v_add_f32 v%d, v%d, v%d' % (E, S + 4, S + 6))
        for sw in ('v_permlane16_swap_b32', 'v_permlane32_swap_b32'):
            for q in range(2):
                a('v_mov_b32 v%d, v%d' % (S + q, M + q))
            for q in range(2):
                a('%s v%d, v%d' % (sw, M + q, S + q))
            for q in range(2):
                a('v_add_f32 v%d, v%d, v%d' % (M + q, M + q, S + q))
        a('s_mov_b32 s%d, %s' % (sT0, f32(1.0 / 512)))
        a('s_mov_b32 s%d, %s' % (sT1, f32(1e-5)))
        a('v_mul_f32 v%d, s%d, v%d' % (M, sT0, M))
        a('v_mul_f32 v%d, s%d, v%d' % (E, sT0, E))
        a('v_fma_f32 v%d, -v%d, v%d, v%d' % (E, M, M, E))
        a('v_max_f32 v%d, 0, v%d' % (E, E))
        a('v_cvt_pk_bf16_f32 v%d, v%d, v%d' % (S, M, E))
        a('v_lshlrev_b32 v%d, 16, v%d' % (M, S))
        a('v_and_b32 v%d, s%d, v%d' % (E, sMASKHI, S))
        a('v_add_f32 v%d, s%d, v%d' % (E, sT1, E))
        a('v_cvt_pk_bf16_f32 v%d, v%d, v%d' % (S, E, E))
        a('v_and_b32 v%d, s%d, v%d' % (E, sMASKHI, S))
        a('v_sqrt_f32 v%d, v%d' % (E, E))
        a('v_cvt_pk_bf16_f32 v%d, v%d, v%d' % (S, E, E))
        a('v_and_b32 v%d, s%d, v%d' % (E, sMASKHI, S))
        a('v_rcp_f32 v%d, v%d' % (E, E))
        a('v_mul_f32 v%d, v%d, v%d' % (M, M, E))
        a('v_sub_f32 v%d, 0, v%d' % (M, M))
        for s in range(16):
            for d in range(4):
                x = R0 + 4 * s + d
                tt = t + 2 * d
                a('v_lshlrev_b32 v%d, 16, v%d' % (tt, x))
                a('v_and_b32 v%d, s%d, v%d' % (tt + 1, sMASKHI, x))
            for d in range(4):
                tt = t + 2 * d
                a('v_fma_f32 v%d, v%d, v%d, v%d' % (tt, tt, E, M))
                a('v_fma_f32 v%d, v%d, v%d, v%d' % (tt + 1, tt + 1, E, M))
            for d in range(4):
                tt = t + 2 * d
                a('v_cvt_pk_bf16_f32 v%d, v%d, v%d' % (R0 + 4 * s + d, tt, tt + 1))
            a('ds_write_b128 v%d, %s offset:%d' % (LA_ + (s & 3), vr(R0 + 4 * s, 4), (s >> 2) * 256))
        if ENV('MIDPOS', '1') == '1':
            mid()
        for q in range(1, 8):
            a('v_xor_b32 v%d, %d, v%d' % (LA_ + 4 + q, q << 5, LA_ + 4))
        a.wait_lg0()
        self.stamp(29, self.POOL)
        a('s_barrier')
        self.stamp(30, self.POOL)
        for s in range(32):
            a('ds_read_b128 %s, v%d offset:%d' % (vr(4 * s, 4), LA_ + 4 + (s & 7), (s >> 3) * 256), tag=('xf', s))
        a.wait_lg0()
        a.wait_vm(('dma', 0))
        a('s_barrier')

    def epi_qkv(self, acc, pidx, isv, scale):
        out = []
        if scale:
            for r in range(16):
                out.append(('v_mul_f32 v%d, s%d, v%d' % (acc + r, sQS, acc + r), None))
        for tl in range(2):
            q = self.TMP + 4 * tl
            for e in range(4):
                c = acc + 8 * tl + 2 * e
                out.append(('v_cvt_pk_bf16_f32 v%d, v%d, v%d' % (q + e, c, c + 1), None))
            if isv:
                out.append(('buffer_store_dwordx4 %s, v%d, %s, s%d offen offset:%d%s' % (
                    vr(q, 4), self.vSV, sr(S_WS, 4), sST + pidx, 256 * tl, self.sc), 'st'))
            else:
                so = 's%d' % (sST + pidx)
                if tl == 1:
                    out.append(('s_add_u32 s%d, s%d, 0x10000' % (sT1, sST + pidx), None))
                    so = 's%d' % sT1
                out.append(('buffer_store_dwordx4 %s, v%d, %s, %s offen%s' % (
                    vr(q, 4), self.vL16, sr(S_WS, 4), so, self.sc), 'st'))
        return out

    def epi_geglu(self, acc, pidx):
        out = []
        for tl in range(2):
            q = self.TMP + 4 * tl
            for hf in range(2):
                g0 = acc + 8 * tl + 4 * hf
                u0 = g0 + 16
                t0 = self.TMP + 8 + 4 * hf
                blk = []
                for e in range(4):
                    blk.append('v_mul_f32 v%d, v%d, v%d' % (t0 + e, g0 + e, g0 + e))
                for e in range(4):
                    blk.append('v_fma_f32 v%d, v%d, s%d, v%d' % (t0 + e, t0 + e, sK1, self.vK0))
                for e in range(4):
                    blk.append('v_mul_f32 v%d, v%d, v%d' % (t0 + e, t0 + e, g0 + e))
                for e in range(4):
                    blk.append('v_exp_f32 v%d, v%d' % (t0 + e, t0 + e))
                for e in range(4):
                    blk.append('v_mul_f32 v%d, v%d, v%d' % (g0 + e, g0 + e, u0 + e))
                for e in range(4):
                    blk.append('v_add_f32 v%d, 1.0, v%d' % (t0 + e, t0 + e))
                for e in range(4):
                    blk.append('v_rcp_f32 v%d, v%d' % (t0 + e, t0 + e))
                for e in range(4):
                    blk.append('v_mul_f32 v%d, v%d, v%d' % (g0 + e, g0 + e, t0 + e))
                blk.append('v_cvt_pk_bf16_f32 v%d, v%d, v%d' % (q + 2 * hf, g0, g0 + 1))
                blk.append('v_cvt_pk_bf16_f32 v%d, v%d, v%d' % (q + 2 * hf + 1, g0 + 2, g0 + 3))
                out += [(b, None) for b in blk]
            out.append(('buffer_store_dwordx4 %s, v%d, %s, s%d offen offset:%d%s' % (
                vr(q, 4), self.vL16, sr(S_WS, 4), sST + pidx, 1024 * tl, self.sc), 'st'))
        return out

    BGRATE = 4

    def run_passes(self, passes, stages, first_stage_ready, pre_ev, post_ev):
        a = self.a
        items = []
        for p in passes:
            nst = 2 if p['kind'] == 'p1' else 4
            kper = 32 // nst
            npan = 1 if p['kind'] == 'p1' else 2
            for st in range(nst):
                for ks in range(kper):
                    for pn in range(npan):
                        items.append(dict(gs=p['stages'][st], p=p, s=st * kper + ks, ks=ks, pn=pn))
        n = len(items)
        bg, dq = [], []
        if first_stage_ready == 0:
            dq = list(self.dq0)

        def issue_reads(k):
            it = items[k]
            if it['gs'] > self.covered:
                a.wait_vm(('dma', it['gs']))
                a('s_barrier')
                self.covered = it['gs']
            slot = it['gs'] % self.NS
            off = (slot & 1) * 32768 + it['pn'] * 16384 + it['ks'] * 2048
            addr = self.vTR + (slot >> 1)
            dst = self.POOL + 4 * (k % self.NP)
            a('ds_read_b64_tr_b16 %s, v%d offset:%d' % (vr(dst, 2), addr, off), tag=('f', k))
            a('ds_read_b64_tr_b16 %s, v%d offset:%d' % (vr(dst + 2, 2), addr, off + 512), tag=('f', k))

        def pop_bg(cnt):
            for _ in range(cnt):
                if not bg:
                    return
                t = bg.pop(0)
                a(t[0], tag=t[1])

        cur_gs, issued, kst, later = None, 0, 0, None
        for k in range(n):
            it = items[k]
            p = it['p']
            if it['gs'] != cur_gs:
                cur_gs = it['gs']
                if cur_gs != first_stage_ready:
                    if (cur_gs + 1) in stages:
                        a.wait_vm(('dma', cur_gs + 1))
                        self.covered = cur_gs + 1
                    for f in pre_ev.get(cur_gs, []):
                        f()
                    if self.STAMP2:
                        self.stamp(8 + 2 * cur_gs, 248)
                    a('s_barrier')
                    if self.STAMP2:
                        self.stamp(9 + 2 * cur_gs, 248)
                    for f in post_ev.get(cur_gs, []):
                        f()
                    assert not dq
                    if (cur_gs + self.NS - 1) in stages:
                        dq = list(stages[cur_gs + self.NS - 1])
                    kst = k
            while issued < n and issued <= k + self.LA:
                issue_reads(issued)
                issued += 1
            a.wait_lg(('f', k))
            w = self.POOL + 4 * (k % self.NP)
            acc = p['acc'] + 16 * it['pn']
            x = 4 * it['s']
            c = '0' if it['s'] == 0 else vr(acc, 16)
            if p.get('isv'):
                a('v_mfma_f32_32x32x16_bf16 %s, %s, %s, %s' % (vr(acc, 16), vr(x, 4), vr(w, 4), c))
            else:
                a('v_mfma_f32_32x32x16_bf16 %s, %s, %s, %s' % (vr(acc, 16), vr(w, 4), vr(x, 4), c))
            PR = int(ENV('PRIO', '8'))
            if PR and (k % 16) == 0:
                self.prio_young(1)
            if PR and (k % 16) == PR:
                self.prio_young(0)
            if later is not None and k >= later[0]:
                bg.extend(later[1])
                later = None
            if dq and ((k - kst) % 4 == 1 or cur_gs == 0):
                self.emit_group(dq.pop(0))
            pop_bg(self.BGRATE)
            if (k == n - 1) or (items[k + 1]['p'] is not p):
                assert later is None
                pop_bg(10 ** 6)
                if p['kind'] == 'p1':
                    e = self.epi_qkv(p['acc'], p['pidx'], p.get('isv'), p.get('scale'))
                else:
                    e = self.epi_geglu(p['acc'], p['pidx'])
                later = (k + 3, e)
        bg.extend(later[1])
        return bg

    def phase1(self, p3_stages):
        a = self.a
        vEP = self.vEP
        LB, LJ = self.lab('typeB'), self.lab('p1join')
        a('s_cmp_eq_u32 s%d, 3' % sI)
        a.branch('s_cbranch_scc1 ' + LB)
        vm0 = list(a.vm)
        for typ in ('A', 'B'):
            a.vm = list(vm0)
            if typ == 'B':
                a.label(LB)
            self.p1_scalar_setup(typ)
            if typ == 'A':
                plist = [('p1', 0), ('p2', 1), ('p2', 2)]
            else:
                plist = [('p1', 0), ('p1', 1), ('p1', 2), ('p2', 3)]
            stages, passes, gs = {}, [], 0
            for k, (kind, pidx) in enumerate(plist):
                nst = 2 if kind == 'p1' else 4
                ids = list(range(gs, gs + nst))
                for st, g_ in enumerate(ids):
                    stages[g_] = (self.dma_p1 if kind == 'p1' else self.dma_p2)(pidx, st, g_ % self.NS, g_)
                gs += nst
                passes.append(dict(kind=kind, pidx=pidx, stages=ids,
                                   acc=self.ACC[(k + 1) % 2 if typ == 'A' else k % 2],
                                   isv=(typ == 'B' and k == 2), scale=(k == 0)))
            for k, f in enumerate(p3_stages):
                stages[10 + k] = f((10 + k) % self.NS, 10 + k)
            WL = ENV('WARMLATE', '1')
            if WL == '0':
                self.warm_p1(typ)
            if self.EARLYW:
                self.warm_p1(typ, True)
            self.epoch_issue(vEP)
            if ENV('TLB', '1') == '1':
                self.tlb_touch(typ)

            def mid():
                for grp in stages[0]:
                    self.emit_group(grp)
                if WL == '1':
                    self.warm_p1(typ)
                if ENV('WARM3', '1') == '2':
                    self.warm_p3()
            self.layernorm(mid)
            for grp in stages[1]:
                self.emit_group(grp)
            self.dq0 = [grp for g_ in range(2, self.NS) for grp in stages[g_]]
            self.stamp(1, self.POOL)
            k0 = -2.0 * math.log2(math.e) * math.sqrt(2.0 / math.pi)
            a('s_mov_b32 s%d, %s' % (sK1, f32(k0 * 0.044715)))
            a('v_mov_b32 v%d, %s' % (self.vK0, f32(k0)))
            self.covered = 0
            self.stamp(2, self.POOL)
            gq = 4 if typ == 'A' else 7
            pre, post = {}, {}
            pre[4] = [lambda: self.epoch_get(vEP)]
            pre.setdefault(gq, []).append(lambda: a.wait_vm('st'))
            post[gq] = [lambda: self.publish(0, vEP)]
            if ENV('WARM3', '1') == '1':
                post.setdefault(int(ENV('W3ST', '3')), []).append(self.warm_p3)
            post.setdefault(11 - self.NS, []).append(self.p3_setup_dma)
            if ENV('W3L2'):
                post.setdefault(int(ENV('W3L2')), []).append(self.warm_p3_l2)
            post.setdefault(9, []).append(lambda: self.flag_issue(0, sMB, 2, 'qflag'))
            if typ == 'A':
                LV, LA2 = self.lab('Av'), self.lab('Ajoin')
                a('s_cmp_eq_u32 s%d, 2' % sI)
                a.branch('s_cbranch_scc1 ' + LV)
                vm1, lg1 = list(a.vm), list(a.lg)
                for isv in (False, True):
                    a.vm, a.lg = list(vm1), list(lg1)
                    self.covered = 0
                    if isv:
                        a.label(LV)
                    passes[0]['isv'] = isv
                    passes[0]['scale'] = not isv
                    bg = self.run_passes(passes[:1], stages, 0, pre, post)
                    for t in bg:
                        a(t[0], tag=t[1])
                    if not isv:
                        a.branch('s_branch ' + LA2)
                a.label(LA2)
                self.stamp(3, self.POOL)
                bg = self.run_passes(passes[1:], stages, None, pre, post)
            else:
                bg = self.run_passes(passes, stages, 0, pre, post)
            self.stamp(4, self.POOL)
            self.flag_wait('qflag')
            self.attn_loads()
            for t in bg:
                a(t[0], tag=t[1])
            self.attn_loads_v()
            self.stamp(5, self.TMP)
            if typ == 'A':
                vmA = list(a.vm)
                a.branch('s_branch ' + LJ)
        tail = lambda q: [t for t in q[q.index('q'):]]
        assert tail(vmA) == tail(a.vm), (tail(vmA), tail(a.vm))
        if len(vmA) > len(a.vm):
            a.vm = vmA
        a.label(LJ)

    def KR(self, j):
        return 104 + 4 * j

    MERGE = ENV('MERGE', '0') == '1'

    def VR(self, j, m):
        if self.MERGE:
            return 144 + 4 * j if j < 4 else 192 + 4 * (j - 4)
        return (192 + 8 * j if j < 3 else 32 + 8 * (j - 3)) + 4 * m

    AQ = 140
    CB = 144
    aTQ, aNEG, aM = 248, 249, 251
    mM, mMJ, mLS = 244, 245, 246
    vPUB = 253
    vST = 103
    sVO = 76

    def v_load(self, j):
        a = self.a
        a('s_mov_b32 exec_lo, 0x0000ffff')
        a('s_mov_b32 exec_hi, 0x0000ffff')
        a('buffer_load_dwordx4 %s, v%d, %s, s%d offen%s' % (vr(self.VR(j, 0), 4), self.vL16, sr(S_WS, 4), self.sVO + j, self.sc), tag=('v', j))
        a('s_mov_b32 exec_lo, 0xffff0000')
        a('s_mov_b32 exec_hi, 0xffff0000')
        a('buffer_load_dwordx4 %s, v%d, %s, s%d offen%s' % (vr(self.VR(j, 1), 4), self.vL16, sr(S_WS, 4), self.sVO + j, self.sc), tag=('v', j))
        a('s_mov_b64 exec, -1')

    def attn_loads(self):
        a = self.a
        vL16 = self.vL16
        a('s_lshl_b32 s%d, s%d, 3' % (sHEAD, sQUAD))
        a('s_lshl_b32 s%d, s%d, 1' % (sT0, sI))
        a('s_add_u32 s%d, s%d, s%d' % (sHEAD, sHEAD, sT0))
        a('s_add_u32 s%d, s%d, s%d' % (sHEAD, sHEAD, sC))
        a('s_lshl_b32 s%d, s%d, 2' % (sQB, sMB))
        a('s_add_u32 s%d, s%d, s%d' % (sQB, sQB, sR))
        a('s_lshl_b32 s%d, s%d, 6' % (sT0, sHEAD))
        a('s_add_u32 s%d, s%d, s%d' % (sT1, sT0, sQB))
        a('s_lshl_b32 s%d, s%d, 10' % (sT1, sT1))
        a('buffer_load_dwordx4 %s, v%d, %s, s%d offen%s' % (vr(self.AQ, 4), vL16, sr(S_WS, 4), sT1, self.sc), tag='q')
        for j in range(8, -1, -1):
            a('s_add_i32 s%d, s%d, %d' % (sT1, sQB, j - 8))
            a('s_max_i32 s%d, s%d, 0' % (sT1, sT1))
            a('s_add_u32 s%d, s%d, s%d' % (sT1, sT1, sT0))
            a('s_lshl_b32 s%d, s%d, 10' % (sT1, sT1))
            a('s_add_u32 s%d, s%d, 0x%x' % (sT2, sT1, 2 << 20))
            a('buffer_load_dwordx4 %s, v%d, %s, s%d offen%s' % (vr(self.KR(j), 4), vL16, sr(S_WS, 4), sT2, self.sc), tag=('k', j))
            a('s_add_u32 s%d, s%d, 0x%x' % (self.sVO + j, sT1, 4 << 20))
    def attn_loads_v(self):
        a = self.a
        vL16 = self.vL16
        for j in range(9):
            if self.MERGE:
                a('buffer_load_dwordx4 %s, v%d, %s, s%d offen%s' % (vr(self.VR(j, 0), 4), vL16, sr(S_WS, 4), self.sVO + j, self.sc), tag=('v', j))
                continue
            for r in range(8):
                a('v_mov_b32 v%d, s%d' % (self.VR(j, 0) + r, sONES))
            self.v_load(j)

    def mask_ops(self, b, diag):
        out = []
        for q in range(4):
            for r in range(4 * q, 4 * q + 4):
                cr = (r & 3) + 8 * (r >> 2)
                out.append('v_cmp_le_i32 %s, %d, v%d' % (sr(86 + 2 * (r % 4), 2), cr, self.aTQ))
            for r in range(4 * q, 4 * q + 4):
                m = sr(86 + 2 * (r % 4), 2)
                if diag:
                    out.append('v_cndmask_b32 v%d, v%d, v%d, %s' % (b + r, self.aNEG, b + r, m))
                else:
                    out.append('v_cndmask_b32 v%d, v%d, v%d, %s' % (b + r, b + r, self.aNEG, m))
        return out

    MK = (80, 81, 82, 83, 92, 93, 94, 95)

    def merge_ops(self, b8, b0, mk=False):
        out = []
        for q in range(4):
            for r in range(4 * q, 4 * q + 4):
                cr = (r & 3) + 8 * (r >> 2)
                out.append('v_cmp_le_i32 %s, %d, v%d' % (sr(86 + 2 * (r % 4), 2), cr, self.aTQ))
            for r in range(4 * q, 4 * q + 4):
                out.append('v_cndmask_b32 v%d, v%d, v%d, %s' % (b8 + r, b0 + r, b8 + r, sr(86 + 2 * (r % 4), 2)))
            if mk:
                for e in range(2):
                    k = self.MK[2 * q + e]
                    out.append('v_cndmask_b32 v%d, 0, v%d, %s' % (k, self.vFFFF, sr(86 + 4 * e, 2)))
                    out.append('v_cndmask_b32 v%d, v%d, -1, %s' % (k, k, sr(88 + 4 * e, 2)))
        return out

    vFFFF = 253

    def h_publish(self):
        a = self.a
        a.wait_vm('st')
        a('s_lshl_b32 s%d, s%d, 7' % (sT2, sQB))
        a('s_lshl_b32 s%d, s%d, 1' % (sT3, sCG4))
        a('s_add_u32 s%d, s%d, s%d' % (sT2, sT2, sT3))
        a('s_lshl_b32 s%d, s%d, 2' % (sT3, sC))
        a('s_add_u32 s%d, s%d, s%d' % (sT2, sT2, sT3))
        a('s_add_u32 s%d, s%d, 0x%x' % (sT2, sT2, WS_FLAGH))
        a('v_mov_b32 v%d, s%d' % (self.vPUB, sEPOCH))
        a('s_mov_b64 exec, 1')
        a('buffer_store_dword v%d, off, %s, s%d sc0 sc1' % (self.vPUB, sr(S_WS, 4), sT2), tag='flagst')
        a('s_mov_b64 exec, -1')

    def h_flag_issue(self):
        a = self.a
        va = self.vFL
        a('s_lshl_b32 s%d, s%d, 8' % (sT3, sTB))
        a('v_lshrrev_b32 v%d, 2, v%d' % (va, self.vL16))
        a('v_add_u32 v%d, s%d, v%d' % (va, sT3, va))
        a('v_add_u32 v%d, 0x%x, v%d' % (va, WS_FLAGH, va))
        a('buffer_load_dword v%d, v%d, %s, 0 offen sc0 sc1' % (va + 1, va, sr(S_WS, 4)), tag='hflag')

    def attn_pass1(self):
        a = self.a
        vL16 = self.vL16
        self.stamp(0, self.vST)
        TQ, NEG, M = self.aTQ, self.aNEG, 96
        a('v_bfe_u32 v%d, v%d, 4, 5' % (TQ, vL16))
        a('v_lshrrev_b32 v%d, 9, v%d' % (NEG, vL16))
        a('v_lshlrev_b32 v%d, 2, v%d' % (NEG, NEG))
        a('v_sub_u32 v%d, v%d, v%d' % (TQ, TQ, NEG))
        a('v_mov_b32 v%d, %s' % (NEG, f32(-1e30)))
        for c in range(3):
            a('v_mov_b32 v%d, v%d' % (M + c, NEG))
        bufs = (0, 16, 160, 176)
        A_, B_, C_, D_ = bufs
        def qk1(j, b):
            a.wait_vm(('k', j))
            a('v_mfma_f32_32x32x16_bf16 %s, %s, %s, 0' % (vr(b, 16), vr(self.KR(j), 4), vr(self.AQ, 4)))
        qk1(8, A_)
        qk1(7, C_)
        qk1(6, D_)
        qk1(0, B_)
        LD = self.lab('p1done')
        def mx(b):
            for q in range(8):
                c = M + (q % 3)
                a('v_max3_f32 v%d, v%d, v%d, v%d' % (c, c, b + 2 * q, b + 2 * q + 1))
        def guarded(j, b):
            a.raw('    s_cmp_lt_u32 s%d, %d' % (sQB, 8 - j))
            a.raw('    s_cbranch_scc1 L_skip%d_%s' % (j, LD))
            mx(b)
            a.raw('L_skip%d_%s:' % (j, LD))
        guarded(7, C_)
        qk1(5, C_)
        self.h_publish()
        guarded(6, D_)
        qk1(4, D_)
        L0 = self.lab('t0ok')
        a.raw('    s_cmp_ge_u32 s%d, 8' % sQB)
        a.raw('    s_cbranch_scc1 ' + L0)
        a.raw('    s_nop 7')
        a.raw('    s_nop 7')
        for r in range(16):
            a.raw('    v_mov_b32 v%d, v%d' % (B_ + r, NEG))
        a.raw(L0 + ':')
        for t in self.merge_ops(A_, B_):
            a(t)
        mx(A_)
        qk1(3, A_)
        qk1(2, B_)
        guarded(5, C_)
        qk1(1, C_)
        guarded(4, D_)
        guarded(3, A_)
        guarded(2, B_)
        guarded(1, C_)
        a('s_nop 11')
        a.flush()
        a('v_max3_f32 v%d, v%d, v%d, v%d' % (M, M, M + 1, M + 2))
        a('v_mov_b32 v%d, v%d' % (M + 1, M))
        a('v_permlane32_swap_b32 v%d, v%d' % (M, M + 1))
        a('v_max_f32 v%d, v%d, v%d' % (M, M, M + 1))
        if self.MERGE:
            a('v_mov_b32 v%d, v%d' % (self.mM, M))
            a('v_mov_b32 v%d, 0' % self.mLS)
            a('v_mov_b32 v%d, 0' % (self.mLS + 1))
        a('v_sub_f32 v%d, 0, v%d' % (self.aM, M))
        a('s_cmp_ge_u32 s%d, 8' % sQB)
        a('s_cselect_b64 %s, -1, 0' % sr(86, 2))
        a('v_cndmask_b32 v%d, v%d, v%d, %s' % (M, NEG, self.aM, sr(86, 2)))
        for r in range(16):
            if not self.MERGE:
                a('v_mov_b32 v%d, v%d' % (self.CB + r, M))
        self.stamp(1, self.vST)
        self.stamp(2, self.vST)

    def attn_pass2_merge(self):
        a = self.a
        out = []
        D1, D2 = 212, 228
        LS, M, MJ = self.mLS, self.mM, self.mMJ
        SB = lambda j: 160 + 16 * (j & 1)
        qk = lambda j: ('v_mfma_f32_32x32x16_bf16 %s, %s, %s, 0' % (vr(SB(j), 16), vr(self.KR(j), 4), vr(self.AQ, 4)), None)
        out.append(qk(0))
        for j in range(9):
            b = SB(j)
            if j + 1 < 9:
                out.append(qk(j + 1))
            if j < 8:
                def mj(j=j):
                    a('s_cmp_ge_u32 s%d, %d' % (sQB, 8 - j))
                    a('s_cselect_b32 s%d, 0, %s' % (sCNT, f32(1e30)))
                    a('v_add_f32 v%d, s%d, v%d' % (MJ, sCNT, M))
                out.append(mj)
            else:
                out.append(('v_mov_b32 v%d, v%d' % (MJ, M), None))
            if j in (0, 8):
                out += [(t, None) for t in self.mask_ops(b, j == 8)]
            for q in range(4):
                for r in range(4 * q, 4 * q + 4):
                    out.append(('v_sub_f32 v%d, v%d, v%d' % (b + r, b + r, MJ), None))
                for r in range(4 * q, 4 * q + 4):
                    out.append(('v_exp_f32 v%d, v%d' % (b + r, b + r), None))
                if q:
                    for r in range(4 * q - 4, 4 * q):
                        out.append(('v_add_f32 v%d, v%d, v%d' % (LS + (r & 1), LS + (r & 1), b + r), None))
                    for r in range(2 * q - 2, 2 * q):
                        out.append(('v_cvt_pk_bf16_f32 v%d, v%d, v%d' % (b + r, b + 2 * r, b + 2 * r + 1), None))
            for r in range(12, 16):
                out.append(('v_add_f32 v%d, v%d, v%d' % (LS + (r & 1), LS + (r & 1), b + r), None))
            for r in range(6, 8):
                out.append(('v_cvt_pk_bf16_f32 v%d, v%d, v%d' % (b + r, b + 2 * r, b + 2 * r + 1), None))
            if j == 0:
                out.append(lambda: a.wait_vm(('v', 8)))
            out.append(('v_mfma_f32_32x32x16_bf16 %s, %s, %s, %s' % (vr(D1, 16), vr(self.VR(j, 0), 4), vr(b, 4), '0' if j == 0 else vr(D1, 16)), None))
            out.append(('v_mfma_f32_32x32x16_bf16 %s, %s, %s, %s' % (vr(D2, 16), vr(self.VR(j, 0), 4), vr(b + 4, 4), '0' if j == 0 else vr(D2, 16)), None))
        T_ = []
        T_.append('v_add_f32 v%d, v%d, v%d' % (LS, LS, LS + 1))
        T_.append('v_mov_b32 v%d, v%d' % (LS + 1, LS))
        T_.append('v_permlane32_swap_b32 v%d, v%d' % (LS, LS + 1))
        T_.append('v_add_f32 v%d, v%d, v%d' % (LS, LS, LS + 1))
        T_.append('v_rcp_f32 v%d, v%d' % (LS, LS))
        T_.append('s_mul_i32 s%d, s%d, %d' % (sT2, sQB, NACT))
        T_.append('s_add_u32 s%d, s%d, s%d' % (sT2, sT2, sHEAD))
        T_.append('s_add_u32 s%d, s%d, 112' % (sT2, sT2))
        T_.append('s_lshl_b32 s%d, s%d, 10' % (sT2, sT2))
        T_.append('s_add_u32 s%d, s%d, 0x%x' % (sT2, sT2, WS_ACT))
        for r in range(8):
            T_.append('v_add_f32 v%d, v%d, v%d' % (D1 + r, D1 + r, D2 + 8 + r))
        for r in range(8):
            T_.append('v_mul_f32 v%d, v%d, v%d' % (D1 + r, D1 + r, LS))
        O = 160
        for r in range(4):
            T_.append('v_cvt_pk_bf16_f32 v%d, v%d, v%d' % (O + r, D1 + 2 * r, D1 + 2 * r + 1))
        out += [(t, None) for t in T_]
        out.append(('buffer_store_dwordx4 %s, v%d, %s, s%d offen%s' % (vr(O, 4), self.vL16, sr(S_WS, 4), sT2, self.sc), 'st'))
        k = int(ENV('MARKAT', '130'))
        out.insert(k, ('MARK', 4))
        out.insert(k + 1, ('MARK', 6))
        return out

    def attn_pass2(self):
        if self.MERGE:
            return self.attn_pass2_merge()
        a = self.a
        out = []
        D1, D2 = 216, 232
        CB = self.CB
        SB = lambda j: 160 + 16 * (j & 1)

        def qk(j, dst=None):
            dst = SB(j) if dst is None else dst
            def f():
                if j >= 1:
                    L = self.lab('cs')
                    a.raw('    s_cmp_lg_u32 s%d, %d' % (sQB, 8 - j))
                    a.raw('    s_cbranch_scc1 ' + L)
                    a.raw('    s_nop 7')
                    for r in range(16):
                        a.raw('    v_mov_b32 v%d, v%d' % (CB + r, self.aM))
                    a.raw('    s_nop 1')
                    a.raw(L + ':')
                a('v_mfma_f32_32x32x16_bf16 %s, %s, %s, %s' % (vr(dst, 16), vr(self.KR(j), 4), vr(self.AQ, 4), vr(CB, 16)))
            return f
        P = 84

        def pv(j, m):
            D = D2 if m else D1
            o = []
            if m == 0:
                o.append(lambda: a.wait_vm(('v', j)))
            o.append(('v_mfma_f32_32x32x16_bf16 %s, %s, %s, %s' % (vr(D, 16), vr(self.VR(j, m), 4), vr(P + 4 * m, 4), '0' if j == 0 else vr(D, 16)), None))
            if m == 1 and j == 2:
                o.append(self.h_flag_issue)
            if m == 1 and j in (4, 6):
                o.append(('MARK', j))
            return o
        P8 = (self.KR(0), self.KR(8))
        b0, b8 = SB(0), SB(1)
        out.append(qk(0))
        out.append(('v_mfma_f32_32x32x16_bf16 %s, %s, %s, 0' % (vr(b8, 16), vr(self.KR(8), 4), vr(self.AQ, 4)), None))
        out.append(('v_mov_b32 v%d, 0xffff' % self.vFFFF, None))
        for r in range(16):
            out.append(('v_add_f32 v%d, v%d, v%d' % (b8 + r, b8 + r, self.aM), None))
        out += [(t, None) for t in self.merge_ops(b8, b0, True)]
        SJ = lambda j: SB(j + 1)
        qk2 = lambda j: qk(j, SJ(j))
        out.append(qk2(1))
        for r in range(16):
            out.append(('v_exp_f32 v%d, v%d' % (b8 + r, b8 + r), None))
        for r in range(8):
            out.append(('v_cvt_pk_bf16_f32 v%d, v%d, v%d' % (P + r, b8 + 2 * r, b8 + 2 * r + 1), None))
        for r in range(8):
            out.append(('v_and_b32 v%d, v%d, v%d' % (P8[r >> 2] + (r & 3), P + r, self.MK[r]), None))
        for r in range(8):
            out.append(('v_xor_b32 v%d, v%d, v%d' % (P + r, P + r, P8[r >> 2] + (r & 3)), None))
        pv8 = [lambda: a.wait_vm(('v', 8))]
        for m in range(2):
            D = D2 if m else D1
            pv8.append(('v_mfma_f32_32x32x16_bf16 %s, %s, %s, %s' % (vr(D, 16), vr(self.VR(8, m), 4), vr(P8[m], 4), vr(D, 16)), None))
        for j in range(1, 8):
            b = SJ(j)
            for r in range(16):
                out.append(('v_exp_f32 v%d, v%d' % (b + r, b + r), None))
                if r == 1:
                    out += pv(j - 1, 0)
                if r == 5:
                    out += pv(j - 1, 1)
                if r == 9 and j < 7:
                    out.append(qk2(j + 1))
                if r == 13 and j == 1:
                    out += pv8[:2]
                if r == 13 and j == 2:
                    out += pv8[2:]
            for r in range(8):
                out.append(('v_cvt_pk_bf16_f32 v%d, v%d, v%d' % (P + r, b + 2 * r, b + 2 * r + 1), None))
        out += pv(7, 0) + pv(7, 1)
        T_ = []
        LS = D1 + 8
        T_.append('s_mul_i32 s%d, s%d, %d' % (sT2, sQB, NACT))
        T_.append('s_add_u32 s%d, s%d, s%d' % (sT2, sT2, sHEAD))
        T_.append('s_add_u32 s%d, s%d, 112' % (sT2, sT2))
        T_.append('s_lshl_b32 s%d, s%d, 10' % (sT2, sT2))
        T_.append('s_add_u32 s%d, s%d, 0x%x' % (sT2, sT2, WS_ACT))
        T_.append('v_add_f32 v%d, v%d, v%d' % (LS, LS, D2))
        T_.append('v_rcp_f32 v%d, v%d' % (LS, LS))
        for r in range(8):
            T_.append('v_add_f32 v%d, v%d, v%d' % (D1 + r, D1 + r, D2 + 8 + r))
        for r in range(8):
            T_.append('v_mul_f32 v%d, v%d, v%d' % (D1 + r, D1 + r, LS))
        O = 160
        for r in range(4):
            T_.append('v_cvt_pk_bf16_f32 v%d, v%d, v%d' % (O + r, D1 + 2 * r, D1 + 2 * r + 1))
        out += [(t, None) for t in T_]
        out.append(('buffer_store_dwordx4 %s, v%d, %s, s%d offen%s' % (vr(O, 4), self.vL16, sr(S_WS, 4), sT2, self.sc), 'st'))
        return out

    v3D = 252

    def p3_setup_dma(self):
        a = self.a
        ROW, P_, S_ = self.vFL, self.vFL + 1, 253
        a('s_and_b32 s%d, s%d, 3' % (sKQ, sW))
        a('s_lshr_b32 s%d, s%d, 2' % (sTH, sW))
        a('v_lshrrev_b32 v%d, 7, v%d' % (ROW, self.vL16))
        a('v_bfe_u32 v%d, v%d, 4, 3' % (P_, self.vL16))
        a('v_bfe_u32 v%d, v%d, 1, 1' % (S_, ROW))
        a('v_lshlrev_b32 v%d, 2, v%d' % (S_, S_))
        a('v_xor_b32 v%d, v%d, v%d' % (P_, P_, S_))
        a('v_lshlrev_b32 v%d, 4, v%d' % (P_, P_))
        a('v_lshrrev_b32 v%d, 2, v%d' % (S_, ROW))
        a('v_and_b32 v%d, 3, v%d' % (ROW, ROW))
        a('v_lshl_add_u32 v%d, v%d, 3, v%d' % (ROW, S_, ROW))
        a('v_lshl_add_u32 v%d, v%d, 10, v%d' % (self.v3D, ROW, P_))
        a('s_lshl_b32 s%d, s%d, 7' % (sT0, sNB))
        a('s_lshl_b32 s%d, s%d, 5' % (sT1, sTH))
        a('s_mul_i32 s%d, s%d, 448' % (sT2, sKQ))
        a('s_add_u32 s%d, s%d, s%d' % (sT2, sT2, sT1))
        a('s_lshl_b32 s%d, s%d, 10' % (sT2, sT2))
        a('s_add_u32 s%d, s%d, s%d' % (sWD, sT2, sT0))
        a('s_lshl_b32 s%d, s%d, 7' % (sT2, sKQ))
        a('s_add_u32 s%d, s%d, s%d' % (sT2, sT2, sT1))
        a('s_lshl_b32 s%d, s%d, 10' % (sT2, sT2))
        a('s_add_u32 s%d, s%d, s%d' % (sWOo, sT2, sT0))
        a('s_lshl_b32 s%d, s%d, 13' % (sT2, sKQ))
        a('s_lshl_b32 s%d, s%d, 12' % (sT1, sTH))
        a('s_add_u32 s%d, s%d, s%d' % (sWB3, sT2, sT1))

    def p3_stage_fn(self, st):
        def f(slot, gs):
            out = []
            for j in range(4):
                base, srd, s_ = (sWD, S_DOWN, st) if st < 7 else (sWOo, S_WO, st - 7)
                so = (64 * s_ + 16 * (j >> 1) + 4 * (j & 1)) * 1024
                out.append((['s_add_u32 s%d, s%d, 0x%x' % (sT0, base, so),
                             's_add_u32 m0, s%d, 0x%x' % (sWB3, slot * 32768 + 1024 * j),
                             'buffer_load_dwordx4 v%d, %s, s%d offen lds' % (self.v3D, sr(srd, 4), sT0)], ('dma', gs)))
            return out
        return f

    def act_touch(self, isO, vt, vd):
        a = self.a
        per_wg, per_w, base = (64, 8, 112 * 1024) if isO else (224, 28, 0)
        a('s_lshr_b32 s%d, s%d, 2' % (sT2, sNB))
        a('s_lshl_b32 s%d, s%d, 1' % (sT3, sTB))
        a('s_add_u32 s%d, s%d, s%d' % (sT2, sT2, sT3))
        a('s_mul_i32 s%d, s%d, %d' % (sT2, sT2, NACT * 1024))
        a('s_and_b32 s%d, s%d, 3' % (sT3, sNB))
        a('s_mul_i32 s%d, s%d, %d' % (sT3, sT3, per_wg * 128))
        a('s_add_u32 s%d, s%d, s%d' % (sT2, sT2, sT3))
        a('s_mul_i32 s%d, s%d, %d' % (sT3, sW, per_w * 128))
        a('s_add_u32 s%d, s%d, s%d' % (sT2, sT2, sT3))
        a('s_add_u32 s%d, s%d, 0x%x' % (sT2, sT2, WS_ACT + base))
        a('v_lshlrev_b32 v%d, 3, v%d' % (vt, self.vL16))
        a('s_mov_b64 exec, 0x%x' % ((1 << per_w) - 1))
        a('buffer_load_dword v%d, v%d, %s, s%d offen%s' % (vd, vt, sr(S_WS, 4), sT2, self.sc), tag='warm')
        a('s_mov_b64 exec, -1')

    def phase3(self, gs0, dma_issued):
        a = self.a
        ACC, AB, PB = 0, 32, 80
        NP, LA = 4, 3
        vL16 = self.vL16
        TRa, vO, XR = 96, 102, 104
        att = self.attn_pass2()
        ATR = int(ENV('ATR', '14'))
        self.stamp(0, self.vST)
        a('s_lshl_b32 s%d, s%d, 1' % (sT0, sTB))
        a('s_add_u32 s%d, s%d, s%d' % (sT0, sT0, sTH))
        a('s_mul_i32 s%d, s%d, %d' % (sT1, sT0, NACT))
        a('s_mul_i32 s%d, s%d, 28' % (sT2, sKQ))
        a('s_add_u32 s%d, s%d, s%d' % (sT2, sT2, sT1))
        a('s_lshl_b32 s%d, s%d, 10' % (sT2, sT2))
        a('s_add_u32 s%d, s%d, 0x%x' % (sACT, sT2, WS_ACT))
        a('s_lshl_b32 s%d, s%d, 3' % (sT2, sKQ))
        a('s_add_u32 s%d, s%d, s%d' % (sT2, sT2, sT1))
        a('s_add_u32 s%d, s%d, 112' % (sT2, sT2))
        a('s_lshl_b32 s%d, s%d, 10' % (sT2, sT2))
        a('s_add_u32 s%d, s%d, 0x%x' % (sACTO, sT2, WS_ACT))

        def act_loads(st):
            base, off = (sACT, st * 4096) if st < 7 else (sACTO, (st - 7) * 4096)
            out = [('s_add_u32 s%d, s%d, 0x%x' % (sT1, base, off), None)]
            for j in range(4):
                out.append(('buffer_load_dwordx4 %s, v%d, %s, s%d offen offset:%d%s' % (
                    vr(AB + 16 * (st % 3) + 4 * j, 4), vL16, sr(S_WS, 4), sT1, 1024 * j, self.sc), ('act', st, j)))
            return out

        NS = self.NS
        stages = {gs0 + st: self.p3_stage_fn(st)((gs0 + st) % NS, gs0 + st) for st in range(9)}

        def pop_att(cnt):
            for _ in range(cnt):
                if not att:
                    return
                e = att.pop(0)
                if callable(e):
                    e()
                elif e[0] == 'MARK':
                    if e[1] == 4:
                        self.flag_wait('hflag')
                    for tx, tg in act_loads(0 if e[1] == 4 else 1):
                        a(tx, tag=tg)
                else:
                    a(e[0], tag=e[1])

        A_, B_, C_ = 80, 81, 82
        a('v_lshrrev_b32 v%d, 9, v%d' % (A_, vL16))
        a('v_bfe_u32 v%d, v%d, 6, 2' % (B_, vL16))
        a('v_lshl_add_u32 v%d, v%d, 3, v%d' % (B_, A_, B_))
        a('v_lshlrev_b32 v%d, 7, v%d' % (B_, B_))
        a('v_bfe_u32 v%d, v%d, 8, 1' % (C_, vL16))
        a('v_lshl_add_u32 v%d, v%d, 5, v%d' % (B_, C_, B_))
        a('v_bfe_u32 v%d, v%d, 4, 2' % (C_, vL16))
        a('v_lshl_add_u32 v%d, v%d, 3, v%d' % (B_, C_, B_))
        a('s_lshl_b32 s%d, s%d, 13' % (sT0, sKQ))
        a('v_add_u32 v%d, s%d, v%d' % (B_, sT0, B_))
        a('v_bfe_u32 v%d, v%d, 7, 1' % (C_, vL16))
        a('v_lshl_add_u32 v%d, v%d, 6, v%d' % (TRa, C_, B_))
        a('v_xor_b32 v%d, 1, v%d' % (C_, C_))
        a('v_lshl_add_u32 v%d, v%d, 6, v%d' % (TRa + 1, C_, B_))
        a('v_add_u32 v%d, 0x10000, v%d' % (TRa + 2, TRa))
        a('v_add_u32 v%d, 0x10000, v%d' % (TRa + 3, TRa + 1))
        a('v_add_u32 v%d, 0x20000, v%d' % (TRa + 4, TRa))
        a('v_add_u32 v%d, 0x20000, v%d' % (TRa + 5, TRa + 1))
        a('s_lshl_b32 s%d, s%d, 1' % (sT0, sTB))
        a('s_add_u32 s%d, s%d, s%d' % (sT0, sT0, sTH))
        a('s_lshl_b32 s%d, s%d, 5' % (sT0, sT0))
        a('v_bfe_u32 v%d, v%d, 4, 5' % (B_, vL16))
        a('v_add_u32 v%d, s%d, v%d' % (B_, sT0, B_))
        a('v_lshlrev_b32 v%d, 10, v%d' % (B_, B_))
        a('v_lshl_add_u32 v%d, v%d, 4, v%d' % (B_, A_, B_))
        a('s_lshl_b32 s%d, s%d, 7' % (sT0, sNB))
        a('s_lshl_b32 s%d, s%d, 5' % (sT1, sKQ))
        a('s_add_u32 s%d, s%d, s%d' % (sT0, sT0, sT1))
        a('v_add_u32 v%d, s%d, v%d' % (vO, sT0, B_))

        items = [(st, j, ft) for st in range(9) for j in range(4) for ft in range(2)]
        n = len(items)
        bg = []

        def issue_reads(k):
            st, j, ft = items[k]
            slot = (gs0 + st) % NS
            off = (slot & 1) * 32768 + j * 2048
            addr = TRa + ft + 2 * (slot >> 1)
            dst = PB + 4 * (k % NP)
            a('ds_read_b64_tr_b16 %s, v%d offset:%d' % (vr(dst, 2), addr, off), tag=('f', k))
            a('ds_read_b64_tr_b16 %s, v%d offset:%d' % (vr(dst + 2, 2), addr, off + 512), tag=('f', k))

        def pop_bg(cnt):
            for _ in range(cnt):
                if not bg:
                    return
                tt = bg.pop(0)
                if isinstance(tt[0], list):
                    self.emit_group(tt)
                else:
                    a(tt[0], tag=tt[1])

        pop_att(int(ENV('ATPRE', '160' if self.MERGE else '9999')))
        if self.STAMP2:
            self.stamp(28, self.vST)
        pop_att(int(ENV('ATPRE2', '30')))
        a.wait_vm(('dma', gs0 + 1))
        a('s_barrier')
        for tx, tg in act_loads(2):
            a(tx, tag=tg)
        for st in range(dma_issued, NS):
            for grp in stages[gs0 + st]:
                self.emit_group(grp)
        self.stamp(1, self.vST)
        issued, cur = 0, 0
        opub = None
        for k in range(n):
            st, j, ft = items[k]
            if st != cur:
                cur = st
                if st + 1 < 9:
                    a.wait_vm(('dma', gs0 + st + 1))
                if opub is None and not att:
                    a.wait_vm('st')
                if self.STAMP2:
                    self.stamp(8 + 2 * st, self.vST)
                a('s_barrier')
                if self.STAMP2:
                    self.stamp(9 + 2 * st, self.vST)
                if opub is None and not att:
                    opub = st
                    self.publish(2, self.vPUB)
                    self.stamp(5, self.vST)
                dm = list(stages[gs0 + st + NS - 1]) if st + NS - 1 < 9 else []
                if st == 7:
                    self.epoch_chk_issue()
                if st == 5:
                    assert opub is not None
                    self.flag_issue(2, sTB, 0, 'oflag', shr=1)
                if st == 6:
                    self.flag_wait('oflag')
                    self.stamp(6, self.vST)
                al = []
                if st + 2 < 7:
                    al = act_loads(st + 2)
                elif st == 6:
                    al = act_loads(7) + act_loads(8)[0:]
                if st == 6:
                    bg.extend(al)
                else:
                    bg.extend(al[:1])
                    al = al[1:]
                    for q in range(4):
                        bg.extend(al[q:q + 1])
                        bg.extend(dm[q:q + 1])
                if st == 6:
                    bg.append(('buffer_load_dwordx4 %s, v%d, %s, 0 offen' % (vr(XR, 4), vO, sr(S_X, 4)), 'xr'))
            while issued < n and issued <= k + LA:
                issue_reads(issued)
                issued += 1
            a.wait_vm(('act', st, j))
            a.wait_lg(('f', k))
            acc = ACC + 16 * ft
            c = '0' if (st == 0 and j == 0) else vr(acc, 16)
            a('v_mfma_f32_32x32x16_bf16 %s, %s, %s, %s' % (vr(acc, 16), vr(PB + 4 * (k % NP), 4),
                                                         vr(AB + 16 * (st % 3) + 4 * j, 4), c))
            pop_att(ATR)
            while bg:
                isvm = isinstance(bg[0][0], list) or bg[0][1] is not None
                pop_bg(1)
                if isvm:
                    break
        pop_bg(10 ** 6)
        self.stamp(2, self.vST)
        last = (gs0 + 8) % NS
        rb = 0 if last >= 2 else 65536
        vW = A_
        a('s_mul_i32 s%d, s%d, 24576' % (sT0, sTH))
        a('s_add_u32 s%d, s%d, %d' % (sT0, sT0, rb))
        a('v_add_u32 v%d, s%d, v%d' % (vW, sT0, vL16))
        LBL = [self.lab('red%d' % q) for q in range(4)]
        LE = self.lab('rede')
        for q in range(1, 4):
            a('s_cmp_eq_u32 s%d, %d' % (sKQ, q))
            a.branch('s_cbranch_scc1 ' + LBL[q])
        RES = 64
        assert not att
        for q in range(4):
            if q:
                a.label(LBL[q])
            for o in range(4):
                if o == q:
                    continue
                off = o * 6144 + ((q - o - 1) & 3) * 2048
                a('ds_write_b128 v%d, %s offset:%d' % (vW, vr(ACC + 8 * o, 4), off))
                a('ds_write_b128 v%d, %s offset:%d' % (vW, vr(ACC + 8 * o + 4, 4), off + 1024))
            for e in range(8):
                a('v_mov_b32 v%d, v%d' % (RES + e, ACC + 8 * q + e))
            if q < 3:
                a.branch('s_branch ' + LE)
        a.label(LE)
        a('s_mul_i32 s%d, s%d, 6144' % (sT0, sKQ))
        a('v_add_u32 v%d, s%d, v%d' % (vW, sT0, vW))
        a.wait_lg0()
        a('s_barrier')
        RB = 32
        for sl in range(3):
            a('ds_read_b128 %s, v%d offset:%d' % (vr(RB + 8 * sl, 4), vW, sl * 2048), tag=('r', sl))
            a('ds_read_b128 %s, v%d offset:%d' % (vr(RB + 8 * sl + 4, 4), vW, sl * 2048 + 1024), tag=('r', sl))
        for sl in range(3):
            a.wait_lg(('r', sl))
            for e in range(8):
                a('v_add_f32 v%d, v%d, v%d' % (RES + e, RES + e, RB + 8 * sl + e))
        for e in range(4):
            a('v_permlane32_swap_b32 v%d, v%d' % (RES + e, RES + 4 + e))
        a.wait_vm('xr')
        for e in range(4):
            a('v_lshlrev_b32 v%d, 16, v%d' % (RB + 2 * e, XR + e))
            a('v_and_b32 v%d, s%d, v%d' % (RB + 2 * e + 1, sMASKHI, XR + e))
        for e in range(8):
            a('v_add_f32 v%d, v%d, v%d' % (RES + e, RES + e, RB + e))
        for e in range(4):
            a('v_cvt_pk_bf16_f32 v%d, v%d, v%d' % (RB + 8 + e, RES + 2 * e, RES + 2 * e + 1))
        a('buffer_store_dwordx4 %s, v%d, %s, 0 offen' % (vr(RB + 8, 4), vO, sr(S_OUT, 4)), tag='st')
        self.epoch_clear()
        self.stamp(3, self.vST)
        if self.STAMPS:
            a.wait_vm0()
            self.stamp(4, self.vST)


HEADER = open('cdna_kernels/%s.s.ref' % NAME).read().split('; Override launch geometry')[0]

KD = '''.section .rodata,"a"
.p2align 6
.amdhsa_kernel %s
  .amdhsa_next_free_vgpr 256
  .amdhsa_next_free_sgpr 102
  .amdhsa_accum_offset 256
  .amdhsa_group_segment_fixed_size 0
  .amdhsa_kernarg_size 80
  .amdhsa_user_sgpr_count 2
  .amdhsa_user_sgpr_kernarg_segment_ptr 1
  .amdhsa_system_sgpr_workgroup_id_x 1
.end_amdhsa_kernel
'''


def build():
    g = Gen()
    g.prologue()
    g.phase1([g.p3_stage_fn(st) for st in range(g.NS - 1)])
    g.KIDX = 1
    g.attn_pass1()
    g.KIDX = 2
    g.phase3(10, g.NS - 1)
    g.a.label('L_end')
    g.a('s_endpgm')
    g.a.raw('L_kend:')
    out = HEADER
    out += '; @launch grid=(256,1,1) block=(512,1,1) lds=163840\n'
    out += '.amdgcn_target "amdgcn-amd-amdhsa--gfx950"\n'
    out += '.text\n.globl %s\n.p2align 8\n.type %s,@function\n%s:\n' % (KNAME, KNAME, KNAME)
    out += g.a.text() + KD % KNAME
    return out


if __name__ == '__main__':
    dst = sys.argv[1] if len(sys.argv) > 1 else 'cdna_kernels/%s.s' % NAME
    txt = build()
    if ENV('ALIGN', '4') != '0':
        from alignpass import align
        txt, nn = align(txt, int(ENV('ALIGN', '4')))
        print('alignment nops:', nn)
    open(dst, 'w').write(txt)
    print('wrote', dst, len(txt), 'bytes')
```

```python
import math
import os
import struct
import sys
from asmlib import Asm, vr, sr

NAME = 'parallel_sum__sliding_block__glu_gated_geglu__prompt'
KNAME = NAME + '_kernel'
ENV = os.environ.get

T, D, F, H = 2048, 512, 1792, 32
WS_QKV = 0
WS_ACT = 6 << 20
WS_FLAG = 16 << 20
WS_FLAGH = WS_FLAG + 8192
WS_BYTES = WS_FLAGH + 8192
NACT = 144

S_X, S_WQKV, S_GATE, S_UP, S_DOWN, S_WO, S_OUT, S_WS, S_DBG = 4, 8, 12, 16, 20, 24, 28, 32, 36
sW, sMB, sQUAD, sI, sR, sC, sWB = 40, 41, 42, 43, 44, 45, 46
sCOL = 47
sST = 51
sCNT = 55
sT0, sT1, sT2, sT3 = 56, 57, 58, 59
sONES, sMASKHI, sK0, sK1, sQS = 60, 61, 62, 63, 64
sTB, sNB, sKQ, sTH = 65, 66, 67, 68
sACT, sACTO, sWD, sWOo, sWB3 = 69, 70, 71, 72, 73
sQB, sHEAD = 74, 75
sM = 76
sEPOCH, sCG4 = 94, 95
SCALE = 0.25 * math.log2(math.e)


def f32(x):
    return '0x%08x' % struct.unpack('<I', struct.pack('<f', x))[0]


class Gen:
    STAMPS = bool(ENV('STAMPS'))
    STAMP2 = bool(ENV('STAMP2'))

    def __init__(self):
        self.a = Asm()
        self.sc = ' sc1'
        self.uid = 0
        self.KIDX = 0

    def lab(self, s):
        self.uid += 1
        return 'L_%s_%d' % (s, self.uid)

    def stamp(self, i, vtmp):
        if not self.STAMPS:
            return
        a = self.a
        a('s_memrealtime s[98:99]')
        a('s_memtime s[96:97]')
        a('s_lshl_b32 s100, s2, 3')
        a('s_add_u32 s100, s100, s%d' % sW)
        a('s_lshl_b32 s100, s100, 8')
        a('s_add_u32 s100, s100, 0x%x' % ((32 << 20) + self.KIDX * (1 << 20)))
        a.wait_lg0()
        a('v_mov_b32 v%d, s98' % vtmp)
        a('buffer_store_dword v%d, off, %s, s100 offset:%d' % (vtmp, sr(S_WS, 4), 4 * i), tag='stamp')
        a('s_nop 1')
        a('v_mov_b32 v%d, s96' % vtmp)
        a('buffer_store_dword v%d, off, %s, s100 offset:%d' % (vtmp, sr(S_WS, 4), 128 + 4 * i), tag='stamp')

    def prio_young(self, p):
        L = self.lab('pr')
        self.a.raw('    s_cmp_lt_u32 s%d, 4' % sW)
        self.a.raw('    s_cbranch_scc1 ' + L)
        self.a.raw('    s_setprio %d' % p)
        self.a.raw(L + ':')

    def lane(self, v):
        self.a('v_mbcnt_lo_u32_b32 v%d, -1, 0' % v)
        self.a('v_mbcnt_hi_u32_b32 v%d, -1, v%d' % (v, v))

    XB = 0
    ACC = (128, 160)
    POOL = 192
    NP = 8
    LA = int(ENV('LA', '6'))
    TMP = 224
    vTR = 243
    vL16 = 250
    vSV = 251
    vDQ, vDG = 252, 253
    vFL = 254
    vK0 = 246
    vEP = 247
    XLDS = 32768
    EARLYW = ENV('EARLYW', '1') == '1'
    MAP = int(ENV('MAP', '8'))
    NS = int(ENV('NS', '5'))

    def srd(self, srd, p, n):
        a = self.a
        a('s_mov_b32 s%d, s%d' % (srd, p))
        a('s_and_b32 s%d, s%d, 0xffff' % (srd + 1, p + 1))
        a('s_mov_b32 s%d, 0x%x' % (srd + 2, n))
        a('s_mov_b32 s%d, 0x00020000' % (srd + 3))

    def prologue(self):
        a = self.a
        t = self.TMP
        L = self.vL16 + 1
        a('s_cmp_ge_u32 s2, 256')
        a.branch('s_cbranch_scc1 L_end')
        if self.STAMPS:
            a('s_memrealtime s[%d:%d]' % (sK0, sK0 + 1))
        a('s_load_dwordx16 s[76:91], s[0:1], 0')
        a('s_load_dwordx4 s[92:95], s[0:1], 64')
        if ENV('CODEPF', '0') == '1':
            a('s_getpc_b64 s[%d:%d]' % (sT2, sT3))
            a.raw('L_pc:')
            a('s_sub_u32 s%d, s%d, L_pc-%s' % (sT2, sT2, KNAME))
            a('s_subb_u32 s%d, s%d, 0' % (sT3, sT3))
            a('v_lshlrev_b32 v1, 7, v0')
            a('v_min_u32 v1, L_kend-%s-4, v1' % KNAME)
            a('global_load_dword v%d, v1, s[%d:%d]' % (self.ACC[0] + 31, sT2, sT3), tag='warm')
        a('v_lshrrev_b32 v1, 6, v0')
        a('v_and_b32 v%d, 63, v0' % L)
        a('v_readfirstlane_b32 s%d, v1' % sW)
        a('s_and_b32 s%d, s2, 7' % sT0)
        a('s_lshr_b32 s%d, s2, 3' % sT1)
        if self.MAP == 8:
            a('s_and_b32 s%d, s%d, 1' % (sT2, sT0))
            a('s_lshl_b32 s%d, s%d, 3' % (sT2, sT2))
            a('s_and_b32 s%d, s%d, 7' % (sT3, sT1))
            a('s_add_u32 s%d, s%d, s%d' % (sMB, sT2, sT3))
            a('s_lshr_b32 s%d, s%d, 1' % (sQUAD, sT0))
            a('s_lshr_b32 s%d, s%d, 3' % (sI, sT1))
        else:
            a('s_and_b32 s%d, s%d, 3' % (sT2, sT0))
            a('s_lshl_b32 s%d, s%d, 2' % (sT2, sT2))
            a('s_and_b32 s%d, s%d, 3' % (sT3, sT1))
            a('s_add_u32 s%d, s%d, s%d' % (sMB, sT2, sT3))
            a('s_lshr_b32 s%d, s%d, 2' % (sT2, sT0))
            a('s_lshl_b32 s%d, s%d, 1' % (sT2, sT2))
            a('s_lshr_b32 s%d, s%d, 4' % (sT3, sT1))
            a('s_add_u32 s%d, s%d, s%d' % (sQUAD, sT2, sT3))
            a('s_bfe_u32 s%d, s%d, 0x20002' % (sI, sT1))
        a('s_lshl_b32 s%d, s%d, 2' % (sT2, sT0))
        a('s_and_b32 s%d, s%d, 3' % (sT3, sT1))
        a('s_add_u32 s%d, s%d, s%d' % (sTB, sT2, sT3))
        a('s_lshr_b32 s%d, s%d, 2' % (sNB, sT1))
        a('v_lshlrev_b32 v%d, 4, v%d' % (self.vL16, L))
        a('s_lshl_b32 s%d, s%d, 7' % (sT0, sMB))
        a('s_lshl_b32 s%d, s%d, 4' % (sT1, sW))
        a('s_add_u32 s%d, s%d, s%d' % (sT0, sT0, sT1))
        a('s_lshl_b32 s%d, s%d, 10' % (sT0, sT0))
        a('s_lshl_b32 s%d, s%d, 14' % (sT1, sW))
        a('s_waitcnt lgkmcnt(0)')
        self.srd(S_X, 76, T * D * 2)
        for n in range(16):
            a('v_xor_b32 v%d, %d, v%d' % (t + (n & 1), 16 * n, self.vL16))
            a('s_add_u32 s%d, s%d, %d' % (sT2, sT0, 1024 * n))
            a('s_add_u32 m0, s%d, %d' % (sT1, self.XLDS + 1024 * n))
            a('buffer_load_dwordx4 v%d, %s, s%d offen lds' % (t + (n & 1), sr(S_X, 4), sT2), tag=('xdma', n))
        for srd, p, n in ((S_WQKV, 78, D * 3 * D * 2), (S_WO, 80, D * D * 2), (S_GATE, 84, D * F * 2),
                          (S_UP, 86, D * F * 2), (S_DOWN, 88, F * D * 2), (S_OUT, 90, T * D * 2),
                          (S_DBG, 92, 256), (S_WS, 94, (64 << 20) if self.STAMPS else WS_BYTES)):
            self.srd(srd, p, n)
        self.stamp(0, t + 8)
        if self.STAMPS:
            a('v_mov_b32 v%d, s%d' % (t + 8, sK0))
            a('buffer_store_dword v%d, off, %s, s100 offset:%d' % (t + 8, sr(S_WS, 4), 4 * 31), tag='stamp')
        a('s_and_b32 s%d, s%d, 3' % (sR, sW))
        a('s_lshr_b32 s%d, s%d, 2' % (sC, sW))
        a('s_lshl_b32 s%d, s%d, 10' % (sWB, sW))
        a('s_mov_b32 s%d, 0x3f803f80' % sONES)
        a('s_mov_b32 s%d, 0xffff0000' % sMASKHI)
        a('s_lshl_b32 s%d, s%d, 2' % (sCG4, sQUAD))
        a('s_add_u32 s%d, s%d, s%d' % (sCG4, sCG4, sI))
        a('s_lshl_b32 s%d, s%d, 2' % (sCG4, sCG4))
        self.epoch_publish(self.vEP)
        I, G, A_, B_, C_ = t + 2, t + 3, t + 4, t + 5, t + 6
        a('v_and_b32 v%d, 15, v%d' % (I, L))
        a('v_lshrrev_b32 v%d, 4, v%d' % (G, L))
        LA_ = self.ACC[1]
        a('s_add_u32 s%d, s%d, %d' % (sT0, sT1, self.XLDS))
        a('v_lshlrev_b32 v%d, 10, v%d' % (A_, I))
        a('v_add_u32 v%d, s%d, v%d' % (A_, sT0, A_))
        a('v_and_b32 v%d, 3, v%d' % (B_, I))
        a('v_xor_b32 v%d, v%d, v%d' % (B_, B_, G))
        a('v_lshl_add_u32 v%d, v%d, 4, v%d' % (A_, B_, A_))
        a('v_lshrrev_b32 v%d, 2, v%d' % (B_, I))
        for q in range(4):
            a('v_xor_b32 v%d, %d, v%d' % (C_, q, B_))
            a('v_lshl_add_u32 v%d, v%d, 6, v%d' % (LA_ + q, C_, A_))
        a('s_lshl_b32 s%d, s%d, 15' % (sT0, sR))
        a('s_add_u32 s%d, s%d, %d' % (sT0, sT0, self.XLDS))
        a('v_and_b32 v%d, 31, v%d' % (A_, L))
        a('v_lshlrev_b32 v%d, 10, v%d' % (A_, A_))
        a('v_add_u32 v%d, s%d, v%d' % (A_, sT0, A_))
        a('v_lshrrev_b32 v%d, 5, v%d' % (B_, L))
        a('v_xor_b32 v%d, v%d, v%d' % (C_, B_, I))
        a('v_lshl_add_u32 v%d, v%d, 4, v%d' % (LA_ + 4, C_, A_))
        a('v_lshrrev_b32 v%d, 2, v%d' % (A_, I))
        a('v_lshl_add_u32 v%d, v%d, 3, v%d' % (A_, B_, A_))
        a('v_lshlrev_b32 v%d, 7, v%d' % (A_, A_))
        a('v_and_b32 v%d, 1, v%d' % (C_, G))
        a('v_lshl_add_u32 v%d, v%d, 5, v%d' % (A_, C_, A_))
        a('v_lshlrev_b32 v%d, 16, v%d' % (t + 7, C_))
        a('v_lshl_add_u32 v%d, v%d, 9, v%d' % (t + 7, B_, t + 7))
        a('v_lshl_add_u32 v%d, v%d, 4, v%d' % (t + 7, I, t + 7))
        a('v_and_b32 v%d, 3, v%d' % (C_, I))
        a('v_lshl_add_u32 v%d, v%d, 3, v%d' % (A_, C_, A_))
        a('v_bfe_u32 v%d, v%d, 3, 1' % (C_, I))
        a('v_xor_b32 v%d, s%d, v%d' % (C_, sC, C_))
        a('v_lshl_add_u32 v%d, v%d, 6, v%d' % (self.vTR, C_, A_))
        a('v_add_u32 v%d, 0x10000, v%d' % (self.vTR + 1, self.vTR))
        a('v_add_u32 v%d, 0x20000, v%d' % (self.vTR + 2, self.vTR))
        a('v_lshrrev_b32 v%d, 3, v%d' % (A_, L))
        a('v_and_b32 v%d, 7, v%d' % (B_, L))
        a('v_bfe_u32 v%d, v%d, 1, 1' % (C_, A_))
        a('v_lshlrev_b32 v%d, 2, v%d' % (C_, C_))
        a('v_xor_b32 v%d, v%d, v%d' % (B_, B_, C_))
        a('v_lshlrev_b32 v%d, 4, v%d' % (B_, B_))
        a('s_lshl_b32 s%d, s%d, 3' % (sT0, sW))
        a('v_add_u32 v%d, s%d, v%d' % (A_, sT0, A_))
        a('s_movk_i32 s%d, 3072' % sT0)
        a('s_movk_i32 s%d, 3584' % sT1)
        a('v_mad_u32_u24 v%d, v%d, s%d, v%d' % (self.vDQ, A_, sT0, B_))
        a('v_mad_u32_u24 v%d, v%d, s%d, v%d' % (self.vDG, A_, sT1, B_))
        a('v_mov_b32 v%d, v%d' % (t + 9, L))
        a('v_mov_b32 v%d, v%d' % (self.vSV, t + 7))

    def epoch_publish(self, vt):
        a = self.a
        L = self.lab('noep')
        a('s_or_b32 s%d, s2, s%d' % (sT0, sW))
        a('s_cmp_lg_u32 s%d, 0' % sT0)
        a.branch('s_cbranch_scc1 ' + L)
        a('s_memrealtime s[%d:%d]' % (sT2, sT3))
        a('s_waitcnt lgkmcnt(0)')
        a('s_or_b32 s%d, s%d, 1' % (sT2, sT2))
        a('v_mov_b32 v%d, s%d' % (vt, sT2))
        n = len(a.vm)
        a('buffer_store_dword v%d, off, %s, 0 sc0 sc1' % (vt, sr(S_DBG, 4)))
        del a.vm[n:]
        a.label(L)

    def epoch_issue(self, vt):
        self.a('buffer_load_dword v%d, off, %s, 0 sc0 sc1' % (vt, sr(S_DBG, 4)), tag='epoch')

    def epoch_get(self, vt):
        a = self.a
        Lr, Ld = self.lab('epr'), self.lab('epd')
        a.wait_vm('epoch')
        a('s_mov_b32 s%d, 0' % sCNT)
        a.label(Lr)
        a('v_readfirstlane_b32 s%d, v%d' % (sEPOCH, vt))
        a('s_cmp_lg_u32 s%d, 0' % sEPOCH)
        a.branch('s_cbranch_scc1 ' + Ld)
        a('s_sleep 4')
        n = len(a.vm)
        a('buffer_load_dword v%d, off, %s, 0 sc0 sc1' % (vt, sr(S_DBG, 4)))
        del a.vm[n:]
        a('s_waitcnt vmcnt(0)')
        a('s_add_u32 s%d, s%d, 1' % (sCNT, sCNT))
        a('s_cmp_lt_u32 s%d, 0x100000' % sCNT)
        a.branch('s_cbranch_scc1 ' + Lr)
        a.label(Ld)

    vEC = 148

    def epoch_chk_issue(self):
        a = self.a
        L = self.lab('noec')
        a('s_or_b32 s%d, s2, s%d' % (sT2, sW))
        a('s_cmp_lg_u32 s%d, 0' % sT2)
        a.branch('s_cbranch_scc1 ' + L)
        self._ec_loads()
        a.label(L)

    def _ec_loads(self):
        a = self.a
        v = self.vEC
        a('v_lshrrev_b32 v%d, 8, v%d' % (v, self.vL16))
        a('v_lshlrev_b32 v%d, 7, v%d' % (v, v))
        a('v_bfe_u32 v%d, v%d, 4, 4' % (v + 1, self.vL16))
        a('v_lshl_add_u32 v%d, v%d, 2, v%d' % (v, v + 1, v))
        a('v_add_u32 v%d, 0x%x, v%d' % (v, WS_FLAG + 4096, v))
        n = len(a.vm)
        for q in range(4):
            a('buffer_load_dword v%d, v%d, %s, 0 offen offset:%d sc0 sc1' % (v + 1 + q, v, sr(S_WS, 4), 512 * q))
        del a.vm[n:]

    def epoch_clear(self):
        a = self.a
        v = self.vEC
        L, Lr, Lc = self.lab('noclr'), self.lab('ecr'), self.lab('ecc')
        a('s_or_b32 s%d, s2, s%d' % (sT2, sW))
        a('s_cmp_lg_u32 s%d, 0' % sT2)
        a.branch('s_cbranch_scc1 ' + L)
        a('s_mov_b32 s%d, 0' % sCNT)
        a.label(Lr)
        for q in range(4):
            a('v_xor_b32 v%d, s%d, v%d' % (v + 1 + q, sEPOCH, v + 1 + q))
        a('v_or_b32 v%d, v%d, v%d' % (v + 1, v + 1, v + 2))
        a('v_or_b32 v%d, v%d, v%d' % (v + 3, v + 3, v + 4))
        a('v_or_b32 v%d, v%d, v%d' % (v + 1, v + 1, v + 3))
        a('v_cmp_ne_u32 vcc, 0, v%d' % (v + 1))
        a.branch('s_cbranch_vccz ' + Lc)
        a('s_sleep 4')
        self._ec_loads()
        a('s_waitcnt vmcnt(0)')
        a('s_add_u32 s%d, s%d, 1' % (sCNT, sCNT))
        a('s_cmp_lt_u32 s%d, 0x100000' % sCNT)
        a.branch('s_cbranch_scc1 ' + Lr)
        a.label(Lc)
        a('v_mov_b32 v%d, 0' % v)
        n = len(a.vm)
        a('buffer_store_dword v%d, off, %s, 0 sc0 sc1' % (v, sr(S_DBG, 4)))
        del a.vm[n:]
        a.label(L)

    def publish(self, kind, vt):
        a = self.a
        L = self.lab('nopub')
        a('s_cmp_lg_u32 s%d, 0' % sW)
        a.branch('s_cbranch_scc1 ' + L)
        a('s_lshl_b32 s%d, s%d, 7' % (sT2, sMB))
        a('s_add_u32 s%d, s%d, s%d' % (sT2, sT2, sCG4))
        a('s_add_u32 s%d, s%d, 0x%x' % (sT2, sT2, WS_FLAG + kind * 2048))
        a('v_mov_b32 v%d, s%d' % (vt, sEPOCH))
        a('s_mov_b64 exec, 1')
        n = len(a.vm)
        a('buffer_store_dword v%d, off, %s, s%d sc0 sc1' % (vt, sr(S_WS, 4), sT2))
        del a.vm[n:]
        a('s_mov_b64 exec, -1')
        a.label(L)

    def flag_issue(self, kind, smb, nback, tag, shr=0):
        a = self.a
        va = self.vFL
        if shr:
            a('s_lshr_b32 s%d, s%d, %d' % (sT3, smb, shr))
            smb = sT3
        a('v_lshrrev_b32 v%d, 8, v%d' % (va + 1, self.vL16))
        a('v_min_u32 v%d, %d, v%d' % (va + 1, nback, va + 1))
        a('v_sub_u32 v%d, s%d, v%d' % (va + 1, smb, va + 1))
        a('v_max_i32 v%d, 0, v%d' % (va + 1, va + 1))
        a('v_bfe_u32 v%d, v%d, 4, 4' % (va, self.vL16))
        a('v_lshlrev_b32 v%d, 2, v%d' % (va, va))
        a('v_lshl_add_u32 v%d, v%d, 7, v%d' % (va, va + 1, va))
        a('v_add_u32 v%d, 0x%x, v%d' % (va, WS_FLAG + kind * 2048, va))
        a('buffer_load_dword v%d, v%d, %s, 0 offen sc0 sc1' % (va + 1, va, sr(S_WS, 4)), tag=tag)

    def flag_wait(self, tag):
        a = self.a
        va = self.vFL
        Lr, Ld = self.lab('flr'), self.lab('fld')
        a.wait_vm(tag)
        a('s_mov_b32 s%d, 0' % sCNT)
        a.label(Lr)
        a('v_cmp_ne_u32 vcc, s%d, v%d' % (sEPOCH, va + 1))
        a.branch('s_cbranch_vccz ' + Ld)
        a('s_sleep 1')
        n = len(a.vm)
        a('buffer_load_dword v%d, v%d, %s, 0 offen sc0 sc1' % (va + 1, va, sr(S_WS, 4)))
        del a.vm[n:]
        a('s_waitcnt vmcnt(0)')
        a('s_add_u32 s%d, s%d, 1' % (sCNT, sCNT))
        a('s_cmp_lt_u32 s%d, 0x100000' % sCNT)
        a.branch('s_cbranch_scc1 ' + Lr)
        a.label(Ld)

    def p1_scalar_setup(self, typ):
        a = self.a
        a('s_lshl_b32 s%d, s%d, 2' % (sT3, sMB))
        a('s_add_u32 s%d, s%d, s%d' % (sT3, sT3, sR))
        a('s_mul_i32 s%d, s%d, %d' % (sT2, sT3, NACT))
        a('s_lshl_b32 s%d, s%d, 1' % (sT1, sC))
        a('s_add_u32 s%d, s%d, s%d' % (sT2, sT2, sT1))
        a('s_mul_i32 s%d, s%d, 7' % (sT0, sQUAD))
        if typ == 'A':
            a('s_lshl_b32 s%d, s%d, 10' % (sCOL, sI))
            a('s_lshl_b32 s%d, s%d, 7' % (sM, sQUAD))
            a('s_add_u32 s%d, s%d, s%d' % (sCOL, sCOL, sM))
            a('s_add_u32 s%d, s%d, 512' % (sCOL, sCOL))
            a('s_lshl_b32 s%d, s%d, 5' % (sST, sI))
            a('s_lshl_b32 s%d, s%d, 2' % (sM, sQUAD))
            a('s_add_u32 s%d, s%d, s%d' % (sST, sST, sM))
            a('s_add_u32 s%d, s%d, 16' % (sST, sST))
            a('s_add_u32 s%d, s%d, s%d' % (sST, sST, sT1))
            a('s_lshl_b32 s%d, s%d, 6' % (sST, sST))
            a('s_add_u32 s%d, s%d, s%d' % (sST, sST, sT3))
            a('s_lshl_b32 s%d, s%d, 10' % (sST, sST))
            a('s_lshl_b32 s%d, s%d, 1' % (sM, sI))
            a('s_add_u32 s%d, s%d, s%d' % (sT0, sT0, sM))
            for k in range(2):
                a('s_add_u32 s%d, s%d, %d' % (sM, sT0, k))
                a('s_lshl_b32 s%d, s%d, 7' % (sCOL + 1 + k, sM))
                a('s_lshl_b32 s%d, s%d, 2' % (sM, sM))
                a('s_add_u32 s%d, s%d, s%d' % (sM, sM, sT2))
                a('s_lshl_b32 s%d, s%d, 10' % (sM, sM))
                a('s_add_u32 s%d, s%d, 0x%x' % (sST + 1 + k, sM, WS_ACT))
            a('s_cmp_eq_u32 s%d, 0' % sI)
            a('s_cselect_b32 s%d, %s, 1.0' % (sQS, f32(SCALE)))
        else:
            for ty in range(3):
                a('s_lshl_b32 s%d, s%d, 7' % (sM, sQUAD))
                a('s_add_u32 s%d, s%d, %d' % (sCOL + ty, sM, 1024 * ty))
                a('s_lshl_b32 s%d, s%d, 2' % (sM, sQUAD))
                a('s_add_u32 s%d, s%d, %d' % (sM, sM, 32 * ty))
                a('s_add_u32 s%d, s%d, s%d' % (sM, sM, sT1))
                a('s_lshl_b32 s%d, s%d, 6' % (sM, sM))
                a('s_add_u32 s%d, s%d, s%d' % (sM, sM, sT3))
                a('s_lshl_b32 s%d, s%d, 10' % (sST + ty, sM))
            a('s_add_u32 s%d, s%d, 6' % (sM, sT0))
            a('s_lshl_b32 s%d, s%d, 7' % (sCOL + 3, sM))
            a('s_lshl_b32 s%d, s%d, 2' % (sM, sM))
            a('s_add_u32 s%d, s%d, s%d' % (sM, sM, sT2))
            a('s_lshl_b32 s%d, s%d, 10' % (sM, sM))
            a('s_add_u32 s%d, s%d, 0x%x' % (sST + 3, sM, WS_ACT))
            a('s_mov_b32 s%d, %s' % (sQS, f32(SCALE)))

    def warm_p1(self, typ, early=False):
        a = self.a
        t = self.TMP
        L = t + 9
        D0 = self.ACC[0] + 28
        R, U = t + 12, t + 13
        t = t + 8
        nrep = 8 // self.MAP
        a('s_bfe_u32 s%d, s2, 0x%x' % (sT0, 0x30003 if self.MAP == 8 else 0x20003))
        a('s_lshl_b32 s%d, s%d, 3' % (sT0, sT0))
        a('s_add_u32 s%d, s%d, s%d' % (sT0, sT0, sW))
        a('s_lshl_b32 s%d, s%d, %d' % (sT0, sT0, 3 if nrep == 1 else 4))
        a('v_and_b32 v%d, 7, v%d' % (R, L))
        a('v_add_u32 v%d, s%d, v%d' % (R, sT0, R))
        a('v_lshrrev_b32 v%d, 3, v%d' % (U, L))
        a('s_movk_i32 s%d, 3072' % sT0)
        a('s_movk_i32 s%d, 3584' % sT1)
        nq, ng = (1, 2) if typ == 'A' else (3, 1)
        cg_ = sCOL + 1 if typ == 'A' else sCOL + 3
        a('v_lshlrev_b32 v%d, 10, v%d' % (t + 6, U))
        a('v_mad_u32_u24 v%d, v%d, s%d, v%d' % (t + 6, R, sT0, t + 6))
        a('v_lshlrev_b32 v%d, 7, v%d' % (t + 7, U))
        a('v_mad_u32_u24 v%d, v%d, s%d, v%d' % (t + 7, R, sT1, t + 7))
        for rep in range(nrep):
            a('s_add_u32 s%d, s%d, %d' % (sT2, sCOL, rep * 8 * 3072))
            a('s_add_u32 s%d, s%d, %d' % (sT3, cg_, rep * 8 * 3584))
            if early:
                a('s_mov_b64 exec, 0xff')
                a('buffer_load_dword v%d, v%d, %s, s%d offen' % (D0, t + 6, sr(S_WQKV, 4), sT2), tag='warm')
                continue
            if not (self.EARLYW and nq == 1):
                a('s_mov_b64 exec, 0x%x' % (((1 << (8 * nq)) - 1) & (~0xff if self.EARLYW else -1)))
                a('buffer_load_dword v%d, v%d, %s, s%d offen' % (D0, t + 6, sr(S_WQKV, 4), sT2), tag='warm')
            a('s_mov_b64 exec, 0x%x' % ((1 << (8 * ng)) - 1))
            a('buffer_load_dword v%d, v%d, %s, s%d offen' % (D0 + 1, t + 7, sr(S_GATE, 4), sT3), tag='warm')
            a('buffer_load_dword v%d, v%d, %s, s%d offen' % (D0 + 2, t + 7, sr(S_UP, 4), sT3), tag='warm')
        a('s_mov_b64 exec, -1')

    def tlb_touch(self, typ):
        a = self.a
        D0 = self.ACC[0] + 27
        for p in range(3 if typ == 'A' else 4):
            a('buffer_load_dword v%d, off, %s, s%d' % (D0, sr(S_WS, 4), sST + p), tag='warm')
        a('s_lshl_b32 s%d, s%d, 16' % (sT0, sTB))
        a('s_lshl_b32 s%d, s%d, 7' % (sT1, sNB))
        a('s_add_u32 s%d, s%d, s%d' % (sT0, sT0, sT1))
        a('buffer_load_dword v%d, off, %s, s%d' % (D0, sr(S_OUT, 4), sT0), tag='warm')
        a('buffer_load_dword v%d, off, %s, s%d' % (D0, sr(S_WO, 4), sT1), tag='warm')
        a('buffer_load_dword v%d, off, %s, s%d' % (D0, sr(S_DOWN, 4), sT1), tag='warm')

    def warm_p3(self):
        a = self.a
        t0, t1 = self.vFL, self.vFL + 1
        a('v_lshlrev_b32 v%d, 3, v%d' % (t0, self.vL16))
        a('s_lshl_b32 s%d, s2, 3' % sT2)
        a('s_add_u32 s%d, s%d, s%d' % (sT2, sT2, sW))
        a('s_mul_i32 s%d, s%d, 896' % (sT3, sT2))
        a('s_mov_b64 exec, 0x7f')
        a('buffer_load_dword v%d, v%d, %s, s%d offen' % (t1, t0, sr(S_DOWN, 4), sT3), tag='warm')
        a('s_lshl_b32 s%d, s%d, 8' % (sT3, sT2))
        a('s_mov_b64 exec, 3')
        a('buffer_load_dword v%d, v%d, %s, s%d offen' % (t1, t0, sr(S_WO, 4), sT3), tag='warm')
        a('s_mov_b64 exec, -1')

    def warm_p3_l2(self):
        a = self.a
        t0, t1 = 240, 241
        a('v_lshlrev_b32 v%d, 3, v%d' % (t0, self.vL16))
        a('s_lshr_b32 s%d, s2, 3' % sT2)
        a('s_mul_i32 s%d, s%d, 57344' % (sT3, sT2))
        a('s_mul_i32 s%d, s%d, 7168' % (sM, sW))
        a('s_add_u32 s%d, s%d, s%d' % (sT3, sT3, sM))
        a('s_mov_b32 exec_hi, 0x00ffffff')
        a('buffer_load_dword v%d, v%d, %s, s%d offen' % (t1, t0, sr(S_DOWN, 4), sT3), tag='warm')
        a('s_lshl_b32 s%d, s%d, 14' % (sT3, sT2))
        a('s_lshl_b32 s%d, s%d, 11' % (sM, sW))
        a('s_add_u32 s%d, s%d, s%d' % (sT3, sT3, sM))
        a('s_mov_b64 exec, 0xffff')
        a('buffer_load_dword v%d, v%d, %s, s%d offen' % (t1, t0, sr(S_WO, 4), sT3), tag='warm')
        a('s_mov_b64 exec, -1')

    def dma_p1(self, pidx, st, slot, gs):
        out = []
        for j in range(4):
            out.append((['s_add_u32 s%d, s%d, 0x%x' % (sT0, sCOL + pidx, (256 * st + 64 * j) * 3072),
                         's_add_u32 m0, s%d, 0x%x' % (sWB, slot * 32768 + 8192 * j),
                         'buffer_load_dwordx4 v%d, %s, s%d offen lds' % (self.vDQ, sr(S_WQKV, 4), sT0)], ('dma', gs)))
        return out

    def dma_p2(self, pidx, st, slot, gs):
        out = []
        for j in range(2):
            for pn, srd in enumerate((S_GATE, S_UP)):
                out.append((['s_add_u32 s%d, s%d, 0x%x' % (sT0, sCOL + pidx, (128 * st + 64 * j) * 3584),
                             's_add_u32 m0, s%d, 0x%x' % (sWB, slot * 32768 + 16384 * pn + 8192 * j),
                             'buffer_load_dwordx4 v%d, %s, s%d offen lds' % (self.vDG, sr(srd, 4), sT0)], ('dma', gs)))
        return out

    def emit_group(self, grp):
        texts, tag = grp
        for t in texts[:-1]:
            self.a(t)
        self.a(texts[-1], tag=tag)

    def layernorm(self, mid):
        a = self.a
        LA_ = self.ACC[1]
        R0 = 0
        S = self.ACC[0]
        t = self.TMP
        for k in range(8):
            a('v_mov_b32 v%d, 0' % (S + k))
        a.wait_vm(('xdma', 15))
        self.stamp(28, self.POOL)
        for s in range(16):
            a('ds_read_b128 %s, v%d offset:%d' % (vr(R0 + 4 * s, 4), LA_ + (s & 3), (s >> 2) * 256), tag=('x', s))
        for s in range(16):
            if s % 2 == 0:
                a.wait_lg(('x', s + 1))
            for d in range(4):
                x = R0 + 4 * s + d
                a('v_dot2c_f32_bf16 v%d, s%d, v%d' % (S + d, sONES, x))
                a('v_dot2c_f32_bf16 v%d, v%d, v%d' % (S + 4 + d, x, x))
        if ENV('MIDPOS', '1') == '0':
            mid()
        for q in range(2):
            b = S + 4 * q
            a('v_add_f32 v%d, v%d, v%d' % (b, b, b + 1))
            a('v_add_f32 v%d, v%d, v%d' % (b + 2, b + 2, b + 3))
        M, E = S + 8, S + 9
        a('v_add_f32 v%d, v%d, v%d' % (M, S, S + 2))
        a('v_add_f32 v%d, v%d, v%d' % (E, S + 4, S + 6))
        for sw in ('v_permlane16_swap_b32', 'v_permlane32_swap_b32'):
            for q in range(2):
                a('v_mov_b32 v%d, v%d' % (S + q, M + q))
            for q in range(2):
                a('%s v%d, v%d' % (sw, M + q, S + q))
            for q in range(2):
                a('v_add_f32 v%d, v%d, v%d' % (M + q, M + q, S + q))
        a('s_mov_b32 s%d, %s' % (sT0, f32(1.0 / 512)))
        a('s_mov_b32 s%d, %s' % (sT1, f32(1e-5)))
        a('v_mul_f32 v%d, s%d, v%d' % (M, sT0, M))
        a('v_mul_f32 v%d, s%d, v%d' % (E, sT0, E))
        a('v_fma_f32 v%d, -v%d, v%d, v%d' % (E, M, M, E))
        a('v_max_f32 v%d, 0, v%d' % (E, E))
        a('v_cvt_pk_bf16_f32 v%d, v%d, v%d' % (S, M, E))
        a('v_lshlrev_b32 v%d, 16, v%d' % (M, S))
        a('v_and_b32 v%d, s%d, v%d' % (E, sMASKHI, S))
        a('v_add_f32 v%d, s%d, v%d' % (E, sT1, E))
        a('v_cvt_pk_bf16_f32 v%d, v%d, v%d' % (S, E, E))
        a('v_and_b32 v%d, s%d, v%d' % (E, sMASKHI, S))
        a('v_sqrt_f32 v%d, v%d' % (E, E))
        a('v_cvt_pk_bf16_f32 v%d, v%d, v%d' % (S, E, E))
        a('v_and_b32 v%d, s%d, v%d' % (E, sMASKHI, S))
        a('v_rcp_f32 v%d, v%d' % (E, E))
        a('v_mul_f32 v%d, v%d, v%d' % (M, M, E))
        a('v_sub_f32 v%d, 0, v%d' % (M, M))
        for s in range(16):
            for d in range(4):
                x = R0 + 4 * s + d
                tt = t + 2 * d
                a('v_lshlrev_b32 v%d, 16, v%d' % (tt, x))
                a('v_and_b32 v%d, s%d, v%d' % (tt + 1, sMASKHI, x))
            for d in range(4):
                tt = t + 2 * d
                if ENV('LNPK', '1') == '1':
                    a('v_pk_fma_f32 %s, %s, %s, %s op_sel:[0,1,0] op_sel_hi:[1,1,0]' % (vr(tt, 2), vr(tt, 2), vr(M, 2), vr(M, 2)))
                else:
                    a('v_fma_f32 v%d, v%d, v%d, v%d' % (tt, tt, E, M))
                    a('v_fma_f32 v%d, v%d, v%d, v%d' % (tt + 1, tt + 1, E, M))
            for d in range(4):
                tt = t + 2 * d
                a('v_cvt_pk_bf16_f32 v%d, v%d, v%d' % (R0 + 4 * s + d, tt, tt + 1))
            a('ds_write_b128 v%d, %s offset:%d' % (LA_ + (s & 3), vr(R0 + 4 * s, 4), (s >> 2) * 256))
        if ENV('MIDPOS', '1') == '1':
            mid()
        for q in range(1, 8):
            a('v_xor_b32 v%d, %d, v%d' % (LA_ + 4 + q, q << 5, LA_ + 4))
        a.wait_lg0()
        self.stamp(29, self.POOL)
        a('s_barrier')
        self.stamp(30, self.POOL)
        for s in range(32):
            a('ds_read_b128 %s, v%d offset:%d' % (vr(4 * s, 4), LA_ + 4 + (s & 7), (s >> 3) * 256), tag=('xf', s))
        a.wait_lg0()
        a.wait_vm(('dma', 0))
        a('s_barrier')

    def epi_qkv(self, acc, pidx, isv, scale):
        out = []
        if scale:
            for r in range(16):
                out.append(('v_mul_f32 v%d, s%d, v%d' % (acc + r, sQS, acc + r), None))
        for tl in range(2):
            q = self.TMP + 4 * tl
            for e in range(4):
                c = acc + 8 * tl + 2 * e
                out.append(('v_cvt_pk_bf16_f32 v%d, v%d, v%d' % (q + e, c, c + 1), None))
            if isv:
                out.append(('buffer_store_dwordx4 %s, v%d, %s, s%d offen offset:%d%s' % (
                    vr(q, 4), self.vSV, sr(S_WS, 4), sST + pidx, 256 * tl, self.sc), 'st'))
            else:
                so = 's%d' % (sST + pidx)
                if tl == 1:
                    out.append(('s_add_u32 s%d, s%d, 0x10000' % (sT1, sST + pidx), None))
                    so = 's%d' % sT1
                out.append(('buffer_store_dwordx4 %s, v%d, %s, %s offen%s' % (
                    vr(q, 4), self.vL16, sr(S_WS, 4), so, self.sc), 'st'))
        return out

    def epi_geglu(self, acc, pidx):
        out = []
        for tl in range(2):
            q = self.TMP + 4 * tl
            for hf in range(2):
                g0 = acc + 8 * tl + 4 * hf
                u0 = g0 + 16
                t0 = self.TMP + 8 + 4 * hf
                blk = []
                for e in range(4):
                    blk.append('v_mul_f32 v%d, v%d, v%d' % (t0 + e, g0 + e, g0 + e))
                for e in range(4):
                    blk.append('v_fma_f32 v%d, v%d, s%d, v%d' % (t0 + e, t0 + e, sK1, self.vK0))
                for e in range(4):
                    blk.append('v_mul_f32 v%d, v%d, v%d' % (t0 + e, t0 + e, g0 + e))
                for e in range(4):
                    blk.append('v_exp_f32 v%d, v%d' % (t0 + e, t0 + e))
                for e in range(4):
                    blk.append('v_mul_f32 v%d, v%d, v%d' % (g0 + e, g0 + e, u0 + e))
                for e in range(4):
                    blk.append('v_add_f32 v%d, 1.0, v%d' % (t0 + e, t0 + e))
                for e in range(4):
                    blk.append('v_rcp_f32 v%d, v%d' % (t0 + e, t0 + e))
                for e in range(4):
                    blk.append('v_mul_f32 v%d, v%d, v%d' % (g0 + e, g0 + e, t0 + e))
                blk.append('v_cvt_pk_bf16_f32 v%d, v%d, v%d' % (q + 2 * hf, g0, g0 + 1))
                blk.append('v_cvt_pk_bf16_f32 v%d, v%d, v%d' % (q + 2 * hf + 1, g0 + 2, g0 + 3))
                out += [(b, None) for b in blk]
            out.append(('buffer_store_dwordx4 %s, v%d, %s, s%d offen offset:%d%s' % (
                vr(q, 4), self.vL16, sr(S_WS, 4), sST + pidx, 1024 * tl, self.sc), 'st'))
        return out

    BGRATE = 4

    def run_passes(self, passes, stages, first_stage_ready, pre_ev, post_ev):
        a = self.a
        items = []
        for p in passes:
            nst = 2 if p['kind'] == 'p1' else 4
            kper = 32 // nst
            npan = 1 if p['kind'] == 'p1' else 2
            for st in range(nst):
                for ks in range(kper):
                    for pn in range(npan):
                        items.append(dict(gs=p['stages'][st], p=p, s=st * kper + ks, ks=ks, pn=pn))
        n = len(items)
        bg, dq = [], []
        if first_stage_ready == 0:
            dq = list(self.dq0)

        def issue_reads(k):
            it = items[k]
            if it['gs'] > self.covered:
                a.wait_vm(('dma', it['gs']))
                a('s_barrier')
                self.covered = it['gs']
            slot = it['gs'] % self.NS
            off = (slot & 1) * 32768 + it['pn'] * 16384 + it['ks'] * 2048
            addr = self.vTR + (slot >> 1)
            dst = self.POOL + 4 * (k % self.NP)
            a('ds_read_b64_tr_b16 %s, v%d offset:%d' % (vr(dst, 2), addr, off), tag=('f', k))
            a('ds_read_b64_tr_b16 %s, v%d offset:%d' % (vr(dst + 2, 2), addr, off + 512), tag=('f', k))

        def pop_bg(cnt):
            for _ in range(cnt):
                if not bg:
                    return
                t = bg.pop(0)
                a(t[0], tag=t[1])

        cur_gs, issued, kst, later = None, 0, 0, None
        for k in range(n):
            it = items[k]
            p = it['p']
            if it['gs'] != cur_gs:
                cur_gs = it['gs']
                if cur_gs != first_stage_ready:
                    if (cur_gs + 1) in stages:
                        a.wait_vm(('dma', cur_gs + 1))
                        self.covered = cur_gs + 1
                    for f in pre_ev.get(cur_gs, []):
                        f()
                    if self.STAMP2:
                        self.stamp(8 + 2 * cur_gs, 248)
                    a('s_barrier')
                    if self.STAMP2:
                        self.stamp(9 + 2 * cur_gs, 248)
                    for f in post_ev.get(cur_gs, []):
                        f()
                    assert not dq
                    if (cur_gs + self.NS - 1) in stages:
                        dq = list(stages[cur_gs + self.NS - 1])
                    kst = k
            while issued < n and issued <= k + self.LA:
                issue_reads(issued)
                issued += 1
            a.wait_lg(('f', k))
            w = self.POOL + 4 * (k % self.NP)
            acc = p['acc'] + 16 * it['pn']
            x = 4 * it['s']
            c = '0' if it['s'] == 0 else vr(acc, 16)
            if p.get('isv'):
                a('v_mfma_f32_32x32x16_bf16 %s, %s, %s, %s' % (vr(acc, 16), vr(x, 4), vr(w, 4), c))
            else:
                a('v_mfma_f32_32x32x16_bf16 %s, %s, %s, %s' % (vr(acc, 16), vr(w, 4), vr(x, 4), c))
            PR = int(ENV('PRIO', '8'))
            if PR and (k % 16) == 0:
                self.prio_young(1)
            if PR and (k % 16) == PR:
                self.prio_young(0)
            if later is not None and k >= later[0]:
                bg.extend(later[1])
                later = None
            if dq and ((k - kst) % 4 == 1 or cur_gs == 0):
                self.emit_group(dq.pop(0))
            pop_bg(self.BGRATE)
            if (k == n - 1) or (items[k + 1]['p'] is not p):
                assert later is None
                pop_bg(10 ** 6)
                if p['kind'] == 'p1':
                    e = self.epi_qkv(p['acc'], p['pidx'], p.get('isv'), p.get('scale'))
                else:
                    e = self.epi_geglu(p['acc'], p['pidx'])
                later = (k + 3, e)
        bg.extend(later[1])
        return bg

    def phase1(self, p3_stages):
        a = self.a
        vEP = self.vEP
        LB, LJ = self.lab('typeB'), self.lab('p1join')
        a('s_cmp_eq_u32 s%d, 3' % sI)
        a.branch('s_cbranch_scc1 ' + LB)
        vm0 = list(a.vm)
        for typ in ('A', 'B'):
            a.vm = list(vm0)
            if typ == 'B':
                a.label(LB)
            self.p1_scalar_setup(typ)
            if typ == 'A':
                plist = [('p1', 0), ('p2', 1), ('p2', 2)]
            else:
                plist = [('p1', 0), ('p1', 1), ('p1', 2), ('p2', 3)]
            stages, passes, gs = {}, [], 0
            for k, (kind, pidx) in enumerate(plist):
                nst = 2 if kind == 'p1' else 4
                ids = list(range(gs, gs + nst))
                for st, g_ in enumerate(ids):
                    stages[g_] = (self.dma_p1 if kind == 'p1' else self.dma_p2)(pidx, st, g_ % self.NS, g_)
                gs += nst
                passes.append(dict(kind=kind, pidx=pidx, stages=ids,
                                   acc=self.ACC[(k + 1) % 2 if typ == 'A' else k % 2],
                                   isv=(typ == 'B' and k == 2), scale=(k == 0)))
            for k, f in enumerate(p3_stages):
                stages[10 + k] = f((10 + k) % self.NS, 10 + k)
            WL = ENV('WARMLATE', '1')
            if WL == '0':
                self.warm_p1(typ)
            if self.EARLYW:
                self.warm_p1(typ, True)
            self.epoch_issue(vEP)
            if ENV('TLB', '1') == '1':
                self.tlb_touch(typ)

            def mid():
                for grp in stages[0]:
                    self.emit_group(grp)
                if WL == '1':
                    self.warm_p1(typ)
                if ENV('WARM3', '1') == '2':
                    self.warm_p3()
            self.layernorm(mid)
            for grp in stages[1]:
                self.emit_group(grp)
            self.dq0 = [grp for g_ in range(2, self.NS) for grp in stages[g_]]
            self.stamp(1, self.POOL)
            k0 = -2.0 * math.log2(math.e) * math.sqrt(2.0 / math.pi)
            a('s_mov_b32 s%d, %s' % (sK1, f32(k0 * 0.044715)))
            a('v_mov_b32 v%d, %s' % (self.vK0, f32(k0)))
            self.covered = 0
            self.stamp(2, self.POOL)
            gq = 4 if typ == 'A' else 7
            pre, post = {}, {}
            pre[4] = [lambda: self.epoch_get(vEP)]
            pre.setdefault(gq, []).append(lambda: a.wait_vm('st'))
            post[gq] = [lambda: self.publish(0, vEP)]
            if ENV('WARM3', '1') == '1':
                post.setdefault(int(ENV('W3ST', '3')), []).append(self.warm_p3)
            post.setdefault(11 - self.NS, []).append(self.p3_setup_dma)
            if ENV('W3L2'):
                post.setdefault(int(ENV('W3L2')), []).append(self.warm_p3_l2)
            post.setdefault(9, []).append(lambda: self.flag_issue(0, sMB, 2, 'qflag'))
            variants = (False, True) if typ == 'A' else (None,)
            if typ == 'A':
                LV = self.lab('Av')
                a('s_cmp_eq_u32 s%d, 2' % sI)
                a.branch('s_cbranch_scc1 ' + LV)
            vm1, lg1 = list(a.vm), list(a.lg)
            for isv in variants:
                a.vm, a.lg = list(vm1), list(lg1)
                self.covered = 0
                if isv:
                    a.label(LV)
                if typ == 'A':
                    passes[0]['isv'] = isv
                    passes[0]['scale'] = not isv
                bg = self.run_passes(passes, stages, 0, pre, post)
                self.stamp(4, self.POOL)
                self.flag_wait('qflag')
                self.attn_loads()
                for t in bg:
                    a(t[0], tag=t[1])
                self.attn_loads_v()
                self.stamp(5, self.TMP)
                if typ == 'A':
                    vmA = list(a.vm)
                    a.branch('s_branch ' + LJ)
        tail = lambda q: [t for t in q[q.index('q'):]]
        assert tail(vmA) == tail(a.vm), (tail(vmA), tail(a.vm))
        if len(vmA) > len(a.vm):
            a.vm = vmA
        a.label(LJ)

    def KR(self, j):
        return 104 + 4 * j

    MERGE = ENV('MERGE', '0') == '1'

    def VR(self, j, m):
        if self.MERGE:
            return 144 + 4 * j if j < 4 else 192 + 4 * (j - 4)
        return (192 + 8 * j if j < 3 else 32 + 8 * (j - 3)) + 4 * m

    AQ = 140
    CB = 144
    aTQ, aNEG, aM = 248, 249, 251
    mM, mMJ, mLS = 244, 245, 246
    vPUB = 253
    vST = 103
    sVO = 76

    def v_load(self, j):
        a = self.a
        a('s_mov_b32 exec_lo, 0x0000ffff')
        a('s_mov_b32 exec_hi, 0x0000ffff')
        a('buffer_load_dwordx4 %s, v%d, %s, s%d offen%s' % (vr(self.VR(j, 0), 4), self.vL16, sr(S_WS, 4), self.sVO + j, self.sc), tag=('v', j))
        a('s_mov_b32 exec_lo, 0xffff0000')
        a('s_mov_b32 exec_hi, 0xffff0000')
        a('buffer_load_dwordx4 %s, v%d, %s, s%d offen%s' % (vr(self.VR(j, 1), 4), self.vL16, sr(S_WS, 4), self.sVO + j, self.sc), tag=('v', j))
        a('s_mov_b64 exec, -1')

    def attn_loads(self):
        a = self.a
        vL16 = self.vL16
        a('s_lshl_b32 s%d, s%d, 3' % (sHEAD, sQUAD))
        a('s_lshl_b32 s%d, s%d, 1' % (sT0, sI))
        a('s_add_u32 s%d, s%d, s%d' % (sHEAD, sHEAD, sT0))
        a('s_add_u32 s%d, s%d, s%d' % (sHEAD, sHEAD, sC))
        a('s_lshl_b32 s%d, s%d, 2' % (sQB, sMB))
        a('s_add_u32 s%d, s%d, s%d' % (sQB, sQB, sR))
        a('s_lshl_b32 s%d, s%d, 6' % (sT0, sHEAD))
        a('s_add_u32 s%d, s%d, s%d' % (sT1, sT0, sQB))
        a('s_lshl_b32 s%d, s%d, 10' % (sT1, sT1))
        a('buffer_load_dwordx4 %s, v%d, %s, s%d offen%s' % (vr(self.AQ, 4), vL16, sr(S_WS, 4), sT1, self.sc), tag='q')
        for j in range(8, -1, -1):
            a('s_add_i32 s%d, s%d, %d' % (sT1, sQB, j - 8))
            a('s_max_i32 s%d, s%d, 0' % (sT1, sT1))
            a('s_add_u32 s%d, s%d, s%d' % (sT1, sT1, sT0))
            a('s_lshl_b32 s%d, s%d, 10' % (sT1, sT1))
            a('s_add_u32 s%d, s%d, 0x%x' % (sT2, sT1, 2 << 20))
            a('buffer_load_dwordx4 %s, v%d, %s, s%d offen%s' % (vr(self.KR(j), 4), vL16, sr(S_WS, 4), sT2, self.sc), tag=('k', j))
            a('s_add_u32 s%d, s%d, 0x%x' % (self.sVO + j, sT1, 4 << 20))
    def attn_loads_v(self):
        a = self.a
        vL16 = self.vL16
        for j in range(9):
            if self.MERGE:
                a('buffer_load_dwordx4 %s, v%d, %s, s%d offen%s' % (vr(self.VR(j, 0), 4), vL16, sr(S_WS, 4), self.sVO + j, self.sc), tag=('v', j))
                continue
            for r in range(8):
                a('v_mov_b32 v%d, s%d' % (self.VR(j, 0) + r, sONES))
            self.v_load(j)

    def mask_ops(self, b, diag):
        out = []
        for q in range(4):
            for r in range(4 * q, 4 * q + 4):
                cr = (r & 3) + 8 * (r >> 2)
                out.append('v_cmp_le_i32 %s, %d, v%d' % (sr(86 + 2 * (r % 4), 2), cr, self.aTQ))
            for r in range(4 * q, 4 * q + 4):
                m = sr(86 + 2 * (r % 4), 2)
                if diag:
                    out.append('v_cndmask_b32 v%d, v%d, v%d, %s' % (b + r, self.aNEG, b + r, m))
                else:
                    out.append('v_cndmask_b32 v%d, v%d, v%d, %s' % (b + r, b + r, self.aNEG, m))
        return out

    MK = (80, 81, 82, 83, 92, 93, 94, 95)

    def merge_ops(self, b8, b0, mk=False):
        out = []
        for q in range(4):
            for r in range(4 * q, 4 * q + 4):
                cr = (r & 3) + 8 * (r >> 2)
                out.append('v_cmp_le_i32 %s, %d, v%d' % (sr(86 + 2 * (r % 4), 2), cr, self.aTQ))
            for r in range(4 * q, 4 * q + 4):
                out.append('v_cndmask_b32 v%d, v%d, v%d, %s' % (b8 + r, b0 + r, b8 + r, sr(86 + 2 * (r % 4), 2)))
            if mk:
                for e in range(2):
                    k = self.MK[2 * q + e]
                    out.append('v_cndmask_b32 v%d, 0, v%d, %s' % (k, self.vFFFF, sr(86 + 4 * e, 2)))
                    out.append('v_cndmask_b32 v%d, v%d, -1, %s' % (k, k, sr(88 + 4 * e, 2)))
        return out

    vFFFF = 253

    def h_publish(self):
        a = self.a
        a.wait_vm('st')
        a('s_lshl_b32 s%d, s%d, 7' % (sT2, sQB))
        a('s_lshl_b32 s%d, s%d, 1' % (sT3, sCG4))
        a('s_add_u32 s%d, s%d, s%d' % (sT2, sT2, sT3))
        a('s_lshl_b32 s%d, s%d, 2' % (sT3, sC))
        a('s_add_u32 s%d, s%d, s%d' % (sT2, sT2, sT3))
        a('s_add_u32 s%d, s%d, 0x%x' % (sT2, sT2, WS_FLAGH))
        a('v_mov_b32 v%d, s%d' % (self.vPUB, sEPOCH))
        a('s_mov_b64 exec, 1')
        a('buffer_store_dword v%d, off, %s, s%d sc0 sc1' % (self.vPUB, sr(S_WS, 4), sT2), tag='flagst')
        a('s_mov_b64 exec, -1')

    def h_flag_issue(self):
        a = self.a
        va = self.vFL
        a('s_lshl_b32 s%d, s%d, 8' % (sT3, sTB))
        a('v_lshrrev_b32 v%d, 2, v%d' % (va, self.vL16))
        a('v_add_u32 v%d, s%d, v%d' % (va, sT3, va))
        a('v_add_u32 v%d, 0x%x, v%d' % (va, WS_FLAGH, va))
        a('buffer_load_dword v%d, v%d, %s, 0 offen sc0 sc1' % (va + 1, va, sr(S_WS, 4)), tag='hflag')

    def attn_pass1(self):
        a = self.a
        vL16 = self.vL16
        self.stamp(0, self.vST)
        TQ, NEG, M = self.aTQ, self.aNEG, 96
        a('v_bfe_u32 v%d, v%d, 4, 5' % (TQ, vL16))
        a('v_lshrrev_b32 v%d, 9, v%d' % (NEG, vL16))
        a('v_lshlrev_b32 v%d, 2, v%d' % (NEG, NEG))
        a('v_sub_u32 v%d, v%d, v%d' % (TQ, TQ, NEG))
        a('v_mov_b32 v%d, %s' % (NEG, f32(-1e30)))
        for c in range(3):
            a('v_mov_b32 v%d, v%d' % (M + c, NEG))
        bufs = (0, 16, 160, 176)
        A_, B_, C_, D_ = bufs
        def qk1(j, b):
            a.wait_vm(('k', j))
            a('v_mfma_f32_32x32x16_bf16 %s, %s, %s, 0' % (vr(b, 16), vr(self.KR(j), 4), vr(self.AQ, 4)))
        qk1(8, A_)
        qk1(7, C_)
        qk1(6, D_)
        qk1(0, B_)
        LD = self.lab('p1done')
        def mx(b):
            for q in range(8):
                c = M + (q % 3)
                a('v_max3_f32 v%d, v%d, v%d, v%d' % (c, c, b + 2 * q, b + 2 * q + 1))
        def guarded(j, b):
            a.raw('    s_cmp_lt_u32 s%d, %d' % (sQB, 8 - j))
            a.raw('    s_cbranch_scc1 L_skip%d_%s' % (j, LD))
            mx(b)
            a.raw('L_skip%d_%s:' % (j, LD))
        guarded(7, C_)
        qk1(5, C_)
        self.h_publish()
        guarded(6, D_)
        qk1(4, D_)
        L0 = self.lab('t0ok')
        a.raw('    s_cmp_ge_u32 s%d, 8' % sQB)
        a.raw('    s_cbranch_scc1 ' + L0)
        a.raw('    s_nop 7')
        a.raw('    s_nop 7')
        for r in range(16):
            a.raw('    v_mov_b32 v%d, v%d' % (B_ + r, NEG))
        a.raw(L0 + ':')
        for t in self.merge_ops(A_, B_):
            a(t)
        mx(A_)
        qk1(3, A_)
        qk1(2, B_)
        guarded(5, C_)
        qk1(1, C_)
        guarded(4, D_)
        guarded(3, A_)
        guarded(2, B_)
        guarded(1, C_)
        a('s_nop 11')
        a.flush()
        a('v_max3_f32 v%d, v%d, v%d, v%d' % (M, M, M + 1, M + 2))
        a('v_mov_b32 v%d, v%d' % (M + 1, M))
        a('v_permlane32_swap_b32 v%d, v%d' % (M, M + 1))
        a('v_max_f32 v%d, v%d, v%d' % (M, M, M + 1))
        if self.MERGE:
            a('v_mov_b32 v%d, v%d' % (self.mM, M))
            a('v_mov_b32 v%d, 0' % self.mLS)
            a('v_mov_b32 v%d, 0' % (self.mLS + 1))
        a('v_sub_f32 v%d, 0, v%d' % (self.aM, M))
        a('s_cmp_ge_u32 s%d, 8' % sQB)
        a('s_cselect_b64 %s, -1, 0' % sr(86, 2))
        a('v_cndmask_b32 v%d, v%d, v%d, %s' % (M, NEG, self.aM, sr(86, 2)))
        for r in range(16):
            if not self.MERGE:
                a('v_mov_b32 v%d, v%d' % (self.CB + r, M))
        self.stamp(1, self.vST)
        self.stamp(2, self.vST)

    def attn_pass2_merge(self):
        a = self.a
        out = []
        D1, D2 = 212, 228
        LS, M, MJ = self.mLS, self.mM, self.mMJ
        SB = lambda j: 160 + 16 * (j & 1)
        qk = lambda j: ('v_mfma_f32_32x32x16_bf16 %s, %s, %s, 0' % (vr(SB(j), 16), vr(self.KR(j), 4), vr(self.AQ, 4)), None)
        out.append(qk(0))
        for j in range(9):
            b = SB(j)
            if j + 1 < 9:
                out.append(qk(j + 1))
            if j < 8:
                def mj(j=j):
                    a('s_cmp_ge_u32 s%d, %d' % (sQB, 8 - j))
                    a('s_cselect_b32 s%d, 0, %s' % (sCNT, f32(1e30)))
                    a('v_add_f32 v%d, s%d, v%d' % (MJ, sCNT, M))
                out.append(mj)
            else:
                out.append(('v_mov_b32 v%d, v%d' % (MJ, M), None))
            if j in (0, 8):
                out += [(t, None) for t in self.mask_ops(b, j == 8)]
            for q in range(4):
                for r in range(4 * q, 4 * q + 4):
                    out.append(('v_sub_f32 v%d, v%d, v%d' % (b + r, b + r, MJ), None))
                for r in range(4 * q, 4 * q + 4):
                    out.append(('v_exp_f32 v%d, v%d' % (b + r, b + r), None))
                if q:
                    for r in range(4 * q - 4, 4 * q):
                        out.append(('v_add_f32 v%d, v%d, v%d' % (LS + (r & 1), LS + (r & 1), b + r), None))
                    for r in range(2 * q - 2, 2 * q):
                        out.append(('v_cvt_pk_bf16_f32 v%d, v%d, v%d' % (b + r, b + 2 * r, b + 2 * r + 1), None))
            for r in range(12, 16):
                out.append(('v_add_f32 v%d, v%d, v%d' % (LS + (r & 1), LS + (r & 1), b + r), None))
            for r in range(6, 8):
                out.append(('v_cvt_pk_bf16_f32 v%d, v%d, v%d' % (b + r, b + 2 * r, b + 2 * r + 1), None))
            if j == 0:
                out.append(lambda: a.wait_vm(('v', 8)))
            out.append(('v_mfma_f32_32x32x16_bf16 %s, %s, %s, %s' % (vr(D1, 16), vr(self.VR(j, 0), 4), vr(b, 4), '0' if j == 0 else vr(D1, 16)), None))
            out.append(('v_mfma_f32_32x32x16_bf16 %s, %s, %s, %s' % (vr(D2, 16), vr(self.VR(j, 0), 4), vr(b + 4, 4), '0' if j == 0 else vr(D2, 16)), None))
        T_ = []
        T_.append('v_add_f32 v%d, v%d, v%d' % (LS, LS, LS + 1))
        T_.append('v_mov_b32 v%d, v%d' % (LS + 1, LS))
        T_.append('v_permlane32_swap_b32 v%d, v%d' % (LS, LS + 1))
        T_.append('v_add_f32 v%d, v%d, v%d' % (LS, LS, LS + 1))
        T_.append('v_rcp_f32 v%d, v%d' % (LS, LS))
        T_.append('s_mul_i32 s%d, s%d, %d' % (sT2, sQB, NACT))
        T_.append('s_add_u32 s%d, s%d, s%d' % (sT2, sT2, sHEAD))
        T_.append('s_add_u32 s%d, s%d, 112' % (sT2, sT2))
        T_.append('s_lshl_b32 s%d, s%d, 10' % (sT2, sT2))
        T_.append('s_add_u32 s%d, s%d, 0x%x' % (sT2, sT2, WS_ACT))
        for r in range(8):
            T_.append('v_add_f32 v%d, v%d, v%d' % (D1 + r, D1 + r, D2 + 8 + r))
        for r in range(8):
            T_.append('v_mul_f32 v%d, v%d, v%d' % (D1 + r, D1 + r, LS))
        O = 160
        for r in range(4):
            T_.append('v_cvt_pk_bf16_f32 v%d, v%d, v%d' % (O + r, D1 + 2 * r, D1 + 2 * r + 1))
        out += [(t, None) for t in T_]
        out.append(('buffer_store_dwordx4 %s, v%d, %s, s%d offen%s' % (vr(O, 4), self.vL16, sr(S_WS, 4), sT2, self.sc), 'st'))
        k = int(ENV('MARKAT', '130'))
        out.insert(k, ('MARK', 4))
        out.insert(k + 1, ('MARK', 6))
        return out

    def attn_pass2(self):
        if self.MERGE:
            return self.attn_pass2_merge()
        a = self.a
        out = []
        D1, D2 = 216, 232
        CB = self.CB
        SB = lambda j: 160 + 16 * (j & 1)

        def qk(j, dst=None):
            dst = SB(j) if dst is None else dst
            def f():
                if j >= 1:
                    L = self.lab('cs')
                    a.raw('    s_cmp_lg_u32 s%d, %d' % (sQB, 8 - j))
                    a.raw('    s_cbranch_scc1 ' + L)
                    a.raw('    s_nop 7')
                    for r in range(16):
                        a.raw('    v_mov_b32 v%d, v%d' % (CB + r, self.aM))
                    a.raw('    s_nop 1')
                    a.raw(L + ':')
                a('v_mfma_f32_32x32x16_bf16 %s, %s, %s, %s' % (vr(dst, 16), vr(self.KR(j), 4), vr(self.AQ, 4), vr(CB, 16)))
            return f
        P = 84

        def pv(j, m):
            D = D2 if m else D1
            o = []
            if m == 0:
                o.append(lambda: a.wait_vm(('v', j)))
            o.append(('v_mfma_f32_32x32x16_bf16 %s, %s, %s, %s' % (vr(D, 16), vr(self.VR(j, m), 4), vr(P + 4 * m, 4), '0' if j == 0 else vr(D, 16)), None))
            if m == 1 and j == 2:
                o.append(self.h_flag_issue)
            if m == 1 and j in (4, 6):
                o.append(('MARK', j))
            return o
        P8 = (self.KR(0), self.KR(8))
        b0, b8 = SB(0), SB(1)
        out.append(qk(0))
        out.append(('v_mfma_f32_32x32x16_bf16 %s, %s, %s, 0' % (vr(b8, 16), vr(self.KR(8), 4), vr(self.AQ, 4)), None))
        out.append(('v_mov_b32 v%d, 0xffff' % self.vFFFF, None))
        for r in range(16):
            out.append(('v_add_f32 v%d, v%d, v%d' % (b8 + r, b8 + r, self.aM), None))
        out += [(t, None) for t in self.merge_ops(b8, b0, True)]
        SJ = lambda j: SB(j + 1)
        qk2 = lambda j: qk(j, SJ(j))
        out.append(qk2(1))
        for r in range(16):
            out.append(('v_exp_f32 v%d, v%d' % (b8 + r, b8 + r), None))
        for r in range(8):
            out.append(('v_cvt_pk_bf16_f32 v%d, v%d, v%d' % (P + r, b8 + 2 * r, b8 + 2 * r + 1), None))
        for r in range(8):
            out.append(('v_and_b32 v%d, v%d, v%d' % (P8[r >> 2] + (r & 3), P + r, self.MK[r]), None))
        for r in range(8):
            out.append(('v_xor_b32 v%d, v%d, v%d' % (P + r, P + r, P8[r >> 2] + (r & 3)), None))
        pv8 = [lambda: a.wait_vm(('v', 8))]
        for m in range(2):
            D = D2 if m else D1
            pv8.append(('v_mfma_f32_32x32x16_bf16 %s, %s, %s, %s' % (vr(D, 16), vr(self.VR(8, m), 4), vr(P8[m], 4), vr(D, 16)), None))
        for j in range(1, 8):
            b = SJ(j)
            for r in range(16):
                out.append(('v_exp_f32 v%d, v%d' % (b + r, b + r), None))
                if r == 1:
                    out += pv(j - 1, 0)
                if r == 5:
                    out += pv(j - 1, 1)
                if r == 9 and j < 7:
                    out.append(qk2(j + 1))
                if r == 13 and j == 1:
                    out += pv8[:2]
                if r == 13 and j == 2:
                    out += pv8[2:]
            for r in range(8):
                out.append(('v_cvt_pk_bf16_f32 v%d, v%d, v%d' % (P + r, b + 2 * r, b + 2 * r + 1), None))
        out += pv(7, 0) + pv(7, 1)
        T_ = []
        LS = D1 + 8
        T_.append('s_mul_i32 s%d, s%d, %d' % (sT2, sQB, NACT))
        T_.append('s_add_u32 s%d, s%d, s%d' % (sT2, sT2, sHEAD))
        T_.append('s_add_u32 s%d, s%d, 112' % (sT2, sT2))
        T_.append('s_lshl_b32 s%d, s%d, 10' % (sT2, sT2))
        T_.append('s_add_u32 s%d, s%d, 0x%x' % (sT2, sT2, WS_ACT))
        T_.append('v_add_f32 v%d, v%d, v%d' % (LS, LS, D2))
        T_.append('v_rcp_f32 v%d, v%d' % (LS, LS))
        for r in range(8):
            T_.append('v_add_f32 v%d, v%d, v%d' % (D1 + r, D1 + r, D2 + 8 + r))
        for r in range(8):
            T_.append('v_mul_f32 v%d, v%d, v%d' % (D1 + r, D1 + r, LS))
        O = 160
        for r in range(4):
            T_.append('v_cvt_pk_bf16_f32 v%d, v%d, v%d' % (O + r, D1 + 2 * r, D1 + 2 * r + 1))
        out += [(t, None) for t in T_]
        out.append(('buffer_store_dwordx4 %s, v%d, %s, s%d offen%s' % (vr(O, 4), self.vL16, sr(S_WS, 4), sT2, self.sc), 'st'))
        return out

    v3D = 252

    def p3_setup_dma(self):
        a = self.a
        ROW, P_, S_ = self.vFL, self.vFL + 1, 253
        a('s_and_b32 s%d, s%d, 3' % (sKQ, sW))
        a('s_lshr_b32 s%d, s%d, 2' % (sTH, sW))
        a('v_lshrrev_b32 v%d, 7, v%d' % (ROW, self.vL16))
        a('v_bfe_u32 v%d, v%d, 4, 3' % (P_, self.vL16))
        a('v_bfe_u32 v%d, v%d, 1, 1' % (S_, ROW))
        a('v_lshlrev_b32 v%d, 2, v%d' % (S_, S_))
        a('v_xor_b32 v%d, v%d, v%d' % (P_, P_, S_))
        a('v_lshlrev_b32 v%d, 4, v%d' % (P_, P_))
        a('v_lshrrev_b32 v%d, 2, v%d' % (S_, ROW))
        a('v_and_b32 v%d, 3, v%d' % (ROW, ROW))
        a('v_lshl_add_u32 v%d, v%d, 3, v%d' % (ROW, S_, ROW))
        a('v_lshl_add_u32 v%d, v%d, 10, v%d' % (self.v3D, ROW, P_))
        a('s_lshl_b32 s%d, s%d, 7' % (sT0, sNB))
        a('s_lshl_b32 s%d, s%d, 5' % (sT1, sTH))
        a('s_mul_i32 s%d, s%d, 448' % (sT2, sKQ))
        a('s_add_u32 s%d, s%d, s%d' % (sT2, sT2, sT1))
        a('s_lshl_b32 s%d, s%d, 10' % (sT2, sT2))
        a('s_add_u32 s%d, s%d, s%d' % (sWD, sT2, sT0))
        a('s_lshl_b32 s%d, s%d, 7' % (sT2, sKQ))
        a('s_add_u32 s%d, s%d, s%d' % (sT2, sT2, sT1))
        a('s_lshl_b32 s%d, s%d, 10' % (sT2, sT2))
        a('s_add_u32 s%d, s%d, s%d' % (sWOo, sT2, sT0))
        a('s_lshl_b32 s%d, s%d, 13' % (sT2, sKQ))
        a('s_lshl_b32 s%d, s%d, 12' % (sT1, sTH))
        a('s_add_u32 s%d, s%d, s%d' % (sWB3, sT2, sT1))

    def p3_stage_fn(self, st):
        def f(slot, gs):
            out = []
            for j in range(4):
                base, srd, s_ = (sWD, S_DOWN, st) if st < 7 else (sWOo, S_WO, st - 7)
                so = (64 * s_ + 16 * (j >> 1) + 4 * (j & 1)) * 1024
                out.append((['s_add_u32 s%d, s%d, 0x%x' % (sT0, base, so),
                             's_add_u32 m0, s%d, 0x%x' % (sWB3, slot * 32768 + 1024 * j),
                             'buffer_load_dwordx4 v%d, %s, s%d offen lds' % (self.v3D, sr(srd, 4), sT0)], ('dma', gs)))
            return out
        return f

    def act_touch(self, isO, vt, vd):
        a = self.a
        per_wg, per_w, base = (64, 8, 112 * 1024) if isO else (224, 28, 0)
        a('s_lshr_b32 s%d, s%d, 2' % (sT2, sNB))
        a('s_lshl_b32 s%d, s%d, 1' % (sT3, sTB))
        a('s_add_u32 s%d, s%d, s%d' % (sT2, sT2, sT3))
        a('s_mul_i32 s%d, s%d, %d' % (sT2, sT2, NACT * 1024))
        a('s_and_b32 s%d, s%d, 3' % (sT3, sNB))
        a('s_mul_i32 s%d, s%d, %d' % (sT3, sT3, per_wg * 128))
        a('s_add_u32 s%d, s%d, s%d' % (sT2, sT2, sT3))
        a('s_mul_i32 s%d, s%d, %d' % (sT3, sW, per_w * 128))
        a('s_add_u32 s%d, s%d, s%d' % (sT2, sT2, sT3))
        a('s_add_u32 s%d, s%d, 0x%x' % (sT2, sT2, WS_ACT + base))
        a('v_lshlrev_b32 v%d, 3, v%d' % (vt, self.vL16))
        a('s_mov_b64 exec, 0x%x' % ((1 << per_w) - 1))
        a('buffer_load_dword v%d, v%d, %s, s%d offen%s' % (vd, vt, sr(S_WS, 4), sT2, self.sc), tag='warm')
        a('s_mov_b64 exec, -1')

    def phase3(self, gs0, dma_issued):
        a = self.a
        ACC, AB, PB = 0, 32, 80
        NP, LA = 4, 3
        vL16 = self.vL16
        TRa, vO, XR = 96, 102, 104
        att = self.attn_pass2()
        ATR = int(ENV('ATR', '14'))
        self.stamp(0, self.vST)
        a('s_lshl_b32 s%d, s%d, 1' % (sT0, sTB))
        a('s_add_u32 s%d, s%d, s%d' % (sT0, sT0, sTH))
        a('s_mul_i32 s%d, s%d, %d' % (sT1, sT0, NACT))
        a('s_mul_i32 s%d, s%d, 28' % (sT2, sKQ))
        a('s_add_u32 s%d, s%d, s%d' % (sT2, sT2, sT1))
        a('s_lshl_b32 s%d, s%d, 10' % (sT2, sT2))
        a('s_add_u32 s%d, s%d, 0x%x' % (sACT, sT2, WS_ACT))
        a('s_lshl_b32 s%d, s%d, 3' % (sT2, sKQ))
        a('s_add_u32 s%d, s%d, s%d' % (sT2, sT2, sT1))
        a('s_add_u32 s%d, s%d, 112' % (sT2, sT2))
        a('s_lshl_b32 s%d, s%d, 10' % (sT2, sT2))
        a('s_add_u32 s%d, s%d, 0x%x' % (sACTO, sT2, WS_ACT))

        def act_loads(st):
            base, off = (sACT, st * 4096) if st < 7 else (sACTO, (st - 7) * 4096)
            out = [('s_add_u32 s%d, s%d, 0x%x' % (sT1, base, off), None)]
            for j in range(4):
                out.append(('buffer_load_dwordx4 %s, v%d, %s, s%d offen offset:%d%s' % (
                    vr(AB + 16 * (st % 3) + 4 * j, 4), vL16, sr(S_WS, 4), sT1, 1024 * j, self.sc), ('act', st, j)))
            return out

        NS = self.NS
        stages = {gs0 + st: self.p3_stage_fn(st)((gs0 + st) % NS, gs0 + st) for st in range(9)}

        def pop_att(cnt):
            for _ in range(cnt):
                if not att:
                    return
                e = att.pop(0)
                if callable(e):
                    e()
                elif e[0] == 'MARK':
                    if e[1] == 4:
                        self.flag_wait('hflag')
                    for tx, tg in act_loads(0 if e[1] == 4 else 1):
                        a(tx, tag=tg)
                else:
                    a(e[0], tag=e[1])

        A_, B_, C_ = 80, 81, 82
        a('v_lshrrev_b32 v%d, 9, v%d' % (A_, vL16))
        a('v_bfe_u32 v%d, v%d, 6, 2' % (B_, vL16))
        a('v_lshl_add_u32 v%d, v%d, 3, v%d' % (B_, A_, B_))
        a('v_lshlrev_b32 v%d, 7, v%d' % (B_, B_))
        a('v_bfe_u32 v%d, v%d, 8, 1' % (C_, vL16))
        a('v_lshl_add_u32 v%d, v%d, 5, v%d' % (B_, C_, B_))
        a('v_bfe_u32 v%d, v%d, 4, 2' % (C_, vL16))
        a('v_lshl_add_u32 v%d, v%d, 3, v%d' % (B_, C_, B_))
        a('s_lshl_b32 s%d, s%d, 13' % (sT0, sKQ))
        a('v_add_u32 v%d, s%d, v%d' % (B_, sT0, B_))
        a('v_bfe_u32 v%d, v%d, 7, 1' % (C_, vL16))
        a('v_lshl_add_u32 v%d, v%d, 6, v%d' % (TRa, C_, B_))
        a('v_xor_b32 v%d, 1, v%d' % (C_, C_))
        a('v_lshl_add_u32 v%d, v%d, 6, v%d' % (TRa + 1, C_, B_))
        a('v_add_u32 v%d, 0x10000, v%d' % (TRa + 2, TRa))
        a('v_add_u32 v%d, 0x10000, v%d' % (TRa + 3, TRa + 1))
        a('v_add_u32 v%d, 0x20000, v%d' % (TRa + 4, TRa))
        a('v_add_u32 v%d, 0x20000, v%d' % (TRa + 5, TRa + 1))
        a('s_lshl_b32 s%d, s%d, 1' % (sT0, sTB))
        a('s_add_u32 s%d, s%d, s%d' % (sT0, sT0, sTH))
        a('s_lshl_b32 s%d, s%d, 5' % (sT0, sT0))
        a('v_bfe_u32 v%d, v%d, 4, 5' % (B_, vL16))
        a('v_add_u32 v%d, s%d, v%d' % (B_, sT0, B_))
        a('v_lshlrev_b32 v%d, 10, v%d' % (B_, B_))
        a('v_lshl_add_u32 v%d, v%d, 4, v%d' % (B_, A_, B_))
        a('s_lshl_b32 s%d, s%d, 7' % (sT0, sNB))
        a('s_lshl_b32 s%d, s%d, 5' % (sT1, sKQ))
        a('s_add_u32 s%d, s%d, s%d' % (sT0, sT0, sT1))
        a('v_add_u32 v%d, s%d, v%d' % (vO, sT0, B_))

        items = [(st, j, ft) for st in range(9) for j in range(4) for ft in range(2)]
        n = len(items)
        bg = []

        def issue_reads(k):
            st, j, ft = items[k]
            slot = (gs0 + st) % NS
            off = (slot & 1) * 32768 + j * 2048
            addr = TRa + ft + 2 * (slot >> 1)
            dst = PB + 4 * (k % NP)
            a('ds_read_b64_tr_b16 %s, v%d offset:%d' % (vr(dst, 2), addr, off), tag=('f', k))
            a('ds_read_b64_tr_b16 %s, v%d offset:%d' % (vr(dst + 2, 2), addr, off + 512), tag=('f', k))

        def pop_bg(cnt):
            for _ in range(cnt):
                if not bg:
                    return
                tt = bg.pop(0)
                if isinstance(tt[0], list):
                    self.emit_group(tt)
                else:
                    a(tt[0], tag=tt[1])

        pop_att(int(ENV('ATPRE', '160' if self.MERGE else '9999')))
        if self.STAMP2:
            self.stamp(28, self.vST)
        pop_att(int(ENV('ATPRE2', '30')))
        a.wait_vm(('dma', gs0 + 1))
        a('s_barrier')
        for tx, tg in act_loads(2):
            a(tx, tag=tg)
        for st in range(dma_issued, NS):
            for grp in stages[gs0 + st]:
                self.emit_group(grp)
        self.stamp(1, self.vST)
        issued, cur = 0, 0
        opub = None
        for k in range(n):
            st, j, ft = items[k]
            if st != cur:
                cur = st
                if st + 1 < 9:
                    a.wait_vm(('dma', gs0 + st + 1))
                if opub is None and not att:
                    a.wait_vm('st')
                if self.STAMP2:
                    self.stamp(8 + 2 * st, self.vST)
                a('s_barrier')
                if self.STAMP2:
                    self.stamp(9 + 2 * st, self.vST)
                if opub is None and not att:
                    opub = st
                    self.publish(2, self.vPUB)
                    self.stamp(5, self.vST)
                dm = list(stages[gs0 + st + NS - 1]) if st + NS - 1 < 9 else []
                if st == 7:
                    self.epoch_chk_issue()
                if st == 5:
                    assert opub is not None
                    self.flag_issue(2, sTB, 0, 'oflag', shr=1)
                if st == 6:
                    self.flag_wait('oflag')
                    self.stamp(6, self.vST)
                al = []
                if st + 2 < 7:
                    al = act_loads(st + 2)
                elif st == 6:
                    al = act_loads(7) + act_loads(8)[0:]
                if st == 6:
                    bg.extend(al)
                else:
                    bg.extend(al[:1])
                    al = al[1:]
                    for q in range(4):
                        bg.extend(al[q:q + 1])
                        bg.extend(dm[q:q + 1])
                if st == 6:
                    bg.append(('buffer_load_dwordx4 %s, v%d, %s, 0 offen' % (vr(XR, 4), vO, sr(S_X, 4)), 'xr'))
            while issued < n and issued <= k + LA:
                issue_reads(issued)
                issued += 1
            a.wait_vm(('act', st, j))
            a.wait_lg(('f', k))
            acc = ACC + 16 * ft
            c = '0' if (st == 0 and j == 0) else vr(acc, 16)
            a('v_mfma_f32_32x32x16_bf16 %s, %s, %s, %s' % (vr(acc, 16), vr(PB + 4 * (k % NP), 4),
                                                         vr(AB + 16 * (st % 3) + 4 * j, 4), c))
            pop_att(ATR)
            while bg:
                isvm = isinstance(bg[0][0], list) or bg[0][1] is not None
                pop_bg(1)
                if isvm:
                    break
        pop_bg(10 ** 6)
        self.stamp(2, self.vST)
        last = (gs0 + 8) % NS
        rb = 0 if last >= 2 else 65536
        vW = A_
        a('s_mul_i32 s%d, s%d, 24576' % (sT0, sTH))
        a('s_add_u32 s%d, s%d, %d' % (sT0, sT0, rb))
        a('v_add_u32 v%d, s%d, v%d' % (vW, sT0, vL16))
        LBL = [self.lab('red%d' % q) for q in range(4)]
        LE = self.lab('rede')
        for q in range(1, 4):
            a('s_cmp_eq_u32 s%d, %d' % (sKQ, q))
            a.branch('s_cbranch_scc1 ' + LBL[q])
        RES = 64
        assert not att
        for q in range(4):
            if q:
                a.label(LBL[q])
            for o in range(4):
                if o == q:
                    continue
                off = o * 6144 + ((q - o - 1) & 3) * 2048
                a('ds_write_b128 v%d, %s offset:%d' % (vW, vr(ACC + 8 * o, 4), off))
                a('ds_write_b128 v%d, %s offset:%d' % (vW, vr(ACC + 8 * o + 4, 4), off + 1024))
            for e in range(8):
                a('v_mov_b32 v%d, v%d' % (RES + e, ACC + 8 * q + e))
            if q < 3:
                a.branch('s_branch ' + LE)
        a.label(LE)
        a('s_mul_i32 s%d, s%d, 6144' % (sT0, sKQ))
        a('v_add_u32 v%d, s%d, v%d' % (vW, sT0, vW))
        a.wait_lg0()
        a('s_barrier')
        RB = 32
        for sl in range(3):
            a('ds_read_b128 %s, v%d offset:%d' % (vr(RB + 8 * sl, 4), vW, sl * 2048), tag=('r', sl))
            a('ds_read_b128 %s, v%d offset:%d' % (vr(RB + 8 * sl + 4, 4), vW, sl * 2048 + 1024), tag=('r', sl))
        for sl in range(3):
            a.wait_lg(('r', sl))
            for e in range(8):
                a('v_add_f32 v%d, v%d, v%d' % (RES + e, RES + e, RB + 8 * sl + e))
        for e in range(4):
            a('v_permlane32_swap_b32 v%d, v%d' % (RES + e, RES + 4 + e))
        a.wait_vm('xr')
        for e in range(4):
            a('v_lshlrev_b32 v%d, 16, v%d' % (RB + 2 * e, XR + e))
            a('v_and_b32 v%d, s%d, v%d' % (RB + 2 * e + 1, sMASKHI, XR + e))
        for e in range(8):
            a('v_add_f32 v%d, v%d, v%d' % (RES + e, RES + e, RB + e))
        for e in range(4):
            a('v_cvt_pk_bf16_f32 v%d, v%d, v%d' % (RB + 8 + e, RES + 2 * e, RES + 2 * e + 1))
        a('buffer_store_dwordx4 %s, v%d, %s, 0 offen' % (vr(RB + 8, 4), vO, sr(S_OUT, 4)), tag='st')
        self.epoch_clear()
        self.stamp(3, self.vST)
        if self.STAMPS:
            a.wait_vm0()
            self.stamp(4, self.vST)


HEADER = open('cdna_kernels/%s.s.ref' % NAME).read().split('; Override launch geometry')[0]

KD = '''.section .rodata,"a"
.p2align 6
.amdhsa_kernel %s
  .amdhsa_next_free_vgpr 256
  .amdhsa_next_free_sgpr 102
  .amdhsa_accum_offset 256
  .amdhsa_group_segment_fixed_size 0
  .amdhsa_kernarg_size 80
  .amdhsa_user_sgpr_count 2
  .amdhsa_user_sgpr_kernarg_segment_ptr 1
  .amdhsa_system_sgpr_workgroup_id_x 1
.end_amdhsa_kernel
'''


def build():
    g = Gen()
    g.prologue()
    g.phase1([g.p3_stage_fn(st) for st in range(g.NS - 1)])
    g.KIDX = 1
    g.attn_pass1()
    g.KIDX = 2
    g.phase3(10, g.NS - 1)
    g.a.label('L_end')
    g.a('s_endpgm')
    g.a.raw('L_kend:')
    out = HEADER
    out += '; @launch grid=(256,1,1) block=(512,1,1) lds=163840\n'
    out += '.amdgcn_target "amdgcn-amd-amdhsa--gfx950"\n'
    out += '.text\n.globl %s\n.p2align 8\n.type %s,@function\n%s:\n' % (KNAME, KNAME, KNAME)
    out += g.a.text() + KD % KNAME
    return out


if __name__ == '__main__':
    dst = sys.argv[1] if len(sys.argv) > 1 else 'cdna_kernels/%s.s' % NAME
    txt = build()
    if ENV('ALIGN', '4') != '0':
        from alignpass import align
        txt, nn = align(txt, int(ENV('ALIGN', '4')))
        print('alignment nops:', nn)
    open(dst, 'w').write(txt)
    print('wrote', dst, len(txt), 'bytes')
```

```python
import math
import os
import struct
import sys
from asmlib import Asm, vr, sr

NAME = 'parallel_sum__sliding_block__glu_gated_geglu__prompt'
KNAME = NAME + '_kernel'
ENV = os.environ.get

T, D, F, H = 2048, 512, 1792, 32
WS_QKV = 0
WS_ACT = 6 << 20
WS_FLAG = 16 << 20
WS_FLAGH = WS_FLAG + 8192
WS_BYTES = WS_FLAGH + 8192
NACT = 144

S_X, S_WQKV, S_GATE, S_UP, S_DOWN, S_WO, S_OUT, S_WS, S_DBG = 4, 8, 12, 16, 20, 24, 28, 32, 36
sW, sMB, sQUAD, sI, sR, sC, sWB = 40, 41, 42, 43, 44, 45, 46
sCOL = 47
sST = 51
sCNT = 55
sT0, sT1, sT2, sT3 = 56, 57, 58, 59
sONES, sMASKHI, sK0, sK1, sQS = 60, 61, 62, 63, 64
sTB, sNB, sKQ, sTH = 65, 66, 67, 68
sACT, sACTO, sWD, sWOo, sWB3 = 69, 70, 71, 72, 73
sQB, sHEAD = 74, 75
sM = 76
sEPOCH, sCG4 = 94, 95
SCALE = 0.25 * math.log2(math.e)


def f32(x):
    return '0x%08x' % struct.unpack('<I', struct.pack('<f', x))[0]


class Gen:
    STAMPS = bool(ENV('STAMPS'))
    STAMP2 = bool(ENV('STAMP2'))

    def __init__(self):
        self.a = Asm()
        self.sc = ' sc1'
        self.uid = 0
        self.KIDX = 0

    def lab(self, s):
        self.uid += 1
        return 'L_%s_%d' % (s, self.uid)

    def stamp(self, i, vtmp):
        if not self.STAMPS:
            return
        a = self.a
        a('s_memrealtime s[98:99]')
        a('s_memtime s[96:97]')
        a('s_lshl_b32 s100, s2, 3')
        a('s_add_u32 s100, s100, s%d' % sW)
        a('s_lshl_b32 s100, s100, 8')
        a('s_add_u32 s100, s100, 0x%x' % ((32 << 20) + self.KIDX * (1 << 20)))
        a.wait_lg0()
        a('v_mov_b32 v%d, s98' % vtmp)
        a('buffer_store_dword v%d, off, %s, s100 offset:%d' % (vtmp, sr(S_WS, 4), 4 * i), tag='stamp')
        a('s_nop 1')
        a('v_mov_b32 v%d, s96' % vtmp)
        a('buffer_store_dword v%d, off, %s, s100 offset:%d' % (vtmp, sr(S_WS, 4), 128 + 4 * i), tag='stamp')

    def prio_young(self, p):
        L = self.lab('pr')
        self.a.raw('    s_cmp_lt_u32 s%d, 4' % sW)
        self.a.raw('    s_cbranch_scc1 ' + L)
        self.a.raw('    s_setprio %d' % p)
        self.a.raw(L + ':')

    def lane(self, v):
        self.a('v_mbcnt_lo_u32_b32 v%d, -1, 0' % v)
        self.a('v_mbcnt_hi_u32_b32 v%d, -1, v%d' % (v, v))

    XB = 0
    ACC = (128, 160)
    POOL = 192
    NP = 8
    LA = int(ENV('LA', '6'))
    TMP = 224
    vTR = 243
    vL16 = 250
    vSV = 251
    vDQ, vDG = 252, 253
    vFL = 254
    vK0 = 246
    vEP = 247
    XLDS = 32768
    EARLYW = ENV('EARLYW', '1') == '1'
    MAP = int(ENV('MAP', '8'))
    NS = int(ENV('NS', '5'))

    def srd(self, srd, p, n):
        a = self.a
        a('s_mov_b32 s%d, s%d' % (srd, p))
        a('s_and_b32 s%d, s%d, 0xffff' % (srd + 1, p + 1))
        a('s_mov_b32 s%d, 0x%x' % (srd + 2, n))
        a('s_mov_b32 s%d, 0x00020000' % (srd + 3))

    def prologue(self):
        a = self.a
        t = self.TMP
        L = self.vL16 + 1
        a('s_cmp_ge_u32 s2, 256')
        a.branch('s_cbranch_scc1 L_end')
        if self.STAMPS:
            a('s_memrealtime s[%d:%d]' % (sK0, sK0 + 1))
        a('s_load_dwordx16 s[76:91], s[0:1], 0')
        a('s_load_dwordx4 s[92:95], s[0:1], 64')
        if ENV('CODEPF', '0') == '1':
            a('s_getpc_b64 s[%d:%d]' % (sT2, sT3))
            a.raw('L_pc:')
            a('s_sub_u32 s%d, s%d, L_pc-%s' % (sT2, sT2, KNAME))
            a('s_subb_u32 s%d, s%d, 0' % (sT3, sT3))
            a('v_lshlrev_b32 v1, 7, v0')
            a('v_min_u32 v1, L_kend-%s-4, v1' % KNAME)
            a('global_load_dword v%d, v1, s[%d:%d]' % (self.ACC[0] + 31, sT2, sT3), tag='warm')
        a('v_lshrrev_b32 v1, 6, v0')
        a('v_and_b32 v%d, 63, v0' % L)
        a('v_readfirstlane_b32 s%d, v1' % sW)
        a('s_and_b32 s%d, s2, 7' % sT0)
        a('s_lshr_b32 s%d, s2, 3' % sT1)
        if self.MAP == 8:
            a('s_and_b32 s%d, s%d, 1' % (sT2, sT0))
            a('s_lshl_b32 s%d, s%d, 3' % (sT2, sT2))
            a('s_and_b32 s%d, s%d, 7' % (sT3, sT1))
            a('s_add_u32 s%d, s%d, s%d' % (sMB, sT2, sT3))
            a('s_lshr_b32 s%d, s%d, 1' % (sQUAD, sT0))
            a('s_lshr_b32 s%d, s%d, 3' % (sI, sT1))
        else:
            a('s_and_b32 s%d, s%d, 3' % (sT2, sT0))
            a('s_lshl_b32 s%d, s%d, 2' % (sT2, sT2))
            a('s_and_b32 s%d, s%d, 3' % (sT3, sT1))
            a('s_add_u32 s%d, s%d, s%d' % (sMB, sT2, sT3))
            a('s_lshr_b32 s%d, s%d, 2' % (sT2, sT0))
            a('s_lshl_b32 s%d, s%d, 1' % (sT2, sT2))
            a('s_lshr_b32 s%d, s%d, 4' % (sT3, sT1))
            a('s_add_u32 s%d, s%d, s%d' % (sQUAD, sT2, sT3))
            a('s_bfe_u32 s%d, s%d, 0x20002' % (sI, sT1))
        a('s_lshl_b32 s%d, s%d, 2' % (sT2, sT0))
        a('s_and_b32 s%d, s%d, 3' % (sT3, sT1))
        a('s_add_u32 s%d, s%d, s%d' % (sTB, sT2, sT3))
        a('s_lshr_b32 s%d, s%d, 2' % (sNB, sT1))
        a('v_lshlrev_b32 v%d, 4, v%d' % (self.vL16, L))
        a('s_lshl_b32 s%d, s%d, 7' % (sT0, sMB))
        a('s_lshl_b32 s%d, s%d, 4' % (sT1, sW))
        a('s_add_u32 s%d, s%d, s%d' % (sT0, sT0, sT1))
        a('s_lshl_b32 s%d, s%d, 10' % (sT0, sT0))
        a('s_lshl_b32 s%d, s%d, 14' % (sT1, sW))
        a('s_waitcnt lgkmcnt(0)')
        self.srd(S_X, 76, T * D * 2)
        for n in range(16):
            a('v_xor_b32 v%d, %d, v%d' % (t + (n & 1), 16 * n, self.vL16))
            a('s_add_u32 s%d, s%d, %d' % (sT2, sT0, 1024 * n))
            a('s_add_u32 m0, s%d, %d' % (sT1, self.XLDS + 1024 * n))
            a('buffer_load_dwordx4 v%d, %s, s%d offen lds' % (t + (n & 1), sr(S_X, 4), sT2), tag=('xdma', n))
        for srd, p, n in ((S_WQKV, 78, D * 3 * D * 2), (S_WO, 80, D * D * 2), (S_GATE, 84, D * F * 2),
                          (S_UP, 86, D * F * 2), (S_DOWN, 88, F * D * 2), (S_OUT, 90, T * D * 2),
                          (S_DBG, 92, 256), (S_WS, 94, (64 << 20) if self.STAMPS else WS_BYTES)):
            self.srd(srd, p, n)
        self.stamp(0, t + 8)
        if self.STAMPS:
            a('v_mov_b32 v%d, s%d' % (t + 8, sK0))
            a('buffer_store_dword v%d, off, %s, s100 offset:%d' % (t + 8, sr(S_WS, 4), 4 * 31), tag='stamp')
        a('s_and_b32 s%d, s%d, 3' % (sR, sW))
        a('s_lshr_b32 s%d, s%d, 2' % (sC, sW))
        a('s_lshl_b32 s%d, s%d, 10' % (sWB, sW))
        a('s_mov_b32 s%d, 0x3f803f80' % sONES)
        a('s_mov_b32 s%d, 0xffff0000' % sMASKHI)
        a('s_lshl_b32 s%d, s%d, 2' % (sCG4, sQUAD))
        a('s_add_u32 s%d, s%d, s%d' % (sCG4, sCG4, sI))
        a('s_lshl_b32 s%d, s%d, 2' % (sCG4, sCG4))
        self.epoch_publish(self.vEP)
        I, G, A_, B_, C_ = t + 2, t + 3, t + 4, t + 5, t + 6
        a('v_and_b32 v%d, 15, v%d' % (I, L))
        a('v_lshrrev_b32 v%d, 4, v%d' % (G, L))
        LA_ = self.ACC[1]
        a('s_add_u32 s%d, s%d, %d' % (sT0, sT1, self.XLDS))
        a('v_lshlrev_b32 v%d, 10, v%d' % (A_, I))
        a('v_add_u32 v%d, s%d, v%d' % (A_, sT0, A_))
        a('v_and_b32 v%d, 3, v%d' % (B_, I))
        a('v_xor_b32 v%d, v%d, v%d' % (B_, B_, G))
        a('v_lshl_add_u32 v%d, v%d, 4, v%d' % (A_, B_, A_))
        a('v_lshrrev_b32 v%d, 2, v%d' % (B_, I))
        for q in range(4):
            a('v_xor_b32 v%d, %d, v%d' % (C_, q, B_))
            a('v_lshl_add_u32 v%d, v%d, 6, v%d' % (LA_ + q, C_, A_))
        a('s_lshl_b32 s%d, s%d, 15' % (sT0, sR))
        a('s_add_u32 s%d, s%d, %d' % (sT0, sT0, self.XLDS))
        a('v_and_b32 v%d, 31, v%d' % (A_, L))
        a('v_lshlrev_b32 v%d, 10, v%d' % (A_, A_))
        a('v_add_u32 v%d, s%d, v%d' % (A_, sT0, A_))
        a('v_lshrrev_b32 v%d, 5, v%d' % (B_, L))
        a('v_xor_b32 v%d, v%d, v%d' % (C_, B_, I))
        a('v_lshl_add_u32 v%d, v%d, 4, v%d' % (LA_ + 4, C_, A_))
        a('v_lshrrev_b32 v%d, 2, v%d' % (A_, I))
        a('v_lshl_add_u32 v%d, v%d, 3, v%d' % (A_, B_, A_))
        a('v_lshlrev_b32 v%d, 7, v%d' % (A_, A_))
        a('v_and_b32 v%d, 1, v%d' % (C_, G))
        a('v_lshl_add_u32 v%d, v%d, 5, v%d' % (A_, C_, A_))
        a('v_lshlrev_b32 v%d, 16, v%d' % (t + 7, C_))
        a('v_lshl_add_u32 v%d, v%d, 9, v%d' % (t + 7, B_, t + 7))
        a('v_lshl_add_u32 v%d, v%d, 4, v%d' % (t + 7, I, t + 7))
        a('v_and_b32 v%d, 3, v%d' % (C_, I))
        a('v_lshl_add_u32 v%d, v%d, 3, v%d' % (A_, C_, A_))
        a('v_bfe_u32 v%d, v%d, 3, 1' % (C_, I))
        a('v_xor_b32 v%d, s%d, v%d' % (C_, sC, C_))
        a('v_lshl_add_u32 v%d, v%d, 6, v%d' % (self.vTR, C_, A_))
        a('v_add_u32 v%d, 0x10000, v%d' % (self.vTR + 1, self.vTR))
        a('v_add_u32 v%d, 0x20000, v%d' % (self.vTR + 2, self.vTR))
        a('v_lshrrev_b32 v%d, 3, v%d' % (A_, L))
        a('v_and_b32 v%d, 7, v%d' % (B_, L))
        a('v_bfe_u32 v%d, v%d, 1, 1' % (C_, A_))
        a('v_lshlrev_b32 v%d, 2, v%d' % (C_, C_))
        a('v_xor_b32 v%d, v%d, v%d' % (B_, B_, C_))
        a('v_lshlrev_b32 v%d, 4, v%d' % (B_, B_))
        a('s_lshl_b32 s%d, s%d, 3' % (sT0, sW))
        a('v_add_u32 v%d, s%d, v%d' % (A_, sT0, A_))
        a('s_movk_i32 s%d, 3072' % sT0)
        a('s_movk_i32 s%d, 3584' % sT1)
        a('v_mad_u32_u24 v%d, v%d, s%d, v%d' % (self.vDQ, A_, sT0, B_))
        a('v_mad_u32_u24 v%d, v%d, s%d, v%d' % (self.vDG, A_, sT1, B_))
        a('v_mov_b32 v%d, v%d' % (t + 9, L))
        a('v_mov_b32 v%d, v%d' % (self.vSV, t + 7))

    def epoch_publish(self, vt):
        a = self.a
        L = self.lab('noep')
        a('s_or_b32 s%d, s2, s%d' % (sT0, sW))
        a('s_cmp_lg_u32 s%d, 0' % sT0)
        a.branch('s_cbranch_scc1 ' + L)
        a('s_memrealtime s[%d:%d]' % (sT2, sT3))
        a('s_waitcnt lgkmcnt(0)')
        a('s_or_b32 s%d, s%d, 1' % (sT2, sT2))
        a('v_mov_b32 v%d, s%d' % (vt, sT2))
        n = len(a.vm)
        a('buffer_store_dword v%d, off, %s, 0 sc0 sc1' % (vt, sr(S_DBG, 4)))
        del a.vm[n:]
        a.label(L)

    def epoch_issue(self, vt):
        self.a('buffer_load_dword v%d, off, %s, 0 sc0 sc1' % (vt, sr(S_DBG, 4)), tag='epoch')

    def epoch_get(self, vt):
        a = self.a
        Lr, Ld = self.lab('epr'), self.lab('epd')
        a.wait_vm('epoch')
        a('s_mov_b32 s%d, 0' % sCNT)
        a.label(Lr)
        a('v_readfirstlane_b32 s%d, v%d' % (sEPOCH, vt))
        a('s_cmp_lg_u32 s%d, 0' % sEPOCH)
        a.branch('s_cbranch_scc1 ' + Ld)
        a('s_sleep 4')
        n = len(a.vm)
        a('buffer_load_dword v%d, off, %s, 0 sc0 sc1' % (vt, sr(S_DBG, 4)))
        del a.vm[n:]
        a('s_waitcnt vmcnt(0)')
        a('s_add_u32 s%d, s%d, 1' % (sCNT, sCNT))
        a('s_cmp_lt_u32 s%d, 0x100000' % sCNT)
        a.branch('s_cbranch_scc1 ' + Lr)
        a.label(Ld)

    vEC = 148

    def epoch_chk_issue(self):
        a = self.a
        L = self.lab('noec')
        a('s_or_b32 s%d, s2, s%d' % (sT2, sW))
        a('s_cmp_lg_u32 s%d, 0' % sT2)
        a.branch('s_cbranch_scc1 ' + L)
        self._ec_loads()
        a.label(L)

    def _ec_loads(self):
        a = self.a
        v = self.vEC
        a('v_lshrrev_b32 v%d, 8, v%d' % (v, self.vL16))
        a('v_lshlrev_b32 v%d, 7, v%d' % (v, v))
        a('v_bfe_u32 v%d, v%d, 4, 4' % (v + 1, self.vL16))
        a('v_lshl_add_u32 v%d, v%d, 2, v%d' % (v, v + 1, v))
        a('v_add_u32 v%d, 0x%x, v%d' % (v, WS_FLAG + 4096, v))
        n = len(a.vm)
        for q in range(4):
            a('buffer_load_dword v%d, v%d, %s, 0 offen offset:%d sc0 sc1' % (v + 1 + q, v, sr(S_WS, 4), 512 * q))
        del a.vm[n:]

    def epoch_clear(self):
        a = self.a
        v = self.vEC
        L, Lr, Lc = self.lab('noclr'), self.lab('ecr'), self.lab('ecc')
        a('s_or_b32 s%d, s2, s%d' % (sT2, sW))
        a('s_cmp_lg_u32 s%d, 0' % sT2)
        a.branch('s_cbranch_scc1 ' + L)
        a('s_mov_b32 s%d, 0' % sCNT)
        a.label(Lr)
        for q in range(4):
            a('v_xor_b32 v%d, s%d, v%d' % (v + 1 + q, sEPOCH, v + 1 + q))
        a('v_or_b32 v%d, v%d, v%d' % (v + 1, v + 1, v + 2))
        a('v_or_b32 v%d, v%d, v%d' % (v + 3, v + 3, v + 4))
        a('v_or_b32 v%d, v%d, v%d' % (v + 1, v + 1, v + 3))
        a('v_cmp_ne_u32 vcc, 0, v%d' % (v + 1))
        a.branch('s_cbranch_vccz ' + Lc)
        a('s_sleep 4')
        self._ec_loads()
        a('s_waitcnt vmcnt(0)')
        a('s_add_u32 s%d, s%d, 1' % (sCNT, sCNT))
        a('s_cmp_lt_u32 s%d, 0x100000' % sCNT)
        a.branch('s_cbranch_scc1 ' + Lr)
        a.label(Lc)
        a('v_mov_b32 v%d, 0' % v)
        n = len(a.vm)
        a('buffer_store_dword v%d, off, %s, 0 sc0 sc1' % (v, sr(S_DBG, 4)))
        del a.vm[n:]
        a.label(L)

    def publish(self, kind, vt):
        a = self.a
        L = self.lab('nopub')
        a('s_cmp_lg_u32 s%d, 0' % sW)
        a.branch('s_cbranch_scc1 ' + L)
        a('s_lshl_b32 s%d, s%d, 7' % (sT2, sMB))
        a('s_add_u32 s%d, s%d, s%d' % (sT2, sT2, sCG4))
        a('s_add_u32 s%d, s%d, 0x%x' % (sT2, sT2, WS_FLAG + kind * 2048))
        a('v_mov_b32 v%d, s%d' % (vt, sEPOCH))
        a('s_mov_b64 exec, 1')
        n = len(a.vm)
        a('buffer_store_dword v%d, off, %s, s%d sc0 sc1' % (vt, sr(S_WS, 4), sT2))
        del a.vm[n:]
        a('s_mov_b64 exec, -1')
        a.label(L)

    def flag_issue(self, kind, smb, nback, tag, shr=0):
        a = self.a
        va = self.vFL
        if shr:
            a('s_lshr_b32 s%d, s%d, %d' % (sT3, smb, shr))
            smb = sT3
        a('v_lshrrev_b32 v%d, 8, v%d' % (va + 1, self.vL16))
        a('v_min_u32 v%d, %d, v%d' % (va + 1, nback, va + 1))
        a('v_sub_u32 v%d, s%d, v%d' % (va + 1, smb, va + 1))
        a('v_max_i32 v%d, 0, v%d' % (va + 1, va + 1))
        a('v_bfe_u32 v%d, v%d, 4, 4' % (va, self.vL16))
        a('v_lshlrev_b32 v%d, 2, v%d' % (va, va))
        a('v_lshl_add_u32 v%d, v%d, 7, v%d' % (va, va + 1, va))
        a('v_add_u32 v%d, 0x%x, v%d' % (va, WS_FLAG + kind * 2048, va))
        a('buffer_load_dword v%d, v%d, %s, 0 offen sc0 sc1' % (va + 1, va, sr(S_WS, 4)), tag=tag)

    def flag_wait(self, tag):
        a = self.a
        va = self.vFL
        Lr, Ld = self.lab('flr'), self.lab('fld')
        a.wait_vm(tag)
        a('s_mov_b32 s%d, 0' % sCNT)
        a.label(Lr)
        a('v_cmp_ne_u32 vcc, s%d, v%d' % (sEPOCH, va + 1))
        a.branch('s_cbranch_vccz ' + Ld)
        a('s_sleep 1')
        n = len(a.vm)
        a('buffer_load_dword v%d, v%d, %s, 0 offen sc0 sc1' % (va + 1, va, sr(S_WS, 4)))
        del a.vm[n:]
        a('s_waitcnt vmcnt(0)')
        a('s_add_u32 s%d, s%d, 1' % (sCNT, sCNT))
        a('s_cmp_lt_u32 s%d, 0x100000' % sCNT)
        a.branch('s_cbranch_scc1 ' + Lr)
        a.label(Ld)

    def p1_scalar_setup(self, typ):
        a = self.a
        a('s_lshl_b32 s%d, s%d, 2' % (sT3, sMB))
        a('s_add_u32 s%d, s%d, s%d' % (sT3, sT3, sR))
        a('s_mul_i32 s%d, s%d, %d' % (sT2, sT3, NACT))
        a('s_lshl_b32 s%d, s%d, 1' % (sT1, sC))
        a('s_add_u32 s%d, s%d, s%d' % (sT2, sT2, sT1))
        a('s_mul_i32 s%d, s%d, 7' % (sT0, sQUAD))
        if typ == 'A':
            a('s_lshl_b32 s%d, s%d, 10' % (sCOL, sI))
            a('s_lshl_b32 s%d, s%d, 7' % (sM, sQUAD))
            a('s_add_u32 s%d, s%d, s%d' % (sCOL, sCOL, sM))
            a('s_add_u32 s%d, s%d, 512' % (sCOL, sCOL))
            a('s_lshl_b32 s%d, s%d, 5' % (sST, sI))
            a('s_lshl_b32 s%d, s%d, 2' % (sM, sQUAD))
            a('s_add_u32 s%d, s%d, s%d' % (sST, sST, sM))
            a('s_add_u32 s%d, s%d, 16' % (sST, sST))
            a('s_add_u32 s%d, s%d, s%d' % (sST, sST, sT1))
            a('s_lshl_b32 s%d, s%d, 6' % (sST, sST))
            a('s_add_u32 s%d, s%d, s%d' % (sST, sST, sT3))
            a('s_lshl_b32 s%d, s%d, 10' % (sST, sST))
            a('s_lshl_b32 s%d, s%d, 1' % (sM, sI))
            a('s_add_u32 s%d, s%d, s%d' % (sT0, sT0, sM))
            for k in range(2):
                a('s_add_u32 s%d, s%d, %d' % (sM, sT0, k))
                a('s_lshl_b32 s%d, s%d, 7' % (sCOL + 1 + k, sM))
                a('s_lshl_b32 s%d, s%d, 2' % (sM, sM))
                a('s_add_u32 s%d, s%d, s%d' % (sM, sM, sT2))
                a('s_lshl_b32 s%d, s%d, 10' % (sM, sM))
                a('s_add_u32 s%d, s%d, 0x%x' % (sST + 1 + k, sM, WS_ACT))
            a('s_cmp_eq_u32 s%d, 0' % sI)
            a('s_cselect_b32 s%d, %s, 1.0' % (sQS, f32(SCALE)))
        else:
            for ty in range(3):
                a('s_lshl_b32 s%d, s%d, 7' % (sM, sQUAD))
                a('s_add_u32 s%d, s%d, %d' % (sCOL + ty, sM, 1024 * ty))
                a('s_lshl_b32 s%d, s%d, 2' % (sM, sQUAD))
                a('s_add_u32 s%d, s%d, %d' % (sM, sM, 32 * ty))
                a('s_add_u32 s%d, s%d, s%d' % (sM, sM, sT1))
                a('s_lshl_b32 s%d, s%d, 6' % (sM, sM))
                a('s_add_u32 s%d, s%d, s%d' % (sM, sM, sT3))
                a('s_lshl_b32 s%d, s%d, 10' % (sST + ty, sM))
            a('s_add_u32 s%d, s%d, 6' % (sM, sT0))
            a('s_lshl_b32 s%d, s%d, 7' % (sCOL + 3, sM))
            a('s_lshl_b32 s%d, s%d, 2' % (sM, sM))
            a('s_add_u32 s%d, s%d, s%d' % (sM, sM, sT2))
            a('s_lshl_b32 s%d, s%d, 10' % (sM, sM))
            a('s_add_u32 s%d, s%d, 0x%x' % (sST + 3, sM, WS_ACT))
            a('s_mov_b32 s%d, %s' % (sQS, f32(SCALE)))

    def warm_p1(self, typ, early=False):
        a = self.a
        t = self.TMP
        L = t + 9
        D0 = self.ACC[0] + 28
        R, U = t + 12, t + 13
        t = t + 8
        nrep = 8 // self.MAP
        a('s_bfe_u32 s%d, s2, 0x%x' % (sT0, 0x30003 if self.MAP == 8 else 0x20003))
        a('s_lshl_b32 s%d, s%d, 3' % (sT0, sT0))
        a('s_add_u32 s%d, s%d, s%d' % (sT0, sT0, sW))
        a('s_lshl_b32 s%d, s%d, %d' % (sT0, sT0, 3 if nrep == 1 else 4))
        a('v_and_b32 v%d, 7, v%d' % (R, L))
        a('v_add_u32 v%d, s%d, v%d' % (R, sT0, R))
        a('v_lshrrev_b32 v%d, 3, v%d' % (U, L))
        a('s_movk_i32 s%d, 3072' % sT0)
        a('s_movk_i32 s%d, 3584' % sT1)
        nq, ng = (1, 2) if typ == 'A' else (3, 1)
        cg_ = sCOL + 1 if typ == 'A' else sCOL + 3
        a('v_lshlrev_b32 v%d, 10, v%d' % (t + 6, U))
        a('v_mad_u32_u24 v%d, v%d, s%d, v%d' % (t + 6, R, sT0, t + 6))
        a('v_lshlrev_b32 v%d, 7, v%d' % (t + 7, U))
        a('v_mad_u32_u24 v%d, v%d, s%d, v%d' % (t + 7, R, sT1, t + 7))
        for rep in range(nrep):
            a('s_add_u32 s%d, s%d, %d' % (sT2, sCOL, rep * 8 * 3072))
            a('s_add_u32 s%d, s%d, %d' % (sT3, cg_, rep * 8 * 3584))
            if early:
                a('s_mov_b64 exec, 0xff')
                a('buffer_load_dword v%d, v%d, %s, s%d offen' % (D0, t + 6, sr(S_WQKV, 4), sT2), tag='warm')
                continue
            if not (self.EARLYW and nq == 1):
                a('s_mov_b64 exec, 0x%x' % (((1 << (8 * nq)) - 1) & (~0xff if self.EARLYW else -1)))
                a('buffer_load_dword v%d, v%d, %s, s%d offen' % (D0, t + 6, sr(S_WQKV, 4), sT2), tag='warm')
            a('s_mov_b64 exec, 0x%x' % ((1 << (8 * ng)) - 1))
            a('buffer_load_dword v%d, v%d, %s, s%d offen' % (D0 + 1, t + 7, sr(S_GATE, 4), sT3), tag='warm')
            a('buffer_load_dword v%d, v%d, %s, s%d offen' % (D0 + 2, t + 7, sr(S_UP, 4), sT3), tag='warm')
        a('s_mov_b64 exec, -1')

    def tlb_touch(self, typ):
        a = self.a
        D0 = self.ACC[0] + 27
        for p in range(3 if typ == 'A' else 4):
            a('buffer_load_dword v%d, off, %s, s%d' % (D0, sr(S_WS, 4), sST + p), tag='warm')
        a('s_lshl_b32 s%d, s%d, 16' % (sT0, sTB))
        a('s_lshl_b32 s%d, s%d, 7' % (sT1, sNB))
        a('s_add_u32 s%d, s%d, s%d' % (sT0, sT0, sT1))
        a('buffer_load_dword v%d, off, %s, s%d' % (D0, sr(S_OUT, 4), sT0), tag='warm')
        a('buffer_load_dword v%d, off, %s, s%d' % (D0, sr(S_WO, 4), sT1), tag='warm')
        a('buffer_load_dword v%d, off, %s, s%d' % (D0, sr(S_DOWN, 4), sT1), tag='warm')

    def warm_p3(self):
        a = self.a
        t0, t1 = self.vFL, self.vFL + 1
        a('v_lshlrev_b32 v%d, 3, v%d' % (t0, self.vL16))
        a('s_lshl_b32 s%d, s2, 3' % sT2)
        a('s_add_u32 s%d, s%d, s%d' % (sT2, sT2, sW))
        a('s_mul_i32 s%d, s%d, 896' % (sT3, sT2))
        a('s_mov_b64 exec, 0x7f')
        a('buffer_load_dword v%d, v%d, %s, s%d offen' % (t1, t0, sr(S_DOWN, 4), sT3), tag='warm')
        a('s_lshl_b32 s%d, s%d, 8' % (sT3, sT2))
        a('s_mov_b64 exec, 3')
        a('buffer_load_dword v%d, v%d, %s, s%d offen' % (t1, t0, sr(S_WO, 4), sT3), tag='warm')
        a('s_mov_b64 exec, -1')

    def warm_p3_l2(self):
        a = self.a
        t0, t1 = 240, 241
        a('v_lshlrev_b32 v%d, 3, v%d' % (t0, self.vL16))
        a('s_lshr_b32 s%d, s2, 3' % sT2)
        a('s_mul_i32 s%d, s%d, 57344' % (sT3, sT2))
        a('s_mul_i32 s%d, s%d, 7168' % (sM, sW))
        a('s_add_u32 s%d, s%d, s%d' % (sT3, sT3, sM))
        a('s_mov_b32 exec_hi, 0x00ffffff')
        a('buffer_load_dword v%d, v%d, %s, s%d offen' % (t1, t0, sr(S_DOWN, 4), sT3), tag='warm')
        a('s_lshl_b32 s%d, s%d, 14' % (sT3, sT2))
        a('s_lshl_b32 s%d, s%d, 11' % (sM, sW))
        a('s_add_u32 s%d, s%d, s%d' % (sT3, sT3, sM))
        a('s_mov_b64 exec, 0xffff')
        a('buffer_load_dword v%d, v%d, %s, s%d offen' % (t1, t0, sr(S_WO, 4), sT3), tag='warm')
        a('s_mov_b64 exec, -1')

    def dma_p1(self, pidx, st, slot, gs):
        out = []
        for j in range(4):
            out.append((['s_add_u32 s%d, s%d, 0x%x' % (sT0, sCOL + pidx, (256 * st + 64 * j) * 3072),
                         's_add_u32 m0, s%d, 0x%x' % (sWB, slot * 32768 + 8192 * j),
                         'buffer_load_dwordx4 v%d, %s, s%d offen lds' % (self.vDQ, sr(S_WQKV, 4), sT0)], ('dma', gs)))
        return out

    def dma_p2(self, pidx, st, slot, gs):
        out = []
        for j in range(2):
            for pn, srd in enumerate((S_GATE, S_UP)):
                out.append((['s_add_u32 s%d, s%d, 0x%x' % (sT0, sCOL + pidx, (128 * st + 64 * j) * 3584),
                             's_add_u32 m0, s%d, 0x%x' % (sWB, slot * 32768 + 16384 * pn + 8192 * j),
                             'buffer_load_dwordx4 v%d, %s, s%d offen lds' % (self.vDG, sr(srd, 4), sT0)], ('dma', gs)))
        return out

    def emit_group(self, grp):
        texts, tag = grp
        for t in texts[:-1]:
            self.a(t)
        self.a(texts[-1], tag=tag)

    def layernorm(self, mid):
        a = self.a
        LA_ = self.ACC[1]
        R0 = 0
        S = self.ACC[0]
        t = self.TMP
        for k in range(8):
            a('v_mov_b32 v%d, 0' % (S + k))
        a.wait_vm(('xdma', 15))
        self.stamp(28, self.POOL)
        for s in range(16):
            a('ds_read_b128 %s, v%d offset:%d' % (vr(R0 + 4 * s, 4), LA_ + (s & 3), (s >> 2) * 256), tag=('x', s))
        for s in range(16):
            if s % 2 == 0:
                a.wait_lg(('x', s + 1))
            for d in range(4):
                x = R0 + 4 * s + d
                a('v_dot2c_f32_bf16 v%d, s%d, v%d' % (S + d, sONES, x))
                a('v_dot2c_f32_bf16 v%d, v%d, v%d' % (S + 4 + d, x, x))
        if ENV('MIDPOS', '1') == '0':
            mid()
        for q in range(2):
            b = S + 4 * q
            a('v_add_f32 v%d, v%d, v%d' % (b, b, b + 1))
            a('v_add_f32 v%d, v%d, v%d' % (b + 2, b + 2, b + 3))
        M, E = S + 8, S + 9
        a('v_add_f32 v%d, v%d, v%d' % (M, S, S + 2))
        a('v_add_f32 v%d, v%d, v%d' % (E, S + 4, S + 6))
        for sw in ('v_permlane16_swap_b32', 'v_permlane32_swap_b32'):
            for q in range(2):
                a('v_mov_b32 v%d, v%d' % (S + q, M + q))
            for q in range(2):
                a('%s v%d, v%d' % (sw, M + q, S + q))
            for q in range(2):
                a('v_add_f32 v%d, v%d, v%d' % (M + q, M + q, S + q))
        a('s_mov_b32 s%d, %s' % (sT0, f32(1.0 / 512)))
        a('s_mov_b32 s%d, %s' % (sT1, f32(1e-5)))
        a('v_mul_f32 v%d, s%d, v%d' % (M, sT0, M))
        a('v_mul_f32 v%d, s%d, v%d' % (E, sT0, E))
        a('v_fma_f32 v%d, -v%d, v%d, v%d' % (E, M, M, E))
        a('v_max_f32 v%d, 0, v%d' % (E, E))
        a('v_cvt_pk_bf16_f32 v%d, v%d, v%d' % (S, M, E))
        a('v_lshlrev_b32 v%d, 16, v%d' % (M, S))
        a('v_and_b32 v%d, s%d, v%d' % (E, sMASKHI, S))
        a('v_add_f32 v%d, s%d, v%d' % (E, sT1, E))
        a('v_cvt_pk_bf16_f32 v%d, v%d, v%d' % (S, E, E))
        a('v_and_b32 v%d, s%d, v%d' % (E, sMASKHI, S))
        a('v_sqrt_f32 v%d, v%d' % (E, E))
        a('v_cvt_pk_bf16_f32 v%d, v%d, v%d' % (S, E, E))
        a('v_and_b32 v%d, s%d, v%d' % (E, sMASKHI, S))
        a('v_rcp_f32 v%d, v%d' % (E, E))
        a('v_mul_f32 v%d, v%d, v%d' % (M, M, E))
        a('v_sub_f32 v%d, 0, v%d' % (M, M))
        for s in range(16):
            for d in range(4):
                x = R0 + 4 * s + d
                tt = t + 2 * d
                a('v_lshlrev_b32 v%d, 16, v%d' % (tt, x))
                a('v_and_b32 v%d, s%d, v%d' % (tt + 1, sMASKHI, x))
            for d in range(4):
                tt = t + 2 * d
                if ENV('LNPK', '1') == '1':
                    a('v_pk_fma_f32 %s, %s, %s, %s op_sel:[0,1,0] op_sel_hi:[1,1,0]' % (vr(tt, 2), vr(tt, 2), vr(M, 2), vr(M, 2)))
                else:
                    a('v_fma_f32 v%d, v%d, v%d, v%d' % (tt, tt, E, M))
                    a('v_fma_f32 v%d, v%d, v%d, v%d' % (tt + 1, tt + 1, E, M))
            for d in range(4):
                tt = t + 2 * d
                a('v_cvt_pk_bf16_f32 v%d, v%d, v%d' % (R0 + 4 * s + d, tt, tt + 1))
            a('ds_write_b128 v%d, %s offset:%d' % (LA_ + (s & 3), vr(R0 + 4 * s, 4), (s >> 2) * 256))
        if ENV('MIDPOS', '1') == '1':
            mid()
        for q in range(1, 8):
            a('v_xor_b32 v%d, %d, v%d' % (LA_ + 4 + q, q << 5, LA_ + 4))
        a.wait_lg0()
        self.stamp(29, self.POOL)
        a('s_barrier')
        self.stamp(30, self.POOL)
        for s in range(32):
            a('ds_read_b128 %s, v%d offset:%d' % (vr(4 * s, 4), LA_ + 4 + (s & 7), (s >> 3) * 256), tag=('xf', s))
        a.wait_lg0()
        a.wait_vm(('dma', 0))
        a('s_barrier')

    def epi_qkv(self, acc, pidx, isv, scale):
        out = []
        if scale:
            for r in range(16):
                out.append(('v_mul_f32 v%d, s%d, v%d' % (acc + r, sQS, acc + r), None))
        for tl in range(2):
            q = self.TMP + 4 * tl
            for e in range(4):
                c = acc + 8 * tl + 2 * e
                out.append(('v_cvt_pk_bf16_f32 v%d, v%d, v%d' % (q + e, c, c + 1), None))
            if isv:
                out.append(('buffer_store_dwordx4 %s, v%d, %s, s%d offen offset:%d%s' % (
                    vr(q, 4), self.vSV, sr(S_WS, 4), sST + pidx, 256 * tl, self.sc), 'st'))
            else:
                so = 's%d' % (sST + pidx)
                if tl == 1:
                    out.append(('s_add_u32 s%d, s%d, 0x10000' % (sT1, sST + pidx), None))
                    so = 's%d' % sT1
                out.append(('buffer_store_dwordx4 %s, v%d, %s, %s offen%s' % (
                    vr(q, 4), self.vL16, sr(S_WS, 4), so, self.sc), 'st'))
        return out

    def epi_geglu(self, acc, pidx):
        out = []
        for tl in range(2):
            q = self.TMP + 4 * tl
            for hf in range(2):
                g0 = acc + 8 * tl + 4 * hf
                u0 = g0 + 16
                t0 = self.TMP + 8 + 4 * hf
                blk = []
                for e in range(4):
                    blk.append('v_mul_f32 v%d, v%d, v%d' % (t0 + e, g0 + e, g0 + e))
                for e in range(4):
                    blk.append('v_fma_f32 v%d, v%d, s%d, v%d' % (t0 + e, t0 + e, sK1, self.vK0))
                for e in range(4):
                    blk.append('v_mul_f32 v%d, v%d, v%d' % (t0 + e, t0 + e, g0 + e))
                for e in range(4):
                    blk.append('v_exp_f32 v%d, v%d' % (t0 + e, t0 + e))
                for e in range(4):
                    blk.append('v_mul_f32 v%d, v%d, v%d' % (g0 + e, g0 + e, u0 + e))
                for e in range(4):
                    blk.append('v_add_f32 v%d, 1.0, v%d' % (t0 + e, t0 + e))
                for e in range(4):
                    blk.append('v_rcp_f32 v%d, v%d' % (t0 + e, t0 + e))
                for e in range(4):
                    blk.append('v_mul_f32 v%d, v%d, v%d' % (g0 + e, g0 + e, t0 + e))
                blk.append('v_cvt_pk_bf16_f32 v%d, v%d, v%d' % (q + 2 * hf, g0, g0 + 1))
                blk.append('v_cvt_pk_bf16_f32 v%d, v%d, v%d' % (q + 2 * hf + 1, g0 + 2, g0 + 3))
                out += [(b, None) for b in blk]
            out.append(('buffer_store_dwordx4 %s, v%d, %s, s%d offen offset:%d%s' % (
                vr(q, 4), self.vL16, sr(S_WS, 4), sST + pidx, 1024 * tl, self.sc), 'st'))
        return out

    BGRATE = 4

    def run_passes(self, passes, stages, first_stage_ready, pre_ev, post_ev):
        a = self.a
        items = []
        for p in passes:
            nst = 2 if p['kind'] == 'p1' else 4
            kper = 32 // nst
            npan = 1 if p['kind'] == 'p1' else 2
            for st in range(nst):
                for ks in range(kper):
                    for pn in range(npan):
                        items.append(dict(gs=p['stages'][st], p=p, s=st * kper + ks, ks=ks, pn=pn))
        n = len(items)
        bg, dq = [], []
        self.dpace = 4
        carry = []
        if first_stage_ready == 0:
            if ENV('PACE0', '1') == '1':
                dq, carry = list(self.dq0[:8]), list(self.dq0[8:])
                self.dpace = 2
            else:
                dq = list(self.dq0)
                self.dpace = 1

        def issue_reads(k):
            it = items[k]
            if it['gs'] > self.covered:
                a.wait_vm(('dma', it['gs']))
                a('s_barrier')
                self.covered = it['gs']
            slot = it['gs'] % self.NS
            off = (slot & 1) * 32768 + it['pn'] * 16384 + it['ks'] * 2048
            addr = self.vTR + (slot >> 1)
            dst = self.POOL + 4 * (k % self.NP)
            a('ds_read_b64_tr_b16 %s, v%d offset:%d' % (vr(dst, 2), addr, off), tag=('f', k))
            a('ds_read_b64_tr_b16 %s, v%d offset:%d' % (vr(dst + 2, 2), addr, off + 512), tag=('f', k))

        def pop_bg(cnt):
            for _ in range(cnt):
                if not bg:
                    return
                t = bg.pop(0)
                a(t[0], tag=t[1])

        cur_gs, issued, kst, later = None, 0, 0, None
        for k in range(n):
            it = items[k]
            p = it['p']
            if it['gs'] != cur_gs:
                cur_gs = it['gs']
                if cur_gs != first_stage_ready:
                    if (cur_gs + 1) in stages:
                        a.wait_vm(('dma', cur_gs + 1))
                        self.covered = cur_gs + 1
                    for f in pre_ev.get(cur_gs, []):
                        f()
                    if self.STAMP2:
                        self.stamp(8 + 2 * cur_gs, 248)
                    a('s_barrier')
                    if self.STAMP2:
                        self.stamp(9 + 2 * cur_gs, 248)
                    for f in post_ev.get(cur_gs, []):
                        f()
                    assert not dq
                    if (cur_gs + self.NS - 1) in stages:
                        dq = carry + list(stages[cur_gs + self.NS - 1])
                    self.dpace = 2 if carry else 4
                    carry = []
                    kst = k
            while issued < n and issued <= k + self.LA:
                issue_reads(issued)
                issued += 1
            a.wait_lg(('f', k))
            w = self.POOL + 4 * (k % self.NP)
            acc = p['acc'] + 16 * it['pn']
            x = 4 * it['s']
            c = '0' if it['s'] == 0 else vr(acc, 16)
            if p.get('isv'):
                a('v_mfma_f32_32x32x16_bf16 %s, %s, %s, %s' % (vr(acc, 16), vr(x, 4), vr(w, 4), c))
            else:
                a('v_mfma_f32_32x32x16_bf16 %s, %s, %s, %s' % (vr(acc, 16), vr(w, 4), vr(x, 4), c))
            PR = int(ENV('PRIO', '8'))
            if PR and (k % 16) == 0:
                self.prio_young(1)
            if PR and (k % 16) == PR:
                self.prio_young(0)
            if later is not None and k >= later[0]:
                bg.extend(later[1])
                later = None
            if dq and ((k - kst) % self.dpace == 1 or self.dpace == 1):
                self.emit_group(dq.pop(0))
            pop_bg(self.BGRATE)
            if (k == n - 1) or (items[k + 1]['p'] is not p):
                assert later is None
                pop_bg(10 ** 6)
                if p['kind'] == 'p1':
                    e = self.epi_qkv(p['acc'], p['pidx'], p.get('isv'), p.get('scale'))
                else:
                    e = self.epi_geglu(p['acc'], p['pidx'])
                later = (k + 3, e)
        bg.extend(later[1])
        return bg

    def phase1(self, p3_stages):
        a = self.a
        vEP = self.vEP
        LB, LJ = self.lab('typeB'), self.lab('p1join')
        a('s_cmp_eq_u32 s%d, 3' % sI)
        a.branch('s_cbranch_scc1 ' + LB)
        vm0 = list(a.vm)
        for typ in ('A', 'B'):
            a.vm = list(vm0)
            if typ == 'B':
                a.label(LB)
            self.p1_scalar_setup(typ)
            if typ == 'A':
                plist = [('p1', 0), ('p2', 1), ('p2', 2)]
            else:
                plist = [('p1', 0), ('p1', 1), ('p1', 2), ('p2', 3)]
            stages, passes, gs = {}, [], 0
            for k, (kind, pidx) in enumerate(plist):
                nst = 2 if kind == 'p1' else 4
                ids = list(range(gs, gs + nst))
                for st, g_ in enumerate(ids):
                    stages[g_] = (self.dma_p1 if kind == 'p1' else self.dma_p2)(pidx, st, g_ % self.NS, g_)
                gs += nst
                passes.append(dict(kind=kind, pidx=pidx, stages=ids,
                                   acc=self.ACC[(k + 1) % 2 if typ == 'A' else k % 2],
                                   isv=(typ == 'B' and k == 2), scale=(k == 0)))
            for k, f in enumerate(p3_stages):
                stages[10 + k] = f((10 + k) % self.NS, 10 + k)
            WL = ENV('WARMLATE', '1')
            if WL == '0':
                self.warm_p1(typ)
            if self.EARLYW:
                self.warm_p1(typ, True)
            self.epoch_issue(vEP)
            if ENV('TLB', '1') == '1':
                self.tlb_touch(typ)

            def mid():
                for grp in stages[0]:
                    self.emit_group(grp)
                if WL == '1':
                    self.warm_p1(typ)
                if ENV('WARM3', '1') == '2':
                    self.warm_p3()
            self.layernorm(mid)
            for grp in stages[1]:
                self.emit_group(grp)
            self.dq0 = [grp for g_ in range(2, self.NS) for grp in stages[g_]]
            self.stamp(1, self.POOL)
            k0 = -2.0 * math.log2(math.e) * math.sqrt(2.0 / math.pi)
            a('s_mov_b32 s%d, %s' % (sK1, f32(k0 * 0.044715)))
            a('v_mov_b32 v%d, %s' % (self.vK0, f32(k0)))
            self.covered = 0
            self.stamp(2, self.POOL)
            gq = 4 if typ == 'A' else 7
            pre, post = {}, {}
            pre[4] = [lambda: self.epoch_get(vEP)]
            pre.setdefault(gq, []).append(lambda: a.wait_vm('st'))
            post[gq] = [lambda: self.publish(0, vEP)]
            if ENV('WARM3', '1') == '1':
                post.setdefault(int(ENV('W3ST', '3')), []).append(self.warm_p3)
            post.setdefault(11 - self.NS, []).append(self.p3_setup_dma)
            if ENV('W3L2'):
                post.setdefault(int(ENV('W3L2')), []).append(self.warm_p3_l2)
            post.setdefault(9, []).append(lambda: self.flag_issue(0, sMB, 2, 'qflag'))
            variants = (False, True) if typ == 'A' else (None,)
            if typ == 'A':
                LV = self.lab('Av')
                a('s_cmp_eq_u32 s%d, 2' % sI)
                a.branch('s_cbranch_scc1 ' + LV)
            vm1, lg1 = list(a.vm), list(a.lg)
            for isv in variants:
                a.vm, a.lg = list(vm1), list(lg1)
                self.covered = 0
                if isv:
                    a.label(LV)
                if typ == 'A':
                    passes[0]['isv'] = isv
                    passes[0]['scale'] = not isv
                bg = self.run_passes(passes, stages, 0, pre, post)
                self.stamp(4, self.POOL)
                self.flag_wait('qflag')
                self.attn_loads()
                for t in bg:
                    a(t[0], tag=t[1])
                self.attn_loads_v()
                self.stamp(5, self.TMP)
                if typ == 'A':
                    vmA = list(a.vm)
                    a.branch('s_branch ' + LJ)
        tail = lambda q: [t for t in q[q.index('q'):]]
        assert tail(vmA) == tail(a.vm), (tail(vmA), tail(a.vm))
        if len(vmA) > len(a.vm):
            a.vm = vmA
        a.label(LJ)

    def KR(self, j):
        return 104 + 4 * j

    MERGE = ENV('MERGE', '0') == '1'

    def VR(self, j, m):
        if self.MERGE:
            return 144 + 4 * j if j < 4 else 192 + 4 * (j - 4)
        return (192 + 8 * j if j < 3 else 32 + 8 * (j - 3)) + 4 * m

    AQ = 140
    CB = 144
    aTQ, aNEG, aM = 248, 249, 251
    mM, mMJ, mLS = 244, 245, 246
    vPUB = 253
    vST = 103
    sVO = 76

    def v_load(self, j):
        a = self.a
        a('s_mov_b32 exec_lo, 0x0000ffff')
        a('s_mov_b32 exec_hi, 0x0000ffff')
        a('buffer_load_dwordx4 %s, v%d, %s, s%d offen%s' % (vr(self.VR(j, 0), 4), self.vL16, sr(S_WS, 4), self.sVO + j, self.sc), tag=('v', j))
        a('s_mov_b32 exec_lo, 0xffff0000')
        a('s_mov_b32 exec_hi, 0xffff0000')
        a('buffer_load_dwordx4 %s, v%d, %s, s%d offen%s' % (vr(self.VR(j, 1), 4), self.vL16, sr(S_WS, 4), self.sVO + j, self.sc), tag=('v', j))
        a('s_mov_b64 exec, -1')

    def attn_loads(self):
        a = self.a
        vL16 = self.vL16
        a('s_lshl_b32 s%d, s%d, 3' % (sHEAD, sQUAD))
        a('s_lshl_b32 s%d, s%d, 1' % (sT0, sI))
        a('s_add_u32 s%d, s%d, s%d' % (sHEAD, sHEAD, sT0))
        a('s_add_u32 s%d, s%d, s%d' % (sHEAD, sHEAD, sC))
        a('s_lshl_b32 s%d, s%d, 2' % (sQB, sMB))
        a('s_add_u32 s%d, s%d, s%d' % (sQB, sQB, sR))
        a('s_lshl_b32 s%d, s%d, 6' % (sT0, sHEAD))
        a('s_add_u32 s%d, s%d, s%d' % (sT1, sT0, sQB))
        a('s_lshl_b32 s%d, s%d, 10' % (sT1, sT1))
        a('buffer_load_dwordx4 %s, v%d, %s, s%d offen%s' % (vr(self.AQ, 4), vL16, sr(S_WS, 4), sT1, self.sc), tag='q')
        for j in range(8, -1, -1):
            a('s_add_i32 s%d, s%d, %d' % (sT1, sQB, j - 8))
            a('s_max_i32 s%d, s%d, 0' % (sT1, sT1))
            a('s_add_u32 s%d, s%d, s%d' % (sT1, sT1, sT0))
            a('s_lshl_b32 s%d, s%d, 10' % (sT1, sT1))
            a('s_add_u32 s%d, s%d, 0x%x' % (sT2, sT1, 2 << 20))
            a('buffer_load_dwordx4 %s, v%d, %s, s%d offen%s' % (vr(self.KR(j), 4), vL16, sr(S_WS, 4), sT2, self.sc), tag=('k', j))
            a('s_add_u32 s%d, s%d, 0x%x' % (self.sVO + j, sT1, 4 << 20))
    def attn_loads_v(self):
        a = self.a
        vL16 = self.vL16
        for j in range(9):
            if self.MERGE:
                a('buffer_load_dwordx4 %s, v%d, %s, s%d offen%s' % (vr(self.VR(j, 0), 4), vL16, sr(S_WS, 4), self.sVO + j, self.sc), tag=('v', j))
                continue
            for r in range(8):
                a('v_mov_b32 v%d, s%d' % (self.VR(j, 0) + r, sONES))
            self.v_load(j)

    def mask_ops(self, b, diag):
        out = []
        for q in range(4):
            for r in range(4 * q, 4 * q + 4):
                cr = (r & 3) + 8 * (r >> 2)
                out.append('v_cmp_le_i32 %s, %d, v%d' % (sr(86 + 2 * (r % 4), 2), cr, self.aTQ))
            for r in range(4 * q, 4 * q + 4):
                m = sr(86 + 2 * (r % 4), 2)
                if diag:
                    out.append('v_cndmask_b32 v%d, v%d, v%d, %s' % (b + r, self.aNEG, b + r, m))
                else:
                    out.append('v_cndmask_b32 v%d, v%d, v%d, %s' % (b + r, b + r, self.aNEG, m))
        return out

    MK = (80, 81, 82, 83, 92, 93, 94, 95)

    def merge_ops(self, b8, b0, mk=False):
        out = []
        for q in range(4):
            for r in range(4 * q, 4 * q + 4):
                cr = (r & 3) + 8 * (r >> 2)
                out.append('v_cmp_le_i32 %s, %d, v%d' % (sr(86 + 2 * (r % 4), 2), cr, self.aTQ))
            for r in range(4 * q, 4 * q + 4):
                out.append('v_cndmask_b32 v%d, v%d, v%d, %s' % (b8 + r, b0 + r, b8 + r, sr(86 + 2 * (r % 4), 2)))
            if mk:
                for e in range(2):
                    k = self.MK[2 * q + e]
                    out.append('v_cndmask_b32 v%d, 0, v%d, %s' % (k, self.vFFFF, sr(86 + 4 * e, 2)))
                    out.append('v_cndmask_b32 v%d, v%d, -1, %s' % (k, k, sr(88 + 4 * e, 2)))
        return out

    vFFFF = 253

    def h_publish(self):
        a = self.a
        a.wait_vm('st')
        a('s_lshl_b32 s%d, s%d, 7' % (sT2, sQB))
        a('s_lshl_b32 s%d, s%d, 1' % (sT3, sCG4))
        a('s_add_u32 s%d, s%d, s%d' % (sT2, sT2, sT3))
        a('s_lshl_b32 s%d, s%d, 2' % (sT3, sC))
        a('s_add_u32 s%d, s%d, s%d' % (sT2, sT2, sT3))
        a('s_add_u32 s%d, s%d, 0x%x' % (sT2, sT2, WS_FLAGH))
        a('v_mov_b32 v%d, s%d' % (self.vPUB, sEPOCH))
        a('s_mov_b64 exec, 1')
        a('buffer_store_dword v%d, off, %s, s%d sc0 sc1' % (self.vPUB, sr(S_WS, 4), sT2), tag='flagst')
        a('s_mov_b64 exec, -1')

    def h_flag_issue(self):
        a = self.a
        va = self.vFL
        a('s_lshl_b32 s%d, s%d, 8' % (sT3, sTB))
        a('v_lshrrev_b32 v%d, 2, v%d' % (va, self.vL16))
        a('v_add_u32 v%d, s%d, v%d' % (va, sT3, va))
        a('v_add_u32 v%d, 0x%x, v%d' % (va, WS_FLAGH, va))
        a('buffer_load_dword v%d, v%d, %s, 0 offen sc0 sc1' % (va + 1, va, sr(S_WS, 4)), tag='hflag')

    def attn_pass1(self):
        a = self.a
        vL16 = self.vL16
        self.stamp(0, self.vST)
        TQ, NEG, M = self.aTQ, self.aNEG, 96
        a('v_bfe_u32 v%d, v%d, 4, 5' % (TQ, vL16))
        a('v_lshrrev_b32 v%d, 9, v%d' % (NEG, vL16))
        a('v_lshlrev_b32 v%d, 2, v%d' % (NEG, NEG))
        a('v_sub_u32 v%d, v%d, v%d' % (TQ, TQ, NEG))
        a('v_mov_b32 v%d, %s' % (NEG, f32(-1e30)))
        for c in range(3):
            a('v_mov_b32 v%d, v%d' % (M + c, NEG))
        bufs = (0, 16, 160, 176)
        A_, B_, C_, D_ = bufs
        def qk1(j, b):
            a.wait_vm(('k', j))
            a('v_mfma_f32_32x32x16_bf16 %s, %s, %s, 0' % (vr(b, 16), vr(self.KR(j), 4), vr(self.AQ, 4)))
        qk1(8, A_)
        qk1(7, C_)
        qk1(6, D_)
        qk1(0, B_)
        LD = self.lab('p1done')
        def mx(b):
            for q in range(8):
                c = M + (q % 3)
                a('v_max3_f32 v%d, v%d, v%d, v%d' % (c, c, b + 2 * q, b + 2 * q + 1))
        def guarded(j, b):
            a.raw('    s_cmp_lt_u32 s%d, %d' % (sQB, 8 - j))
            a.raw('    s_cbranch_scc1 L_skip%d_%s' % (j, LD))
            mx(b)
            a.raw('L_skip%d_%s:' % (j, LD))
        guarded(7, C_)
        qk1(5, C_)
        self.h_publish()
        guarded(6, D_)
        qk1(4, D_)
        L0 = self.lab('t0ok')
        a.raw('    s_cmp_ge_u32 s%d, 8' % sQB)
        a.raw('    s_cbranch_scc1 ' + L0)
        a.raw('    s_nop 7')
        a.raw('    s_nop 7')
        for r in range(16):
            a.raw('    v_mov_b32 v%d, v%d' % (B_ + r, NEG))
        a.raw(L0 + ':')
        for t in self.merge_ops(A_, B_):
            a(t)
        mx(A_)
        qk1(3, A_)
        qk1(2, B_)
        guarded(5, C_)
        qk1(1, C_)
        guarded(4, D_)
        guarded(3, A_)
        guarded(2, B_)
        guarded(1, C_)
        a('s_nop 11')
        a.flush()
        a('v_max3_f32 v%d, v%d, v%d, v%d' % (M, M, M + 1, M + 2))
        a('v_mov_b32 v%d, v%d' % (M + 1, M))
        a('v_permlane32_swap_b32 v%d, v%d' % (M, M + 1))
        a('v_max_f32 v%d, v%d, v%d' % (M, M, M + 1))
        if self.MERGE:
            a('v_mov_b32 v%d, v%d' % (self.mM, M))
            a('v_mov_b32 v%d, 0' % self.mLS)
            a('v_mov_b32 v%d, 0' % (self.mLS + 1))
        a('v_sub_f32 v%d, 0, v%d' % (self.aM, M))
        a('s_cmp_ge_u32 s%d, 8' % sQB)
        a('s_cselect_b64 %s, -1, 0' % sr(86, 2))
        a('v_cndmask_b32 v%d, v%d, v%d, %s' % (M, NEG, self.aM, sr(86, 2)))
        for r in range(16):
            if not self.MERGE:
                a('v_mov_b32 v%d, v%d' % (self.CB + r, M))
        self.stamp(1, self.vST)
        self.stamp(2, self.vST)

    def attn_pass2_merge(self):
        a = self.a
        out = []
        D1, D2 = 212, 228
        LS, M, MJ = self.mLS, self.mM, self.mMJ
        SB = lambda j: 160 + 16 * (j & 1)
        qk = lambda j: ('v_mfma_f32_32x32x16_bf16 %s, %s, %s, 0' % (vr(SB(j), 16), vr(self.KR(j), 4), vr(self.AQ, 4)), None)
        out.append(qk(0))
        for j in range(9):
            b = SB(j)
            if j + 1 < 9:
                out.append(qk(j + 1))
            if j < 8:
                def mj(j=j):
                    a('s_cmp_ge_u32 s%d, %d' % (sQB, 8 - j))
                    a('s_cselect_b32 s%d, 0, %s' % (sCNT, f32(1e30)))
                    a('v_add_f32 v%d, s%d, v%d' % (MJ, sCNT, M))
                out.append(mj)
            else:
                out.append(('v_mov_b32 v%d, v%d' % (MJ, M), None))
            if j in (0, 8):
                out += [(t, None) for t in self.mask_ops(b, j == 8)]
            for q in range(4):
                for r in range(4 * q, 4 * q + 4):
                    out.append(('v_sub_f32 v%d, v%d, v%d' % (b + r, b + r, MJ), None))
                for r in range(4 * q, 4 * q + 4):
                    out.append(('v_exp_f32 v%d, v%d' % (b + r, b + r), None))
                if q:
                    for r in range(4 * q - 4, 4 * q):
                        out.append(('v_add_f32 v%d, v%d, v%d' % (LS + (r & 1), LS + (r & 1), b + r), None))
                    for r in range(2 * q - 2, 2 * q):
                        out.append(('v_cvt_pk_bf16_f32 v%d, v%d, v%d' % (b + r, b + 2 * r, b + 2 * r + 1), None))
            for r in range(12, 16):
                out.append(('v_add_f32 v%d, v%d, v%d' % (LS + (r & 1), LS + (r & 1), b + r), None))
            for r in range(6, 8):
                out.append(('v_cvt_pk_bf16_f32 v%d, v%d, v%d' % (b + r, b + 2 * r, b + 2 * r + 1), None))
            if j == 0:
                out.append(lambda: a.wait_vm(('v', 8)))
            out.append(('v_mfma_f32_32x32x16_bf16 %s, %s, %s, %s' % (vr(D1, 16), vr(self.VR(j, 0), 4), vr(b, 4), '0' if j == 0 else vr(D1, 16)), None))
            out.append(('v_mfma_f32_32x32x16_bf16 %s, %s, %s, %s' % (vr(D2, 16), vr(self.VR(j, 0), 4), vr(b + 4, 4), '0' if j == 0 else vr(D2, 16)), None))
        T_ = []
        T_.append('v_add_f32 v%d, v%d, v%d' % (LS, LS, LS + 1))
        T_.append('v_mov_b32 v%d, v%d' % (LS + 1, LS))
        T_.append('v_permlane32_swap_b32 v%d, v%d' % (LS, LS + 1))
        T_.append('v_add_f32 v%d, v%d, v%d' % (LS, LS, LS + 1))
        T_.append('v_rcp_f32 v%d, v%d' % (LS, LS))
        T_.append('s_mul_i32 s%d, s%d, %d' % (sT2, sQB, NACT))
        T_.append('s_add_u32 s%d, s%d, s%d' % (sT2, sT2, sHEAD))
        T_.append('s_add_u32 s%d, s%d, 112' % (sT2, sT2))
        T_.append('s_lshl_b32 s%d, s%d, 10' % (sT2, sT2))
        T_.append('s_add_u32 s%d, s%d, 0x%x' % (sT2, sT2, WS_ACT))
        for r in range(8):
            T_.append('v_add_f32 v%d, v%d, v%d' % (D1 + r, D1 + r, D2 + 8 + r))
        for r in range(8):
            T_.append('v_mul_f32 v%d, v%d, v%d' % (D1 + r, D1 + r, LS))
        O = 160
        for r in range(4):
            T_.append('v_cvt_pk_bf16_f32 v%d, v%d, v%d' % (O + r, D1 + 2 * r, D1 + 2 * r + 1))
        out += [(t, None) for t in T_]
        out.append(('buffer_store_dwordx4 %s, v%d, %s, s%d offen%s' % (vr(O, 4), self.vL16, sr(S_WS, 4), sT2, self.sc), 'st'))
        k = int(ENV('MARKAT', '130'))
        out.insert(k, ('MARK', 4))
        out.insert(k + 1, ('MARK', 6))
        return out

    def attn_pass2(self):
        if self.MERGE:
            return self.attn_pass2_merge()
        a = self.a
        out = []
        D1, D2 = 216, 232
        CB = self.CB
        SB = lambda j: 160 + 16 * (j & 1)

        def qk(j, dst=None):
            dst = SB(j) if dst is None else dst
            def f():
                if j >= 1:
                    L = self.lab('cs')
                    a.raw('    s_cmp_lg_u32 s%d, %d' % (sQB, 8 - j))
                    a.raw('    s_cbranch_scc1 ' + L)
                    a.raw('    s_nop 7')
                    for r in range(16):
                        a.raw('    v_mov_b32 v%d, v%d' % (CB + r, self.aM))
                    a.raw('    s_nop 1')
                    a.raw(L + ':')
                a('v_mfma_f32_32x32x16_bf16 %s, %s, %s, %s' % (vr(dst, 16), vr(self.KR(j), 4), vr(self.AQ, 4), vr(CB, 16)))
            return f
        P = 84

        def pv(j, m):
            D = D2 if m else D1
            o = []
            if m == 0:
                o.append(lambda: a.wait_vm(('v', j)))
            o.append(('v_mfma_f32_32x32x16_bf16 %s, %s, %s, %s' % (vr(D, 16), vr(self.VR(j, m), 4), vr(P + 4 * m, 4), '0' if j == 0 else vr(D, 16)), None))
            if m == 1 and j == 2:
                o.append(self.h_flag_issue)
            if m == 1 and j in (4, 6):
                o.append(('MARK', j))
            return o
        P8 = (self.KR(0), self.KR(8))
        b0, b8 = SB(0), SB(1)
        out.append(qk(0))
        out.append(('v_mfma_f32_32x32x16_bf16 %s, %s, %s, 0' % (vr(b8, 16), vr(self.KR(8), 4), vr(self.AQ, 4)), None))
        out.append(('v_mov_b32 v%d, 0xffff' % self.vFFFF, None))
        for r in range(16):
            out.append(('v_add_f32 v%d, v%d, v%d' % (b8 + r, b8 + r, self.aM), None))
        out += [(t, None) for t in self.merge_ops(b8, b0, True)]
        SJ = lambda j: SB(j + 1)
        qk2 = lambda j: qk(j, SJ(j))
        out.append(qk2(1))
        for r in range(16):
            out.append(('v_exp_f32 v%d, v%d' % (b8 + r, b8 + r), None))
        for r in range(8):
            out.append(('v_cvt_pk_bf16_f32 v%d, v%d, v%d' % (P + r, b8 + 2 * r, b8 + 2 * r + 1), None))
        for r in range(8):
            out.append(('v_and_b32 v%d, v%d, v%d' % (P8[r >> 2] + (r & 3), P + r, self.MK[r]), None))
        for r in range(8):
            out.append(('v_xor_b32 v%d, v%d, v%d' % (P + r, P + r, P8[r >> 2] + (r & 3)), None))
        pv8 = [lambda: a.wait_vm(('v', 8))]
        for m in range(2):
            D = D2 if m else D1
            pv8.append(('v_mfma_f32_32x32x16_bf16 %s, %s, %s, %s' % (vr(D, 16), vr(self.VR(8, m), 4), vr(P8[m], 4), vr(D, 16)), None))
        for j in range(1, 8):
            b = SJ(j)
            for r in range(16):
                out.append(('v_exp_f32 v%d, v%d' % (b + r, b + r), None))
                if r == 1:
                    out += pv(j - 1, 0)
                if r == 5:
                    out += pv(j - 1, 1)
                if r == 9 and j < 7:
                    out.append(qk2(j + 1))
                if r == 13 and j == 1:
                    out += pv8[:2]
                if r == 13 and j == 2:
                    out += pv8[2:]
            for r in range(8):
                out.append(('v_cvt_pk_bf16_f32 v%d, v%d, v%d' % (P + r, b + 2 * r, b + 2 * r + 1), None))
        out += pv(7, 0) + pv(7, 1)
        T_ = []
        LS = D1 + 8
        T_.append('s_mul_i32 s%d, s%d, %d' % (sT2, sQB, NACT))
        T_.append('s_add_u32 s%d, s%d, s%d' % (sT2, sT2, sHEAD))
        T_.append('s_add_u32 s%d, s%d, 112' % (sT2, sT2))
        T_.append('s_lshl_b32 s%d, s%d, 10' % (sT2, sT2))
        T_.append('s_add_u32 s%d, s%d, 0x%x' % (sT2, sT2, WS_ACT))
        T_.append('v_add_f32 v%d, v%d, v%d' % (LS, LS, D2))
        T_.append('v_rcp_f32 v%d, v%d' % (LS, LS))
        for r in range(8):
            T_.append('v_add_f32 v%d, v%d, v%d' % (D1 + r, D1 + r, D2 + 8 + r))
        for r in range(8):
            T_.append('v_mul_f32 v%d, v%d, v%d' % (D1 + r, D1 + r, LS))
        O = 160
        for r in range(4):
            T_.append('v_cvt_pk_bf16_f32 v%d, v%d, v%d' % (O + r, D1 + 2 * r, D1 + 2 * r + 1))
        out += [(t, None) for t in T_]
        out.append(('buffer_store_dwordx4 %s, v%d, %s, s%d offen%s' % (vr(O, 4), self.vL16, sr(S_WS, 4), sT2, self.sc), 'st'))
        return out

    v3D = 252

    def p3_setup_dma(self):
        a = self.a
        ROW, P_, S_ = self.vFL, self.vFL + 1, 253
        a('s_and_b32 s%d, s%d, 3' % (sKQ, sW))
        a('s_lshr_b32 s%d, s%d, 2' % (sTH, sW))
        a('v_lshrrev_b32 v%d, 7, v%d' % (ROW, self.vL16))
        a('v_bfe_u32 v%d, v%d, 4, 3' % (P_, self.vL16))
        a('v_bfe_u32 v%d, v%d, 1, 1' % (S_, ROW))
        a('v_lshlrev_b32 v%d, 2, v%d' % (S_, S_))
        a('v_xor_b32 v%d, v%d, v%d' % (P_, P_, S_))
        a('v_lshlrev_b32 v%d, 4, v%d' % (P_, P_))
        a('v_lshrrev_b32 v%d, 2, v%d' % (S_, ROW))
        a('v_and_b32 v%d, 3, v%d' % (ROW, ROW))
        a('v_lshl_add_u32 v%d, v%d, 3, v%d' % (ROW, S_, ROW))
        a('v_lshl_add_u32 v%d, v%d, 10, v%d' % (self.v3D, ROW, P_))
        a('s_lshl_b32 s%d, s%d, 7' % (sT0, sNB))
        a('s_lshl_b32 s%d, s%d, 5' % (sT1, sTH))
        a('s_mul_i32 s%d, s%d, 448' % (sT2, sKQ))
        a('s_add_u32 s%d, s%d, s%d' % (sT2, sT2, sT1))
        a('s_lshl_b32 s%d, s%d, 10' % (sT2, sT2))
        a('s_add_u32 s%d, s%d, s%d' % (sWD, sT2, sT0))
        a('s_lshl_b32 s%d, s%d, 7' % (sT2, sKQ))
        a('s_add_u32 s%d, s%d, s%d' % (sT2, sT2, sT1))
        a('s_lshl_b32 s%d, s%d, 10' % (sT2, sT2))
        a('s_add_u32 s%d, s%d, s%d' % (sWOo, sT2, sT0))
        a('s_lshl_b32 s%d, s%d, 13' % (sT2, sKQ))
        a('s_lshl_b32 s%d, s%d, 12' % (sT1, sTH))
        a('s_add_u32 s%d, s%d, s%d' % (sWB3, sT2, sT1))

    def p3_stage_fn(self, st):
        def f(slot, gs):
            out = []
            for j in range(4):
                base, srd, s_ = (sWD, S_DOWN, st) if st < 7 else (sWOo, S_WO, st - 7)
                so = (64 * s_ + 16 * (j >> 1) + 4 * (j & 1)) * 1024
                out.append((['s_add_u32 s%d, s%d, 0x%x' % (sT0, base, so),
                             's_add_u32 m0, s%d, 0x%x' % (sWB3, slot * 32768 + 1024 * j),
                             'buffer_load_dwordx4 v%d, %s, s%d offen lds' % (self.v3D, sr(srd, 4), sT0)], ('dma', gs)))
            return out
        return f

    def act_touch(self, isO, vt, vd):
        a = self.a
        per_wg, per_w, base = (64, 8, 112 * 1024) if isO else (224, 28, 0)
        a('s_lshr_b32 s%d, s%d, 2' % (sT2, sNB))
        a('s_lshl_b32 s%d, s%d, 1' % (sT3, sTB))
        a('s_add_u32 s%d, s%d, s%d' % (sT2, sT2, sT3))
        a('s_mul_i32 s%d, s%d, %d' % (sT2, sT2, NACT * 1024))
        a('s_and_b32 s%d, s%d, 3' % (sT3, sNB))
        a('s_mul_i32 s%d, s%d, %d' % (sT3, sT3, per_wg * 128))
        a('s_add_u32 s%d, s%d, s%d' % (sT2, sT2, sT3))
        a('s_mul_i32 s%d, s%d, %d' % (sT3, sW, per_w * 128))
        a('s_add_u32 s%d, s%d, s%d' % (sT2, sT2, sT3))
        a('s_add_u32 s%d, s%d, 0x%x' % (sT2, sT2, WS_ACT + base))
        a('v_lshlrev_b32 v%d, 3, v%d' % (vt, self.vL16))
        a('s_mov_b64 exec, 0x%x' % ((1 << per_w) - 1))
        a('buffer_load_dword v%d, v%d, %s, s%d offen%s' % (vd, vt, sr(S_WS, 4), sT2, self.sc), tag='warm')
        a('s_mov_b64 exec, -1')

    def phase3(self, gs0, dma_issued):
        a = self.a
        ACC, AB, PB = 0, 32, 80
        NP, LA = 4, 3
        vL16 = self.vL16
        TRa, vO, XR = 96, 102, 104
        att = self.attn_pass2()
        ATR = int(ENV('ATR', '14'))
        self.stamp(0, self.vST)
        a('s_lshl_b32 s%d, s%d, 1' % (sT0, sTB))
        a('s_add_u32 s%d, s%d, s%d' % (sT0, sT0, sTH))
        a('s_mul_i32 s%d, s%d, %d' % (sT1, sT0, NACT))
        a('s_mul_i32 s%d, s%d, 28' % (sT2, sKQ))
        a('s_add_u32 s%d, s%d, s%d' % (sT2, sT2, sT1))
        a('s_lshl_b32 s%d, s%d, 10' % (sT2, sT2))
        a('s_add_u32 s%d, s%d, 0x%x' % (sACT, sT2, WS_ACT))
        a('s_lshl_b32 s%d, s%d, 3' % (sT2, sKQ))
        a('s_add_u32 s%d, s%d, s%d' % (sT2, sT2, sT1))
        a('s_add_u32 s%d, s%d, 112' % (sT2, sT2))
        a('s_lshl_b32 s%d, s%d, 10' % (sT2, sT2))
        a('s_add_u32 s%d, s%d, 0x%x' % (sACTO, sT2, WS_ACT))

        def act_loads(st):
            base, off = (sACT, st * 4096) if st < 7 else (sACTO, (st - 7) * 4096)
            out = [('s_add_u32 s%d, s%d, 0x%x' % (sT1, base, off), None)]
            for j in range(4):
                out.append(('buffer_load_dwordx4 %s, v%d, %s, s%d offen offset:%d%s' % (
                    vr(AB + 16 * (st % 3) + 4 * j, 4), vL16, sr(S_WS, 4), sT1, 1024 * j, self.sc), ('act', st, j)))
            return out

        NS = self.NS
        stages = {gs0 + st: self.p3_stage_fn(st)((gs0 + st) % NS, gs0 + st) for st in range(9)}

        def pop_att(cnt):
            for _ in range(cnt):
                if not att:
                    return
                e = att.pop(0)
                if callable(e):
                    e()
                elif e[0] == 'MARK':
                    if e[1] == 4:
                        self.flag_wait('hflag')
                    for tx, tg in act_loads(0 if e[1] == 4 else 1):
                        a(tx, tag=tg)
                else:
                    a(e[0], tag=e[1])

        A_, B_, C_ = 80, 81, 82
        a('v_lshrrev_b32 v%d, 9, v%d' % (A_, vL16))
        a('v_bfe_u32 v%d, v%d, 6, 2' % (B_, vL16))
        a('v_lshl_add_u32 v%d, v%d, 3, v%d' % (B_, A_, B_))
        a('v_lshlrev_b32 v%d, 7, v%d' % (B_, B_))
        a('v_bfe_u32 v%d, v%d, 8, 1' % (C_, vL16))
        a('v_lshl_add_u32 v%d, v%d, 5, v%d' % (B_, C_, B_))
        a('v_bfe_u32 v%d, v%d, 4, 2' % (C_, vL16))
        a('v_lshl_add_u32 v%d, v%d, 3, v%d' % (B_, C_, B_))
        a('s_lshl_b32 s%d, s%d, 13' % (sT0, sKQ))
        a('v_add_u32 v%d, s%d, v%d' % (B_, sT0, B_))
        a('v_bfe_u32 v%d, v%d, 7, 1' % (C_, vL16))
        a('v_lshl_add_u32 v%d, v%d, 6, v%d' % (TRa, C_, B_))
        a('v_xor_b32 v%d, 1, v%d' % (C_, C_))
        a('v_lshl_add_u32 v%d, v%d, 6, v%d' % (TRa + 1, C_, B_))
        a('v_add_u32 v%d, 0x10000, v%d' % (TRa + 2, TRa))
        a('v_add_u32 v%d, 0x10000, v%d' % (TRa + 3, TRa + 1))
        a('v_add_u32 v%d, 0x20000, v%d' % (TRa + 4, TRa))
        a('v_add_u32 v%d, 0x20000, v%d' % (TRa + 5, TRa + 1))
        a('s_lshl_b32 s%d, s%d, 1' % (sT0, sTB))
        a('s_add_u32 s%d, s%d, s%d' % (sT0, sT0, sTH))
        a('s_lshl_b32 s%d, s%d, 5' % (sT0, sT0))
        a('v_bfe_u32 v%d, v%d, 4, 5' % (B_, vL16))
        a('v_add_u32 v%d, s%d, v%d' % (B_, sT0, B_))
        a('v_lshlrev_b32 v%d, 10, v%d' % (B_, B_))
        a('v_lshl_add_u32 v%d, v%d, 4, v%d' % (B_, A_, B_))
        a('s_lshl_b32 s%d, s%d, 7' % (sT0, sNB))
        a('s_lshl_b32 s%d, s%d, 5' % (sT1, sKQ))
        a('s_add_u32 s%d, s%d, s%d' % (sT0, sT0, sT1))
        a('v_add_u32 v%d, s%d, v%d' % (vO, sT0, B_))

        items = [(st, j, ft) for st in range(9) for j in range(4) for ft in range(2)]
        n = len(items)
        bg = []

        def issue_reads(k):
            st, j, ft = items[k]
            slot = (gs0 + st) % NS
            off = (slot & 1) * 32768 + j * 2048
            addr = TRa + ft + 2 * (slot >> 1)
            dst = PB + 4 * (k % NP)
            a('ds_read_b64_tr_b16 %s, v%d offset:%d' % (vr(dst, 2), addr, off), tag=('f', k))
            a('ds_read_b64_tr_b16 %s, v%d offset:%d' % (vr(dst + 2, 2), addr, off + 512), tag=('f', k))

        def pop_bg(cnt):
            for _ in range(cnt):
                if not bg:
                    return
                tt = bg.pop(0)
                if isinstance(tt[0], list):
                    self.emit_group(tt)
                else:
                    a(tt[0], tag=tt[1])

        pop_att(int(ENV('ATPRE', '160' if self.MERGE else '9999')))
        if self.STAMP2:
            self.stamp(28, self.vST)
        pop_att(int(ENV('ATPRE2', '30')))
        a.wait_vm(('dma', gs0 + 1))
        a('s_barrier')
        for tx, tg in act_loads(2):
            a(tx, tag=tg)
        for st in range(dma_issued, NS):
            for grp in stages[gs0 + st]:
                self.emit_group(grp)
        self.stamp(1, self.vST)
        issued, cur = 0, 0
        opub = None
        for k in range(n):
            st, j, ft = items[k]
            if st != cur:
                cur = st
                if st + 1 < 9:
                    a.wait_vm(('dma', gs0 + st + 1))
                if opub is None and not att:
                    a.wait_vm('st')
                if self.STAMP2:
                    self.stamp(8 + 2 * st, self.vST)
                a('s_barrier')
                if self.STAMP2:
                    self.stamp(9 + 2 * st, self.vST)
                if opub is None and not att:
                    opub = st
                    self.publish(2, self.vPUB)
                    self.stamp(5, self.vST)
                dm = list(stages[gs0 + st + NS - 1]) if st + NS - 1 < 9 else []
                if st == 7:
                    self.epoch_chk_issue()
                if st == 5:
                    assert opub is not None
                    self.flag_issue(2, sTB, 0, 'oflag', shr=1)
                if st == 6:
                    self.flag_wait('oflag')
                    self.stamp(6, self.vST)
                al = []
                if st + 2 < 7:
                    al = act_loads(st + 2)
                elif st == 6:
                    al = act_loads(7) + act_loads(8)[0:]
                if st == 6:
                    bg.extend(al)
                else:
                    bg.extend(al[:1])
                    al = al[1:]
                    for q in range(4):
                        bg.extend(al[q:q + 1])
                        bg.extend(dm[q:q + 1])
                if st == 6:
                    bg.append(('buffer_load_dwordx4 %s, v%d, %s, 0 offen' % (vr(XR, 4), vO, sr(S_X, 4)), 'xr'))
            while issued < n and issued <= k + LA:
                issue_reads(issued)
                issued += 1
            a.wait_vm(('act', st, j))
            a.wait_lg(('f', k))
            acc = ACC + 16 * ft
            c = '0' if (st == 0 and j == 0) else vr(acc, 16)
            a('v_mfma_f32_32x32x16_bf16 %s, %s, %s, %s' % (vr(acc, 16), vr(PB + 4 * (k % NP), 4),
                                                         vr(AB + 16 * (st % 3) + 4 * j, 4), c))
            pop_att(ATR)
            while bg:
                isvm = isinstance(bg[0][0], list) or bg[0][1] is not None
                pop_bg(1)
                if isvm:
                    break
        pop_bg(10 ** 6)
        self.stamp(2, self.vST)
        last = (gs0 + 8) % NS
        rb = 0 if last >= 2 else 65536
        vW = A_
        a('s_mul_i32 s%d, s%d, 24576' % (sT0, sTH))
        a('s_add_u32 s%d, s%d, %d' % (sT0, sT0, rb))
        a('v_add_u32 v%d, s%d, v%d' % (vW, sT0, vL16))
        LBL = [self.lab('red%d' % q) for q in range(4)]
        LE = self.lab('rede')
        for q in range(1, 4):
            a('s_cmp_eq_u32 s%d, %d' % (sKQ, q))
            a.branch('s_cbranch_scc1 ' + LBL[q])
        RES = 64
        assert not att
        for q in range(4):
            if q:
                a.label(LBL[q])
            for o in range(4):
                if o == q:
                    continue
                off = o * 6144 + ((q - o - 1) & 3) * 2048
                a('ds_write_b128 v%d, %s offset:%d' % (vW, vr(ACC + 8 * o, 4), off))
                a('ds_write_b128 v%d, %s offset:%d' % (vW, vr(ACC + 8 * o + 4, 4), off + 1024))
            for e in range(8):
                a('v_mov_b32 v%d, v%d' % (RES + e, ACC + 8 * q + e))
            if q < 3:
                a.branch('s_branch ' + LE)
        a.label(LE)
        a('s_mul_i32 s%d, s%d, 6144' % (sT0, sKQ))
        a('v_add_u32 v%d, s%d, v%d' % (vW, sT0, vW))
        a.wait_lg0()
        a('s_barrier')
        RB = 32
        for sl in range(3):
            a('ds_read_b128 %s, v%d offset:%d' % (vr(RB + 8 * sl, 4), vW, sl * 2048), tag=('r', sl))
            a('ds_read_b128 %s, v%d offset:%d' % (vr(RB + 8 * sl + 4, 4), vW, sl * 2048 + 1024), tag=('r', sl))
        for sl in range(3):
            a.wait_lg(('r', sl))
            for e in range(8):
                a('v_add_f32 v%d, v%d, v%d' % (RES + e, RES + e, RB + 8 * sl + e))
        for e in range(4):
            a('v_permlane32_swap_b32 v%d, v%d' % (RES + e, RES + 4 + e))
        a.wait_vm('xr')
        for e in range(4):
            a('v_lshlrev_b32 v%d, 16, v%d' % (RB + 2 * e, XR + e))
            a('v_and_b32 v%d, s%d, v%d' % (RB + 2 * e + 1, sMASKHI, XR + e))
        for e in range(8):
            a('v_add_f32 v%d, v%d, v%d' % (RES + e, RES + e, RB + e))
        for e in range(4):
            a('v_cvt_pk_bf16_f32 v%d, v%d, v%d' % (RB + 8 + e, RES + 2 * e, RES + 2 * e + 1))
        a('buffer_store_dwordx4 %s, v%d, %s, 0 offen' % (vr(RB + 8, 4), vO, sr(S_OUT, 4)), tag='st')
        self.epoch_clear()
        self.stamp(3, self.vST)
        if self.STAMPS:
            a.wait_vm0()
            self.stamp(4, self.vST)


HEADER = open('cdna_kernels/%s.s.ref' % NAME).read().split('; Override launch geometry')[0]

KD = '''.section .rodata,"a"
.p2align 6
.amdhsa_kernel %s
  .amdhsa_next_free_vgpr 256
  .amdhsa_next_free_sgpr 102
  .amdhsa_accum_offset 256
  .amdhsa_group_segment_fixed_size 0
  .amdhsa_kernarg_size 80
  .amdhsa_user_sgpr_count 2
  .amdhsa_user_sgpr_kernarg_segment_ptr 1
  .amdhsa_system_sgpr_workgroup_id_x 1
.end_amdhsa_kernel
'''


def build():
    g = Gen()
    g.prologue()
    g.phase1([g.p3_stage_fn(st) for st in range(g.NS - 1)])
    g.KIDX = 1
    g.attn_pass1()
    g.KIDX = 2
    g.phase3(10, g.NS - 1)
    g.a.label('L_end')
    g.a('s_endpgm')
    g.a.raw('L_kend:')
    out = HEADER
    out += '; @launch grid=(256,1,1) block=(512,1,1) lds=163840\n'
    out += '.amdgcn_target "amdgcn-amd-amdhsa--gfx950"\n'
    out += '.text\n.globl %s\n.p2align 8\n.type %s,@function\n%s:\n' % (KNAME, KNAME, KNAME)
    out += g.a.text() + KD % KNAME
    return out


if __name__ == '__main__':
    dst = sys.argv[1] if len(sys.argv) > 1 else 'cdna_kernels/%s.s' % NAME
    txt = build()
    if ENV('ALIGN', '4') != '0':
        from alignpass import align
        txt, nn = align(txt, int(ENV('ALIGN', '4')))
        print('alignment nops:', nn)
    open(dst, 'w').write(txt)
    print('wrote', dst, len(txt), 'bytes')
```

```python
import math
import os
import struct
import sys
from asmlib import Asm, vr, sr

NAME = 'parallel_sum__sliding_block__glu_gated_geglu__prompt'
KNAME = NAME + '_kernel'
ENV = os.environ.get

T, D, F, H = 2048, 512, 1792, 32
WS_QKV = 0
WS_ACT = 6 << 20
WS_FLAG = 16 << 20
WS_FLAGH = WS_FLAG + 8192
WS_BYTES = WS_FLAGH + 8192
NACT = 144

S_X, S_WQKV, S_GATE, S_UP, S_DOWN, S_WO, S_OUT, S_WS, S_DBG = 4, 8, 12, 16, 20, 24, 28, 32, 36
sW, sMB, sQUAD, sI, sR, sC, sWB = 40, 41, 42, 43, 44, 45, 46
sCOL = 47
sST = 51
sCNT = 55
sT0, sT1, sT2, sT3 = 56, 57, 58, 59
sONES, sMASKHI, sK0, sK1, sQS = 60, 61, 62, 63, 64
sTB, sNB, sKQ, sTH = 65, 66, 67, 68
sACT, sACTO, sWD, sWOo, sWB3 = 69, 70, 71, 72, 73
sQB, sHEAD = 74, 75
sM = 76
sEPOCH, sCG4 = 94, 95
SCALE = 0.25 * math.log2(math.e)


def f32(x):
    return '0x%08x' % struct.unpack('<I', struct.pack('<f', x))[0]


class Gen:
    STAMPS = bool(ENV('STAMPS'))
    STAMP2 = bool(ENV('STAMP2'))

    def __init__(self):
        self.a = Asm()
        self.sc = ' sc1'
        self.uid = 0
        self.KIDX = 0

    def lab(self, s):
        self.uid += 1
        return 'L_%s_%d' % (s, self.uid)

    def stamp(self, i, vtmp):
        if not self.STAMPS:
            return
        a = self.a
        a('s_memrealtime s[98:99]')
        a('s_memtime s[96:97]')
        a('s_lshl_b32 s100, s2, 3')
        a('s_add_u32 s100, s100, s%d' % sW)
        a('s_lshl_b32 s100, s100, 8')
        a('s_add_u32 s100, s100, 0x%x' % ((32 << 20) + self.KIDX * (1 << 20)))
        a.wait_lg0()
        a('v_mov_b32 v%d, s98' % vtmp)
        a('buffer_store_dword v%d, off, %s, s100 offset:%d' % (vtmp, sr(S_WS, 4), 4 * i), tag='stamp')
        a('s_nop 1')
        a('v_mov_b32 v%d, s96' % vtmp)
        a('buffer_store_dword v%d, off, %s, s100 offset:%d' % (vtmp, sr(S_WS, 4), 128 + 4 * i), tag='stamp')

    def prio_young(self, p):
        L = self.lab('pr')
        self.a.raw('    s_cmp_lt_u32 s%d, 4' % sW)
        self.a.raw('    s_cbranch_scc1 ' + L)
        self.a.raw('    s_setprio %d' % p)
        self.a.raw(L + ':')

    def lane(self, v):
        self.a('v_mbcnt_lo_u32_b32 v%d, -1, 0' % v)
        self.a('v_mbcnt_hi_u32_b32 v%d, -1, v%d' % (v, v))

    XB = 0
    ACC = (128, 160)
    POOL = 192
    NP = 8
    LA = int(ENV('LA', '6'))
    TMP = 224
    vTR = 243
    vL16 = 250
    vSV = 251
    vDQ, vDG = 252, 253
    vFL = 254
    vK0 = 246
    vEP = 247
    XLDS = 32768
    EARLYW = ENV('EARLYW', '1') == '1'
    MAP = int(ENV('MAP', '8'))
    NS = int(ENV('NS', '5'))

    def srd(self, srd, p, n):
        a = self.a
        a('s_mov_b32 s%d, s%d' % (srd, p))
        a('s_and_b32 s%d, s%d, 0xffff' % (srd + 1, p + 1))
        a('s_mov_b32 s%d, 0x%x' % (srd + 2, n))
        a('s_mov_b32 s%d, 0x00020000' % (srd + 3))

    def prologue(self):
        a = self.a
        t = self.TMP
        L = self.vL16 + 1
        a('s_cmp_ge_u32 s2, 256')
        a.branch('s_cbranch_scc1 L_end')
        if self.STAMPS:
            a('s_memrealtime s[%d:%d]' % (sK0, sK0 + 1))
        a('s_load_dwordx16 s[76:91], s[0:1], 0')
        a('s_load_dwordx4 s[92:95], s[0:1], 64')
        if ENV('CODEPF', '0') == '1':
            a('s_getpc_b64 s[%d:%d]' % (sT2, sT3))
            a.raw('L_pc:')
            a('s_sub_u32 s%d, s%d, L_pc-%s' % (sT2, sT2, KNAME))
            a('s_subb_u32 s%d, s%d, 0' % (sT3, sT3))
            a('v_lshlrev_b32 v1, 7, v0')
            a('v_min_u32 v1, L_kend-%s-4, v1' % KNAME)
            a('global_load_dword v%d, v1, s[%d:%d]' % (self.ACC[0] + 31, sT2, sT3), tag='warm')
        a('v_lshrrev_b32 v1, 6, v0')
        a('v_and_b32 v%d, 63, v0' % L)
        a('v_readfirstlane_b32 s%d, v1' % sW)
        a('s_and_b32 s%d, s2, 7' % sT0)
        a('s_lshr_b32 s%d, s2, 3' % sT1)
        if self.MAP == 8:
            a('s_and_b32 s%d, s%d, 1' % (sT2, sT0))
            a('s_lshl_b32 s%d, s%d, 3' % (sT2, sT2))
            a('s_and_b32 s%d, s%d, 7' % (sT3, sT1))
            a('s_add_u32 s%d, s%d, s%d' % (sMB, sT2, sT3))
            a('s_lshr_b32 s%d, s%d, 1' % (sQUAD, sT0))
            a('s_lshr_b32 s%d, s%d, 3' % (sI, sT1))
        else:
            a('s_and_b32 s%d, s%d, 3' % (sT2, sT0))
            a('s_lshl_b32 s%d, s%d, 2' % (sT2, sT2))
            a('s_and_b32 s%d, s%d, 3' % (sT3, sT1))
            a('s_add_u32 s%d, s%d, s%d' % (sMB, sT2, sT3))
            a('s_lshr_b32 s%d, s%d, 2' % (sT2, sT0))
            a('s_lshl_b32 s%d, s%d, 1' % (sT2, sT2))
            a('s_lshr_b32 s%d, s%d, 4' % (sT3, sT1))
            a('s_add_u32 s%d, s%d, s%d' % (sQUAD, sT2, sT3))
            a('s_bfe_u32 s%d, s%d, 0x20002' % (sI, sT1))
        a('s_lshl_b32 s%d, s%d, 2' % (sT2, sT0))
        a('s_and_b32 s%d, s%d, 3' % (sT3, sT1))
        a('s_add_u32 s%d, s%d, s%d' % (sTB, sT2, sT3))
        a('s_lshr_b32 s%d, s%d, 2' % (sNB, sT1))
        a('v_lshlrev_b32 v%d, 4, v%d' % (self.vL16, L))
        a('s_lshl_b32 s%d, s%d, 7' % (sT0, sMB))
        a('s_lshl_b32 s%d, s%d, 4' % (sT1, sW))
        a('s_add_u32 s%d, s%d, s%d' % (sT0, sT0, sT1))
        a('s_lshl_b32 s%d, s%d, 10' % (sT0, sT0))
        a('s_lshl_b32 s%d, s%d, 14' % (sT1, sW))
        a('s_waitcnt lgkmcnt(0)')
        self.srd(S_X, 76, T * D * 2)
        for n in range(16):
            a('v_xor_b32 v%d, %d, v%d' % (t + (n & 1), 16 * n, self.vL16))
            a('s_add_u32 s%d, s%d, %d' % (sT2, sT0, 1024 * n))
            a('s_add_u32 m0, s%d, %d' % (sT1, self.XLDS + 1024 * n))
            a('buffer_load_dwordx4 v%d, %s, s%d offen lds' % (t + (n & 1), sr(S_X, 4), sT2), tag=('xdma', n))
        for srd, p, n in ((S_WQKV, 78, D * 3 * D * 2), (S_WO, 80, D * D * 2), (S_GATE, 84, D * F * 2),
                          (S_UP, 86, D * F * 2), (S_DOWN, 88, F * D * 2), (S_OUT, 90, T * D * 2),
                          (S_DBG, 92, 256), (S_WS, 94, (64 << 20) if self.STAMPS else WS_BYTES)):
            self.srd(srd, p, n)
        self.stamp(0, t + 8)
        if self.STAMPS:
            a('v_mov_b32 v%d, s%d' % (t + 8, sK0))
            a('buffer_store_dword v%d, off, %s, s100 offset:%d' % (t + 8, sr(S_WS, 4), 4 * 31), tag='stamp')
        a('s_and_b32 s%d, s%d, 3' % (sR, sW))
        a('s_lshr_b32 s%d, s%d, 2' % (sC, sW))
        a('s_lshl_b32 s%d, s%d, 10' % (sWB, sW))
        a('s_mov_b32 s%d, 0x3f803f80' % sONES)
        a('s_mov_b32 s%d, 0xffff0000' % sMASKHI)
        a('s_lshl_b32 s%d, s%d, 2' % (sCG4, sQUAD))
        a('s_add_u32 s%d, s%d, s%d' % (sCG4, sCG4, sI))
        a('s_lshl_b32 s%d, s%d, 2' % (sCG4, sCG4))
        self.epoch_publish(self.vEP)
        I, G, A_, B_, C_ = t + 2, t + 3, t + 4, t + 5, t + 6
        a('v_and_b32 v%d, 15, v%d' % (I, L))
        a('v_lshrrev_b32 v%d, 4, v%d' % (G, L))
        LA_ = self.ACC[1]
        a('s_add_u32 s%d, s%d, %d' % (sT0, sT1, self.XLDS))
        a('v_lshlrev_b32 v%d, 10, v%d' % (A_, I))
        a('v_add_u32 v%d, s%d, v%d' % (A_, sT0, A_))
        a('v_and_b32 v%d, 3, v%d' % (B_, I))
        a('v_xor_b32 v%d, v%d, v%d' % (B_, B_, G))
        a('v_lshl_add_u32 v%d, v%d, 4, v%d' % (A_, B_, A_))
        a('v_lshrrev_b32 v%d, 2, v%d' % (B_, I))
        for q in range(4):
            a('v_xor_b32 v%d, %d, v%d' % (C_, q, B_))
            a('v_lshl_add_u32 v%d, v%d, 6, v%d' % (LA_ + q, C_, A_))
        a('s_lshl_b32 s%d, s%d, 15' % (sT0, sR))
        a('s_add_u32 s%d, s%d, %d' % (sT0, sT0, self.XLDS))
        a('v_and_b32 v%d, 31, v%d' % (A_, L))
        a('v_lshlrev_b32 v%d, 10, v%d' % (A_, A_))
        a('v_add_u32 v%d, s%d, v%d' % (A_, sT0, A_))
        a('v_lshrrev_b32 v%d, 5, v%d' % (B_, L))
        a('v_xor_b32 v%d, v%d, v%d' % (C_, B_, I))
        a('v_lshl_add_u32 v%d, v%d, 4, v%d' % (LA_ + 4, C_, A_))
        a('v_lshrrev_b32 v%d, 2, v%d' % (A_, I))
        a('v_lshl_add_u32 v%d, v%d, 3, v%d' % (A_, B_, A_))
        a('v_lshlrev_b32 v%d, 7, v%d' % (A_, A_))
        a('v_and_b32 v%d, 1, v%d' % (C_, G))
        a('v_lshl_add_u32 v%d, v%d, 5, v%d' % (A_, C_, A_))
        a('v_lshlrev_b32 v%d, 16, v%d' % (t + 7, C_))
        a('v_lshl_add_u32 v%d, v%d, 9, v%d' % (t + 7, B_, t + 7))
        a('v_lshl_add_u32 v%d, v%d, 4, v%d' % (t + 7, I, t + 7))
        a('v_and_b32 v%d, 3, v%d' % (C_, I))
        a('v_lshl_add_u32 v%d, v%d, 3, v%d' % (A_, C_, A_))
        a('v_bfe_u32 v%d, v%d, 3, 1' % (C_, I))
        a('v_xor_b32 v%d, s%d, v%d' % (C_, sC, C_))
        a('v_lshl_add_u32 v%d, v%d, 6, v%d' % (self.vTR, C_, A_))
        a('v_add_u32 v%d, 0x10000, v%d' % (self.vTR + 1, self.vTR))
        a('v_add_u32 v%d, 0x20000, v%d' % (self.vTR + 2, self.vTR))
        a('v_lshrrev_b32 v%d, 3, v%d' % (A_, L))
        a('v_and_b32 v%d, 7, v%d' % (B_, L))
        a('v_bfe_u32 v%d, v%d, 1, 1' % (C_, A_))
        a('v_lshlrev_b32 v%d, 2, v%d' % (C_, C_))
        a('v_xor_b32 v%d, v%d, v%d' % (B_, B_, C_))
        a('v_lshlrev_b32 v%d, 4, v%d' % (B_, B_))
        a('s_lshl_b32 s%d, s%d, 3' % (sT0, sW))
        a('v_add_u32 v%d, s%d, v%d' % (A_, sT0, A_))
        a('s_movk_i32 s%d, 3072' % sT0)
        a('s_movk_i32 s%d, 3584' % sT1)
        a('v_mad_u32_u24 v%d, v%d, s%d, v%d' % (self.vDQ, A_, sT0, B_))
        a('v_mad_u32_u24 v%d, v%d, s%d, v%d' % (self.vDG, A_, sT1, B_))
        a('v_mov_b32 v%d, v%d' % (t + 9, L))
        a('v_mov_b32 v%d, v%d' % (self.vSV, t + 7))

    def epoch_publish(self, vt):
        a = self.a
        L = self.lab('noep')
        a('s_or_b32 s%d, s2, s%d' % (sT0, sW))
        a('s_cmp_lg_u32 s%d, 0' % sT0)
        a.branch('s_cbranch_scc1 ' + L)
        a('s_memrealtime s[%d:%d]' % (sT2, sT3))
        a('s_waitcnt lgkmcnt(0)')
        a('s_or_b32 s%d, s%d, 1' % (sT2, sT2))
        a('v_mov_b32 v%d, s%d' % (vt, sT2))
        n = len(a.vm)
        a('buffer_store_dword v%d, off, %s, 0 sc0 sc1' % (vt, sr(S_DBG, 4)))
        del a.vm[n:]
        a.label(L)

    def epoch_issue(self, vt):
        self.a('buffer_load_dword v%d, off, %s, 0 sc0 sc1' % (vt, sr(S_DBG, 4)), tag='epoch')

    def epoch_get(self, vt):
        a = self.a
        Lr, Ld = self.lab('epr'), self.lab('epd')
        a.wait_vm('epoch')
        a('s_mov_b32 s%d, 0' % sCNT)
        a.label(Lr)
        a('v_readfirstlane_b32 s%d, v%d' % (sEPOCH, vt))
        a('s_cmp_lg_u32 s%d, 0' % sEPOCH)
        a.branch('s_cbranch_scc1 ' + Ld)
        a('s_sleep 4')
        n = len(a.vm)
        a('buffer_load_dword v%d, off, %s, 0 sc0 sc1' % (vt, sr(S_DBG, 4)))
        del a.vm[n:]
        a('s_waitcnt vmcnt(0)')
        a('s_add_u32 s%d, s%d, 1' % (sCNT, sCNT))
        a('s_cmp_lt_u32 s%d, 0x100000' % sCNT)
        a.branch('s_cbranch_scc1 ' + Lr)
        a.label(Ld)

    vEC = 148

    def epoch_chk_issue(self):
        a = self.a
        L = self.lab('noec')
        a('s_or_b32 s%d, s2, s%d' % (sT2, sW))
        a('s_cmp_lg_u32 s%d, 0' % sT2)
        a.branch('s_cbranch_scc1 ' + L)
        self._ec_loads()
        a.label(L)

    def _ec_loads(self):
        a = self.a
        v = self.vEC
        a('v_lshrrev_b32 v%d, 8, v%d' % (v, self.vL16))
        a('v_lshlrev_b32 v%d, 7, v%d' % (v, v))
        a('v_bfe_u32 v%d, v%d, 4, 4' % (v + 1, self.vL16))
        a('v_lshl_add_u32 v%d, v%d, 2, v%d' % (v, v + 1, v))
        a('v_add_u32 v%d, 0x%x, v%d' % (v, WS_FLAG + 4096, v))
        n = len(a.vm)
        for q in range(4):
            a('buffer_load_dword v%d, v%d, %s, 0 offen offset:%d sc0 sc1' % (v + 1 + q, v, sr(S_WS, 4), 512 * q))
        del a.vm[n:]

    def epoch_clear(self):
        a = self.a
        v = self.vEC
        L, Lr, Lc = self.lab('noclr'), self.lab('ecr'), self.lab('ecc')
        a('s_or_b32 s%d, s2, s%d' % (sT2, sW))
        a('s_cmp_lg_u32 s%d, 0' % sT2)
        a.branch('s_cbranch_scc1 ' + L)
        a('s_mov_b32 s%d, 0' % sCNT)
        a.label(Lr)
        for q in range(4):
            a('v_xor_b32 v%d, s%d, v%d' % (v + 1 + q, sEPOCH, v + 1 + q))
        a('v_or_b32 v%d, v%d, v%d' % (v + 1, v + 1, v + 2))
        a('v_or_b32 v%d, v%d, v%d' % (v + 3, v + 3, v + 4))
        a('v_or_b32 v%d, v%d, v%d' % (v + 1, v + 1, v + 3))
        a('v_cmp_ne_u32 vcc, 0, v%d' % (v + 1))
        a.branch('s_cbranch_vccz ' + Lc)
        a('s_sleep 4')
        self._ec_loads()
        a('s_waitcnt vmcnt(0)')
        a('s_add_u32 s%d, s%d, 1' % (sCNT, sCNT))
        a('s_cmp_lt_u32 s%d, 0x100000' % sCNT)
        a.branch('s_cbranch_scc1 ' + Lr)
        a.label(Lc)
        a('v_mov_b32 v%d, 0' % v)
        n = len(a.vm)
        a('buffer_store_dword v%d, off, %s, 0 sc0 sc1' % (v, sr(S_DBG, 4)))
        del a.vm[n:]
        a.label(L)

    def publish(self, kind, vt):
        a = self.a
        L = self.lab('nopub')
        a('s_cmp_lg_u32 s%d, 0' % sW)
        a.branch('s_cbranch_scc1 ' + L)
        a('s_lshl_b32 s%d, s%d, 7' % (sT2, sMB))
        a('s_add_u32 s%d, s%d, s%d' % (sT2, sT2, sCG4))
        a('s_add_u32 s%d, s%d, 0x%x' % (sT2, sT2, WS_FLAG + kind * 2048))
        a('v_mov_b32 v%d, s%d' % (vt, sEPOCH))
        a('s_mov_b64 exec, 1')
        n = len(a.vm)
        a('buffer_store_dword v%d, off, %s, s%d sc0 sc1' % (vt, sr(S_WS, 4), sT2))
        del a.vm[n:]
        a('s_mov_b64 exec, -1')
        a.label(L)

    def flag_issue(self, kind, smb, nback, tag, shr=0):
        a = self.a
        va = self.vFL
        if shr:
            a('s_lshr_b32 s%d, s%d, %d' % (sT3, smb, shr))
            smb = sT3
        a('v_lshrrev_b32 v%d, 8, v%d' % (va + 1, self.vL16))
        a('v_min_u32 v%d, %d, v%d' % (va + 1, nback, va + 1))
        a('v_sub_u32 v%d, s%d, v%d' % (va + 1, smb, va + 1))
        a('v_max_i32 v%d, 0, v%d' % (va + 1, va + 1))
        a('v_bfe_u32 v%d, v%d, 4, 4' % (va, self.vL16))
        a('v_lshlrev_b32 v%d, 2, v%d' % (va, va))
        a('v_lshl_add_u32 v%d, v%d, 7, v%d' % (va, va + 1, va))
        a('v_add_u32 v%d, 0x%x, v%d' % (va, WS_FLAG + kind * 2048, va))
        a('buffer_load_dword v%d, v%d, %s, 0 offen sc0 sc1' % (va + 1, va, sr(S_WS, 4)), tag=tag)

    def flag_wait(self, tag):
        a = self.a
        va = self.vFL
        Lr, Ld = self.lab('flr'), self.lab('fld')
        a.wait_vm(tag)
        a('s_mov_b32 s%d, 0' % sCNT)
        a.label(Lr)
        a('v_cmp_ne_u32 vcc, s%d, v%d' % (sEPOCH, va + 1))
        a.branch('s_cbranch_vccz ' + Ld)
        a('s_sleep 1')
        n = len(a.vm)
        a('buffer_load_dword v%d, v%d, %s, 0 offen sc0 sc1' % (va + 1, va, sr(S_WS, 4)))
        del a.vm[n:]
        a('s_waitcnt vmcnt(0)')
        a('s_add_u32 s%d, s%d, 1' % (sCNT, sCNT))
        a('s_cmp_lt_u32 s%d, 0x100000' % sCNT)
        a.branch('s_cbranch_scc1 ' + Lr)
        a.label(Ld)

    def p1_scalar_setup(self, typ):
        a = self.a
        a('s_lshl_b32 s%d, s%d, 2' % (sT3, sMB))
        a('s_add_u32 s%d, s%d, s%d' % (sT3, sT3, sR))
        a('s_mul_i32 s%d, s%d, %d' % (sT2, sT3, NACT))
        a('s_lshl_b32 s%d, s%d, 1' % (sT1, sC))
        a('s_add_u32 s%d, s%d, s%d' % (sT2, sT2, sT1))
        a('s_mul_i32 s%d, s%d, 7' % (sT0, sQUAD))
        if typ == 'A':
            a('s_lshl_b32 s%d, s%d, 10' % (sCOL, sI))
            a('s_lshl_b32 s%d, s%d, 7' % (sM, sQUAD))
            a('s_add_u32 s%d, s%d, s%d' % (sCOL, sCOL, sM))
            a('s_add_u32 s%d, s%d, 512' % (sCOL, sCOL))
            a('s_lshl_b32 s%d, s%d, 5' % (sST, sI))
            a('s_lshl_b32 s%d, s%d, 2' % (sM, sQUAD))
            a('s_add_u32 s%d, s%d, s%d' % (sST, sST, sM))
            a('s_add_u32 s%d, s%d, 16' % (sST, sST))
            a('s_add_u32 s%d, s%d, s%d' % (sST, sST, sT1))
            a('s_lshl_b32 s%d, s%d, 6' % (sST, sST))
            a('s_add_u32 s%d, s%d, s%d' % (sST, sST, sT3))
            a('s_lshl_b32 s%d, s%d, 10' % (sST, sST))
            a('s_lshl_b32 s%d, s%d, 1' % (sM, sI))
            a('s_add_u32 s%d, s%d, s%d' % (sT0, sT0, sM))
            for k in range(2):
                a('s_add_u32 s%d, s%d, %d' % (sM, sT0, k))
                a('s_lshl_b32 s%d, s%d, 7' % (sCOL + 1 + k, sM))
                a('s_lshl_b32 s%d, s%d, 2' % (sM, sM))
                a('s_add_u32 s%d, s%d, s%d' % (sM, sM, sT2))
                a('s_lshl_b32 s%d, s%d, 10' % (sM, sM))
                a('s_add_u32 s%d, s%d, 0x%x' % (sST + 1 + k, sM, WS_ACT))
            a('s_cmp_eq_u32 s%d, 0' % sI)
            a('s_cselect_b32 s%d, %s, 1.0' % (sQS, f32(SCALE)))
        else:
            for ty in range(3):
                a('s_lshl_b32 s%d, s%d, 7' % (sM, sQUAD))
                a('s_add_u32 s%d, s%d, %d' % (sCOL + ty, sM, 1024 * ty))
                a('s_lshl_b32 s%d, s%d, 2' % (sM, sQUAD))
                a('s_add_u32 s%d, s%d, %d' % (sM, sM, 32 * ty))
                a('s_add_u32 s%d, s%d, s%d' % (sM, sM, sT1))
                a('s_lshl_b32 s%d, s%d, 6' % (sM, sM))
                a('s_add_u32 s%d, s%d, s%d' % (sM, sM, sT3))
                a('s_lshl_b32 s%d, s%d, 10' % (sST + ty, sM))
            a('s_add_u32 s%d, s%d, 6' % (sM, sT0))
            a('s_lshl_b32 s%d, s%d, 7' % (sCOL + 3, sM))
            a('s_lshl_b32 s%d, s%d, 2' % (sM, sM))
            a('s_add_u32 s%d, s%d, s%d' % (sM, sM, sT2))
            a('s_lshl_b32 s%d, s%d, 10' % (sM, sM))
            a('s_add_u32 s%d, s%d, 0x%x' % (sST + 3, sM, WS_ACT))
            a('s_mov_b32 s%d, %s' % (sQS, f32(SCALE)))

    def warm_p1(self, typ, early=False):
        a = self.a
        t = self.TMP
        L = t + 9
        D0 = self.ACC[0] + 28
        R, U = t + 12, t + 13
        t = t + 8
        nrep = 8 // self.MAP
        a('s_bfe_u32 s%d, s2, 0x%x' % (sT0, 0x30003 if self.MAP == 8 else 0x20003))
        a('s_lshl_b32 s%d, s%d, 3' % (sT0, sT0))
        a('s_add_u32 s%d, s%d, s%d' % (sT0, sT0, sW))
        a('s_lshl_b32 s%d, s%d, %d' % (sT0, sT0, 3 if nrep == 1 else 4))
        a('v_and_b32 v%d, 7, v%d' % (R, L))
        a('v_add_u32 v%d, s%d, v%d' % (R, sT0, R))
        a('v_lshrrev_b32 v%d, 3, v%d' % (U, L))
        a('s_movk_i32 s%d, 3072' % sT0)
        a('s_movk_i32 s%d, 3584' % sT1)
        nq, ng = (1, 2) if typ == 'A' else (3, 1)
        cg_ = sCOL + 1 if typ == 'A' else sCOL + 3
        a('v_lshlrev_b32 v%d, 10, v%d' % (t + 6, U))
        a('v_mad_u32_u24 v%d, v%d, s%d, v%d' % (t + 6, R, sT0, t + 6))
        a('v_lshlrev_b32 v%d, 7, v%d' % (t + 7, U))
        a('v_mad_u32_u24 v%d, v%d, s%d, v%d' % (t + 7, R, sT1, t + 7))
        for rep in range(nrep):
            a('s_add_u32 s%d, s%d, %d' % (sT2, sCOL, rep * 8 * 3072))
            a('s_add_u32 s%d, s%d, %d' % (sT3, cg_, rep * 8 * 3584))
            if early:
                a('s_mov_b64 exec, 0xff')
                a('buffer_load_dword v%d, v%d, %s, s%d offen' % (D0, t + 6, sr(S_WQKV, 4), sT2), tag='warm')
                continue
            if not (self.EARLYW and nq == 1):
                a('s_mov_b64 exec, 0x%x' % (((1 << (8 * nq)) - 1) & (~0xff if self.EARLYW else -1)))
                a('buffer_load_dword v%d, v%d, %s, s%d offen' % (D0, t + 6, sr(S_WQKV, 4), sT2), tag='warm')
            a('s_mov_b64 exec, 0x%x' % ((1 << (8 * ng)) - 1))
            a('buffer_load_dword v%d, v%d, %s, s%d offen' % (D0 + 1, t + 7, sr(S_GATE, 4), sT3), tag='warm')
            a('buffer_load_dword v%d, v%d, %s, s%d offen' % (D0 + 2, t + 7, sr(S_UP, 4), sT3), tag='warm')
        a('s_mov_b64 exec, -1')

    def tlb_touch(self, typ):
        a = self.a
        D0 = self.ACC[0] + 27
        for p in range(3 if typ == 'A' else 4):
            a('buffer_load_dword v%d, off, %s, s%d' % (D0, sr(S_WS, 4), sST + p), tag='warm')
        a('s_lshl_b32 s%d, s%d, 16' % (sT0, sTB))
        a('s_lshl_b32 s%d, s%d, 7' % (sT1, sNB))
        a('s_add_u32 s%d, s%d, s%d' % (sT0, sT0, sT1))
        a('buffer_load_dword v%d, off, %s, s%d' % (D0, sr(S_OUT, 4), sT0), tag='warm')
        a('buffer_load_dword v%d, off, %s, s%d' % (D0, sr(S_WO, 4), sT1), tag='warm')
        a('buffer_load_dword v%d, off, %s, s%d' % (D0, sr(S_DOWN, 4), sT1), tag='warm')

    def warm_p3(self):
        a = self.a
        t0, t1 = self.vFL, self.vFL + 1
        a('v_lshlrev_b32 v%d, 3, v%d' % (t0, self.vL16))
        a('s_lshl_b32 s%d, s2, 3' % sT2)
        a('s_add_u32 s%d, s%d, s%d' % (sT2, sT2, sW))
        a('s_mul_i32 s%d, s%d, 896' % (sT3, sT2))
        a('s_mov_b64 exec, 0x7f')
        a('buffer_load_dword v%d, v%d, %s, s%d offen' % (t1, t0, sr(S_DOWN, 4), sT3), tag='warm')
        a('s_lshl_b32 s%d, s%d, 8' % (sT3, sT2))
        a('s_mov_b64 exec, 3')
        a('buffer_load_dword v%d, v%d, %s, s%d offen' % (t1, t0, sr(S_WO, 4), sT3), tag='warm')
        a('s_mov_b64 exec, -1')

    def warm_p3_l2(self):
        a = self.a
        t0, t1 = 240, 241
        a('v_lshlrev_b32 v%d, 3, v%d' % (t0, self.vL16))
        a('s_lshr_b32 s%d, s2, 3' % sT2)
        a('s_mul_i32 s%d, s%d, 57344' % (sT3, sT2))
        a('s_mul_i32 s%d, s%d, 7168' % (sM, sW))
        a('s_add_u32 s%d, s%d, s%d' % (sT3, sT3, sM))
        a('s_mov_b32 exec_hi, 0x00ffffff')
        a('buffer_load_dword v%d, v%d, %s, s%d offen' % (t1, t0, sr(S_DOWN, 4), sT3), tag='warm')
        a('s_lshl_b32 s%d, s%d, 14' % (sT3, sT2))
        a('s_lshl_b32 s%d, s%d, 11' % (sM, sW))
        a('s_add_u32 s%d, s%d, s%d' % (sT3, sT3, sM))
        a('s_mov_b64 exec, 0xffff')
        a('buffer_load_dword v%d, v%d, %s, s%d offen' % (t1, t0, sr(S_WO, 4), sT3), tag='warm')
        a('s_mov_b64 exec, -1')

    def dma_p1(self, pidx, st, slot, gs):
        out = []
        for j in range(4):
            out.append((['s_add_u32 s%d, s%d, 0x%x' % (sT0, sCOL + pidx, (256 * st + 64 * j) * 3072),
                         's_add_u32 m0, s%d, 0x%x' % (sWB, slot * 32768 + 8192 * j),
                         'buffer_load_dwordx4 v%d, %s, s%d offen lds' % (self.vDQ, sr(S_WQKV, 4), sT0)], ('dma', gs)))
        return out

    def dma_p2(self, pidx, st, slot, gs):
        out = []
        for j in range(2):
            for pn, srd in enumerate((S_GATE, S_UP)):
                out.append((['s_add_u32 s%d, s%d, 0x%x' % (sT0, sCOL + pidx, (128 * st + 64 * j) * 3584),
                             's_add_u32 m0, s%d, 0x%x' % (sWB, slot * 32768 + 16384 * pn + 8192 * j),
                             'buffer_load_dwordx4 v%d, %s, s%d offen lds' % (self.vDG, sr(srd, 4), sT0)], ('dma', gs)))
        return out

    def emit_group(self, grp):
        texts, tag = grp
        for t in texts[:-1]:
            self.a(t)
        self.a(texts[-1], tag=tag)

    def layernorm(self, mid):
        a = self.a
        LA_ = self.ACC[1]
        R0 = 0
        S = self.ACC[0]
        t = self.TMP
        for k in range(8):
            a('v_mov_b32 v%d, 0' % (S + k))
        a.wait_vm(('xdma', 15))
        self.stamp(28, self.POOL)
        for s in range(16):
            a('ds_read_b128 %s, v%d offset:%d' % (vr(R0 + 4 * s, 4), LA_ + (s & 3), (s >> 2) * 256), tag=('x', s))
        for s in range(16):
            if s % 2 == 0:
                a.wait_lg(('x', s + 1))
            for d in range(4):
                x = R0 + 4 * s + d
                a('v_dot2c_f32_bf16 v%d, s%d, v%d' % (S + d, sONES, x))
                a('v_dot2c_f32_bf16 v%d, v%d, v%d' % (S + 4 + d, x, x))
        if ENV('MIDPOS', '1') == '0':
            mid()
        for q in range(2):
            b = S + 4 * q
            a('v_add_f32 v%d, v%d, v%d' % (b, b, b + 1))
            a('v_add_f32 v%d, v%d, v%d' % (b + 2, b + 2, b + 3))
        M, E = S + 8, S + 9
        a('v_add_f32 v%d, v%d, v%d' % (M, S, S + 2))
        a('v_add_f32 v%d, v%d, v%d' % (E, S + 4, S + 6))
        for sw in ('v_permlane16_swap_b32', 'v_permlane32_swap_b32'):
            for q in range(2):
                a('v_mov_b32 v%d, v%d' % (S + q, M + q))
            for q in range(2):
                a('%s v%d, v%d' % (sw, M + q, S + q))
            for q in range(2):
                a('v_add_f32 v%d, v%d, v%d' % (M + q, M + q, S + q))
        a('s_mov_b32 s%d, %s' % (sT0, f32(1.0 / 512)))
        a('s_mov_b32 s%d, %s' % (sT1, f32(1e-5)))
        a('v_mul_f32 v%d, s%d, v%d' % (M, sT0, M))
        a('v_mul_f32 v%d, s%d, v%d' % (E, sT0, E))
        a('v_fma_f32 v%d, -v%d, v%d, v%d' % (E, M, M, E))
        a('v_max_f32 v%d, 0, v%d' % (E, E))
        a('v_cvt_pk_bf16_f32 v%d, v%d, v%d' % (S, M, E))
        a('v_lshlrev_b32 v%d, 16, v%d' % (M, S))
        a('v_and_b32 v%d, s%d, v%d' % (E, sMASKHI, S))
        a('v_add_f32 v%d, s%d, v%d' % (E, sT1, E))
        a('v_cvt_pk_bf16_f32 v%d, v%d, v%d' % (S, E, E))
        a('v_and_b32 v%d, s%d, v%d' % (E, sMASKHI, S))
        a('v_sqrt_f32 v%d, v%d' % (E, E))
        a('v_cvt_pk_bf16_f32 v%d, v%d, v%d' % (S, E, E))
        a('v_and_b32 v%d, s%d, v%d' % (E, sMASKHI, S))
        a('v_rcp_f32 v%d, v%d' % (E, E))
        a('v_mul_f32 v%d, v%d, v%d' % (M, M, E))
        a('v_sub_f32 v%d, 0, v%d' % (M, M))
        for s in range(16):
            for d in range(4):
                x = R0 + 4 * s + d
                tt = t + 2 * d
                a('v_lshlrev_b32 v%d, 16, v%d' % (tt, x))
                a('v_and_b32 v%d, s%d, v%d' % (tt + 1, sMASKHI, x))
            for d in range(4):
                tt = t + 2 * d
                if ENV('LNPK', '1') == '1':
                    a('v_pk_fma_f32 %s, %s, %s, %s op_sel:[0,1,0] op_sel_hi:[1,1,0]' % (vr(tt, 2), vr(tt, 2), vr(M, 2), vr(M, 2)))
                else:
                    a('v_fma_f32 v%d, v%d, v%d, v%d' % (tt, tt, E, M))
                    a('v_fma_f32 v%d, v%d, v%d, v%d' % (tt + 1, tt + 1, E, M))
            for d in range(4):
                tt = t + 2 * d
                a('v_cvt_pk_bf16_f32 v%d, v%d, v%d' % (R0 + 4 * s + d, tt, tt + 1))
            a('ds_write_b128 v%d, %s offset:%d' % (LA_ + (s & 3), vr(R0 + 4 * s, 4), (s >> 2) * 256))
        if ENV('MIDPOS', '1') == '1':
            mid()
        for q in range(1, 8):
            a('v_xor_b32 v%d, %d, v%d' % (LA_ + 4 + q, q << 5, LA_ + 4))
        a.wait_lg0()
        self.stamp(29, self.POOL)
        a('s_barrier')
        self.stamp(30, self.POOL)
        for s in range(32):
            a('ds_read_b128 %s, v%d offset:%d' % (vr(4 * s, 4), LA_ + 4 + (s & 7), (s >> 3) * 256), tag=('xf', s))
        a.wait_lg0()
        a.wait_vm(('dma', 0))
        a('s_barrier')

    def epi_qkv(self, acc, pidx, isv, scale):
        out = []
        if scale:
            for r in range(16):
                out.append(('v_mul_f32 v%d, s%d, v%d' % (acc + r, sQS, acc + r), None))
        for tl in range(2):
            q = self.TMP + 4 * tl
            for e in range(4):
                c = acc + 8 * tl + 2 * e
                out.append(('v_cvt_pk_bf16_f32 v%d, v%d, v%d' % (q + e, c, c + 1), None))
            if isv:
                out.append(('buffer_store_dwordx4 %s, v%d, %s, s%d offen offset:%d%s' % (
                    vr(q, 4), self.vSV, sr(S_WS, 4), sST + pidx, 256 * tl, self.sc), 'st'))
            else:
                so = 's%d' % (sST + pidx)
                if tl == 1:
                    out.append(('s_add_u32 s%d, s%d, 0x10000' % (sT1, sST + pidx), None))
                    so = 's%d' % sT1
                out.append(('buffer_store_dwordx4 %s, v%d, %s, %s offen%s' % (
                    vr(q, 4), self.vL16, sr(S_WS, 4), so, self.sc), 'st'))
        return out

    def epi_geglu(self, acc, pidx):
        out = []
        for tl in range(2):
            q = self.TMP + 4 * tl
            for hf in range(2):
                g0 = acc + 8 * tl + 4 * hf
                u0 = g0 + 16
                t0 = self.TMP + 8 + 4 * hf
                blk = []
                for e in range(4):
                    blk.append('v_mul_f32 v%d, v%d, v%d' % (t0 + e, g0 + e, g0 + e))
                for e in range(4):
                    blk.append('v_fma_f32 v%d, v%d, s%d, v%d' % (t0 + e, t0 + e, sK1, self.vK0))
                for e in range(4):
                    blk.append('v_mul_f32 v%d, v%d, v%d' % (t0 + e, t0 + e, g0 + e))
                for e in range(4):
                    blk.append('v_exp_f32 v%d, v%d' % (t0 + e, t0 + e))
                for e in range(4):
                    blk.append('v_mul_f32 v%d, v%d, v%d' % (g0 + e, g0 + e, u0 + e))
                for e in range(4):
                    blk.append('v_add_f32 v%d, 1.0, v%d' % (t0 + e, t0 + e))
                for e in range(4):
                    blk.append('v_rcp_f32 v%d, v%d' % (t0 + e, t0 + e))
                for e in range(4):
                    blk.append('v_mul_f32 v%d, v%d, v%d' % (g0 + e, g0 + e, t0 + e))
                blk.append('v_cvt_pk_bf16_f32 v%d, v%d, v%d' % (q + 2 * hf, g0, g0 + 1))
                blk.append('v_cvt_pk_bf16_f32 v%d, v%d, v%d' % (q + 2 * hf + 1, g0 + 2, g0 + 3))
                out += [(b, None) for b in blk]
            out.append(('buffer_store_dwordx4 %s, v%d, %s, s%d offen offset:%d%s' % (
                vr(q, 4), self.vL16, sr(S_WS, 4), sST + pidx, 1024 * tl, self.sc), 'st'))
        return out

    BGRATE = 4

    def run_passes(self, passes, stages, first_stage_ready, pre_ev, post_ev):
        a = self.a
        items = []
        for p in passes:
            nst = 2 if p['kind'] == 'p1' else 4
            kper = 32 // nst
            npan = 1 if p['kind'] == 'p1' else 2
            for st in range(nst):
                for ks in range(kper):
                    for pn in range(npan):
                        items.append(dict(gs=p['stages'][st], p=p, s=st * kper + ks, ks=ks, pn=pn))
        n = len(items)
        bg, dq = [], []
        self.dpace = 4
        carry = []
        if first_stage_ready == 0:
            if ENV('PACE0', '1') == '1':
                dq, carry = list(self.dq0[:8]), list(self.dq0[8:])
                self.dpace = 2
            else:
                dq = list(self.dq0)
                self.dpace = 1

        def issue_reads(k):
            it = items[k]
            if it['gs'] > self.covered:
                a.wait_vm(('dma', it['gs']))
                a('s_barrier')
                self.covered = it['gs']
            slot = it['gs'] % self.NS
            off = (slot & 1) * 32768 + it['pn'] * 16384 + it['ks'] * 2048
            addr = self.vTR + (slot >> 1)
            dst = self.POOL + 4 * (k % self.NP)
            a('ds_read_b64_tr_b16 %s, v%d offset:%d' % (vr(dst, 2), addr, off), tag=('f', k))
            a('ds_read_b64_tr_b16 %s, v%d offset:%d' % (vr(dst + 2, 2), addr, off + 512), tag=('f', k))

        def pop_bg(cnt):
            for _ in range(cnt):
                if not bg:
                    return
                t = bg.pop(0)
                a(t[0], tag=t[1])

        cur_gs, issued, kst, later = None, 0, 0, None
        for k in range(n):
            it = items[k]
            p = it['p']
            if it['gs'] != cur_gs:
                cur_gs = it['gs']
                if cur_gs != first_stage_ready:
                    if (cur_gs + 1) in stages:
                        a.wait_vm(('dma', cur_gs + 1))
                        self.covered = cur_gs + 1
                    for f in pre_ev.get(cur_gs, []):
                        f()
                    if self.STAMP2:
                        self.stamp(8 + 2 * cur_gs, 248)
                    a('s_barrier')
                    if self.STAMP2:
                        self.stamp(9 + 2 * cur_gs, 248)
                    for f in post_ev.get(cur_gs, []):
                        f()
                    assert not dq
                    if (cur_gs + self.NS - 1) in stages:
                        dq = carry + list(stages[cur_gs + self.NS - 1])
                    self.dpace = 2 if carry else 4
                    carry = []
                    kst = k
            while issued < n and issued <= k + self.LA:
                issue_reads(issued)
                issued += 1
            a.wait_lg(('f', k))
            w = self.POOL + 4 * (k % self.NP)
            acc = p['acc'] + 16 * it['pn']
            x = 4 * it['s']
            c = '0' if it['s'] == 0 else vr(acc, 16)
            if p.get('isv'):
                a('v_mfma_f32_32x32x16_bf16 %s, %s, %s, %s' % (vr(acc, 16), vr(x, 4), vr(w, 4), c))
            else:
                a('v_mfma_f32_32x32x16_bf16 %s, %s, %s, %s' % (vr(acc, 16), vr(w, 4), vr(x, 4), c))
            PR = int(ENV('PRIO', '8'))
            if PR and (k % 16) == 0:
                self.prio_young(1)
            if PR and (k % 16) == PR:
                self.prio_young(0)
            if later is not None and k >= later[0]:
                bg.extend(later[1])
                later = None
            if dq and ((k - kst) % self.dpace == 1 or self.dpace == 1):
                self.emit_group(dq.pop(0))
            pop_bg(self.BGRATE)
            if (k == n - 1) or (items[k + 1]['p'] is not p):
                assert later is None
                pop_bg(10 ** 6)
                if p['kind'] == 'p1':
                    e = self.epi_qkv(p['acc'], p['pidx'], p.get('isv'), p.get('scale'))
                else:
                    e = self.epi_geglu(p['acc'], p['pidx'])
                later = (k + 3, e)
        bg.extend(later[1])
        return bg

    def phase1(self, p3_stages):
        a = self.a
        vEP = self.vEP
        LB, LJ = self.lab('typeB'), self.lab('p1join')
        a('s_cmp_eq_u32 s%d, 3' % sI)
        a.branch('s_cbranch_scc1 ' + LB)
        vm0 = list(a.vm)
        for typ in ('A', 'B'):
            a.vm = list(vm0)
            if typ == 'B':
                a.label(LB)
            self.p1_scalar_setup(typ)
            if typ == 'A':
                plist = [('p1', 0), ('p2', 1), ('p2', 2)]
            else:
                plist = [('p1', 0), ('p1', 1), ('p1', 2), ('p2', 3)]
            stages, passes, gs = {}, [], 0
            for k, (kind, pidx) in enumerate(plist):
                nst = 2 if kind == 'p1' else 4
                ids = list(range(gs, gs + nst))
                for st, g_ in enumerate(ids):
                    stages[g_] = (self.dma_p1 if kind == 'p1' else self.dma_p2)(pidx, st, g_ % self.NS, g_)
                gs += nst
                passes.append(dict(kind=kind, pidx=pidx, stages=ids,
                                   acc=self.ACC[(k + 1) % 2 if typ == 'A' else k % 2],
                                   isv=(typ == 'B' and k == 2), scale=(k == 0)))
            for k, f in enumerate(p3_stages):
                stages[10 + k] = f((10 + k) % self.NS, 10 + k)
            WL = ENV('WARMLATE', '1')
            if WL == '0':
                self.warm_p1(typ)
            if self.EARLYW:
                self.warm_p1(typ, True)
            self.epoch_issue(vEP)
            if ENV('TLB', '1') == '1':
                self.tlb_touch(typ)

            def mid():
                for grp in stages[0]:
                    self.emit_group(grp)
                if WL == '1':
                    self.warm_p1(typ)
                if ENV('WARM3', '1') == '2':
                    self.warm_p3()
            self.layernorm(mid)
            for grp in stages[1]:
                self.emit_group(grp)
            self.dq0 = [grp for g_ in range(2, self.NS) for grp in stages[g_]]
            self.stamp(1, self.POOL)
            k0 = -2.0 * math.log2(math.e) * math.sqrt(2.0 / math.pi)
            a('s_mov_b32 s%d, %s' % (sK1, f32(k0 * 0.044715)))
            a('v_mov_b32 v%d, %s' % (self.vK0, f32(k0)))
            self.covered = 0
            self.stamp(2, self.POOL)
            gq = 4 if typ == 'A' else 7
            pre, post = {}, {}
            pre[4] = [lambda: self.epoch_get(vEP)]
            pre.setdefault(gq, []).append(lambda: a.wait_vm('st'))
            post[gq] = [lambda: self.publish(0, vEP)]
            if ENV('WARM3', '1') == '1':
                post.setdefault(int(ENV('W3ST', '3')), []).append(self.warm_p3)
            post.setdefault(11 - self.NS, []).append(self.p3_setup_dma)
            if ENV('W3L2'):
                post.setdefault(int(ENV('W3L2')), []).append(self.warm_p3_l2)
            post.setdefault(9, []).append(lambda: self.flag_issue(0, sMB, 2, 'qflag'))
            variants = (False, True) if typ == 'A' else (None,)
            if typ == 'A':
                LV = self.lab('Av')
                a('s_cmp_eq_u32 s%d, 2' % sI)
                a.branch('s_cbranch_scc1 ' + LV)
            vm1, lg1 = list(a.vm), list(a.lg)
            for isv in variants:
                a.vm, a.lg = list(vm1), list(lg1)
                self.covered = 0
                if isv:
                    a.label(LV)
                if typ == 'A':
                    passes[0]['isv'] = isv
                    passes[0]['scale'] = not isv
                bg = self.run_passes(passes, stages, 0, pre, post)
                self.stamp(4, self.POOL)
                self.flag_wait('qflag')
                self.attn_loads()
                for t in bg:
                    a(t[0], tag=t[1])
                self.attn_loads_v()
                self.stamp(5, self.TMP)
                if typ == 'A':
                    vmA = list(a.vm)
                    a.branch('s_branch ' + LJ)
        tail = lambda q: [t for t in q[q.index('q'):]]
        assert tail(vmA) == tail(a.vm), (tail(vmA), tail(a.vm))
        if len(vmA) > len(a.vm):
            a.vm = vmA
        a.label(LJ)

    def KR(self, j):
        return 104 + 4 * j

    MERGE = ENV('MERGE', '0') == '1'

    def VR(self, j, m):
        if self.MERGE:
            return 144 + 4 * j if j < 4 else 192 + 4 * (j - 4)
        return (192 + 8 * j if j < 3 else 32 + 8 * (j - 3)) + 4 * m

    AQ = 140
    CB = 144
    aTQ, aNEG, aM = 248, 249, 251
    mM, mMJ, mLS = 244, 245, 246
    vPUB = 253
    vST = 103
    sVO = 76

    def v_load(self, j):
        a = self.a
        a('s_mov_b32 exec_lo, 0x0000ffff')
        a('s_mov_b32 exec_hi, 0x0000ffff')
        a('buffer_load_dwordx4 %s, v%d, %s, s%d offen%s' % (vr(self.VR(j, 0), 4), self.vL16, sr(S_WS, 4), self.sVO + j, self.sc), tag=('v', j))
        a('s_mov_b32 exec_lo, 0xffff0000')
        a('s_mov_b32 exec_hi, 0xffff0000')
        a('buffer_load_dwordx4 %s, v%d, %s, s%d offen%s' % (vr(self.VR(j, 1), 4), self.vL16, sr(S_WS, 4), self.sVO + j, self.sc), tag=('v', j))
        a('s_mov_b64 exec, -1')

    def attn_loads(self):
        a = self.a
        vL16 = self.vL16
        a('s_lshl_b32 s%d, s%d, 3' % (sHEAD, sQUAD))
        a('s_lshl_b32 s%d, s%d, 1' % (sT0, sI))
        a('s_add_u32 s%d, s%d, s%d' % (sHEAD, sHEAD, sT0))
        a('s_add_u32 s%d, s%d, s%d' % (sHEAD, sHEAD, sC))
        a('s_lshl_b32 s%d, s%d, 2' % (sQB, sMB))
        a('s_add_u32 s%d, s%d, s%d' % (sQB, sQB, sR))
        a('s_lshl_b32 s%d, s%d, 6' % (sT0, sHEAD))
        a('s_add_u32 s%d, s%d, s%d' % (sT1, sT0, sQB))
        a('s_lshl_b32 s%d, s%d, 10' % (sT1, sT1))
        a('buffer_load_dwordx4 %s, v%d, %s, s%d offen%s' % (vr(self.AQ, 4), vL16, sr(S_WS, 4), sT1, self.sc), tag='q')
        for j in range(8, -1, -1):
            a('s_add_i32 s%d, s%d, %d' % (sT1, sQB, j - 8))
            a('s_max_i32 s%d, s%d, 0' % (sT1, sT1))
            a('s_add_u32 s%d, s%d, s%d' % (sT1, sT1, sT0))
            a('s_lshl_b32 s%d, s%d, 10' % (sT1, sT1))
            a('s_add_u32 s%d, s%d, 0x%x' % (sT2, sT1, 2 << 20))
            a('buffer_load_dwordx4 %s, v%d, %s, s%d offen%s' % (vr(self.KR(j), 4), vL16, sr(S_WS, 4), sT2, self.sc), tag=('k', j))
            a('s_add_u32 s%d, s%d, 0x%x' % (self.sVO + j, sT1, 4 << 20))
    def attn_loads_v(self):
        a = self.a
        for j in range(9):
            a('buffer_load_dwordx4 %s, v%d, %s, s%d offen%s' % (vr(self.VR(j, 1), 4), self.vL16, sr(S_WS, 4), self.sVO + j, self.sc), tag=('v', j))

    vONE = 249

    def v_split(self, j):
        out = []
        for r in range(4):
            out.append(('v_cndmask_b32 v%d, v%d, v%d, %s' % (self.VR(j, 0) + r, self.vONE, self.VR(j, 1) + r, sr(self.sRM, 2)), None))
        for r in range(4):
            out.append(('v_cndmask_b32 v%d, v%d, v%d, %s' % (self.VR(j, 1) + r, self.VR(j, 1) + r, self.vONE, sr(self.sRM, 2)), None))
        return out

    sRM = 62

    def mask_ops(self, b, diag):
        out = []
        for q in range(4):
            for r in range(4 * q, 4 * q + 4):
                cr = (r & 3) + 8 * (r >> 2)
                out.append('v_cmp_le_i32 %s, %d, v%d' % (sr(86 + 2 * (r % 4), 2), cr, self.aTQ))
            for r in range(4 * q, 4 * q + 4):
                m = sr(86 + 2 * (r % 4), 2)
                if diag:
                    out.append('v_cndmask_b32 v%d, v%d, v%d, %s' % (b + r, self.aNEG, b + r, m))
                else:
                    out.append('v_cndmask_b32 v%d, v%d, v%d, %s' % (b + r, b + r, self.aNEG, m))
        return out

    MK = (80, 81, 82, 83, 92, 93, 94, 95)

    def merge_ops(self, b8, b0, mk=False):
        out = []
        for q in range(4):
            for r in range(4 * q, 4 * q + 4):
                cr = (r & 3) + 8 * (r >> 2)
                out.append('v_cmp_le_i32 %s, %d, v%d' % (sr(86 + 2 * (r % 4), 2), cr, self.aTQ))
            for r in range(4 * q, 4 * q + 4):
                out.append('v_cndmask_b32 v%d, v%d, v%d, %s' % (b8 + r, b0 + r, b8 + r, sr(86 + 2 * (r % 4), 2)))
            if mk:
                for e in range(2):
                    k = self.MK[2 * q + e]
                    out.append('v_cndmask_b32 v%d, 0, v%d, %s' % (k, self.vFFFF, sr(86 + 4 * e, 2)))
                    out.append('v_cndmask_b32 v%d, v%d, -1, %s' % (k, k, sr(88 + 4 * e, 2)))
        return out

    vFFFF = 253

    def h_publish(self):
        a = self.a
        a.wait_vm('st')
        a('s_lshl_b32 s%d, s%d, 7' % (sT2, sQB))
        a('s_lshl_b32 s%d, s%d, 1' % (sT3, sCG4))
        a('s_add_u32 s%d, s%d, s%d' % (sT2, sT2, sT3))
        a('s_lshl_b32 s%d, s%d, 2' % (sT3, sC))
        a('s_add_u32 s%d, s%d, s%d' % (sT2, sT2, sT3))
        a('s_add_u32 s%d, s%d, 0x%x' % (sT2, sT2, WS_FLAGH))
        a('v_mov_b32 v%d, s%d' % (self.vPUB, sEPOCH))
        a('s_mov_b64 exec, 1')
        a('buffer_store_dword v%d, off, %s, s%d sc0 sc1' % (self.vPUB, sr(S_WS, 4), sT2), tag='flagst')
        a('s_mov_b64 exec, -1')

    def h_flag_issue(self):
        a = self.a
        va = self.vFL
        a('s_lshl_b32 s%d, s%d, 8' % (sT3, sTB))
        a('v_lshrrev_b32 v%d, 2, v%d' % (va, self.vL16))
        a('v_add_u32 v%d, s%d, v%d' % (va, sT3, va))
        a('v_add_u32 v%d, 0x%x, v%d' % (va, WS_FLAGH, va))
        a('buffer_load_dword v%d, v%d, %s, 0 offen sc0 sc1' % (va + 1, va, sr(S_WS, 4)), tag='hflag')

    def attn_pass1(self):
        a = self.a
        vL16 = self.vL16
        self.stamp(0, self.vST)
        TQ, NEG, M = self.aTQ, self.aNEG, 96
        a('v_bfe_u32 v%d, v%d, 4, 5' % (TQ, vL16))
        a('v_lshrrev_b32 v%d, 9, v%d' % (NEG, vL16))
        a('v_lshlrev_b32 v%d, 2, v%d' % (NEG, NEG))
        a('v_sub_u32 v%d, v%d, v%d' % (TQ, TQ, NEG))
        a('v_mov_b32 v%d, %s' % (NEG, f32(-1e30)))
        for c in range(3):
            a('v_mov_b32 v%d, v%d' % (M + c, NEG))
        bufs = (0, 16, 160, 176)
        A_, B_, C_, D_ = bufs
        def qk1(j, b):
            a.wait_vm(('k', j))
            a('v_mfma_f32_32x32x16_bf16 %s, %s, %s, 0' % (vr(b, 16), vr(self.KR(j), 4), vr(self.AQ, 4)))
        qk1(8, A_)
        qk1(7, C_)
        qk1(6, D_)
        qk1(0, B_)
        LD = self.lab('p1done')
        def mx(b):
            for q in range(8):
                c = M + (q % 3)
                a('v_max3_f32 v%d, v%d, v%d, v%d' % (c, c, b + 2 * q, b + 2 * q + 1))
        def guarded(j, b):
            a.raw('    s_cmp_lt_u32 s%d, %d' % (sQB, 8 - j))
            a.raw('    s_cbranch_scc1 L_skip%d_%s' % (j, LD))
            mx(b)
            a.raw('L_skip%d_%s:' % (j, LD))
        guarded(7, C_)
        qk1(5, C_)
        self.h_publish()
        guarded(6, D_)
        qk1(4, D_)
        L0 = self.lab('t0ok')
        a.raw('    s_cmp_ge_u32 s%d, 8' % sQB)
        a.raw('    s_cbranch_scc1 ' + L0)
        a.raw('    s_nop 7')
        a.raw('    s_nop 7')
        for r in range(16):
            a.raw('    v_mov_b32 v%d, v%d' % (B_ + r, NEG))
        a.raw(L0 + ':')
        for t in self.merge_ops(A_, B_):
            a(t)
        mx(A_)
        qk1(3, A_)
        qk1(2, B_)
        guarded(5, C_)
        qk1(1, C_)
        guarded(4, D_)
        guarded(3, A_)
        guarded(2, B_)
        guarded(1, C_)
        a('s_nop 11')
        a.flush()
        a('v_max3_f32 v%d, v%d, v%d, v%d' % (M, M, M + 1, M + 2))
        a('v_mov_b32 v%d, v%d' % (M + 1, M))
        a('v_permlane32_swap_b32 v%d, v%d' % (M, M + 1))
        a('v_max_f32 v%d, v%d, v%d' % (M, M, M + 1))
        if self.MERGE:
            a('v_mov_b32 v%d, v%d' % (self.mM, M))
            a('v_mov_b32 v%d, 0' % self.mLS)
            a('v_mov_b32 v%d, 0' % (self.mLS + 1))
        a('v_sub_f32 v%d, 0, v%d' % (self.aM, M))
        a('s_cmp_ge_u32 s%d, 8' % sQB)
        a('s_cselect_b64 %s, -1, 0' % sr(86, 2))
        a('v_cndmask_b32 v%d, v%d, v%d, %s' % (M, NEG, self.aM, sr(86, 2)))
        for r in range(16):
            if not self.MERGE:
                a('v_mov_b32 v%d, v%d' % (self.CB + r, M))
        self.stamp(1, self.vST)
        self.stamp(2, self.vST)

    def attn_pass2_merge(self):
        a = self.a
        out = []
        D1, D2 = 212, 228
        LS, M, MJ = self.mLS, self.mM, self.mMJ
        SB = lambda j: 160 + 16 * (j & 1)
        qk = lambda j: ('v_mfma_f32_32x32x16_bf16 %s, %s, %s, 0' % (vr(SB(j), 16), vr(self.KR(j), 4), vr(self.AQ, 4)), None)
        out.append(qk(0))
        for j in range(9):
            b = SB(j)
            if j + 1 < 9:
                out.append(qk(j + 1))
            if j < 8:
                def mj(j=j):
                    a('s_cmp_ge_u32 s%d, %d' % (sQB, 8 - j))
                    a('s_cselect_b32 s%d, 0, %s' % (sCNT, f32(1e30)))
                    a('v_add_f32 v%d, s%d, v%d' % (MJ, sCNT, M))
                out.append(mj)
            else:
                out.append(('v_mov_b32 v%d, v%d' % (MJ, M), None))
            if j in (0, 8):
                out += [(t, None) for t in self.mask_ops(b, j == 8)]
            for q in range(4):
                for r in range(4 * q, 4 * q + 4):
                    out.append(('v_sub_f32 v%d, v%d, v%d' % (b + r, b + r, MJ), None))
                for r in range(4 * q, 4 * q + 4):
                    out.append(('v_exp_f32 v%d, v%d' % (b + r, b + r), None))
                if q:
                    for r in range(4 * q - 4, 4 * q):
                        out.append(('v_add_f32 v%d, v%d, v%d' % (LS + (r & 1), LS + (r & 1), b + r), None))
                    for r in range(2 * q - 2, 2 * q):
                        out.append(('v_cvt_pk_bf16_f32 v%d, v%d, v%d' % (b + r, b + 2 * r, b + 2 * r + 1), None))
            for r in range(12, 16):
                out.append(('v_add_f32 v%d, v%d, v%d' % (LS + (r & 1), LS + (r & 1), b + r), None))
            for r in range(6, 8):
                out.append(('v_cvt_pk_bf16_f32 v%d, v%d, v%d' % (b + r, b + 2 * r, b + 2 * r + 1), None))
            if j == 0:
                out.append(lambda: a.wait_vm(('v', 8)))
            out.append(('v_mfma_f32_32x32x16_bf16 %s, %s, %s, %s' % (vr(D1, 16), vr(self.VR(j, 0), 4), vr(b, 4), '0' if j == 0 else vr(D1, 16)), None))
            out.append(('v_mfma_f32_32x32x16_bf16 %s, %s, %s, %s' % (vr(D2, 16), vr(self.VR(j, 0), 4), vr(b + 4, 4), '0' if j == 0 else vr(D2, 16)), None))
        T_ = []
        T_.append('v_add_f32 v%d, v%d, v%d' % (LS, LS, LS + 1))
        T_.append('v_mov_b32 v%d, v%d' % (LS + 1, LS))
        T_.append('v_permlane32_swap_b32 v%d, v%d' % (LS, LS + 1))
        T_.append('v_add_f32 v%d, v%d, v%d' % (LS, LS, LS + 1))
        T_.append('v_rcp_f32 v%d, v%d' % (LS, LS))
        T_.append('s_mul_i32 s%d, s%d, %d' % (sT2, sQB, NACT))
        T_.append('s_add_u32 s%d, s%d, s%d' % (sT2, sT2, sHEAD))
        T_.append('s_add_u32 s%d, s%d, 112' % (sT2, sT2))
        T_.append('s_lshl_b32 s%d, s%d, 10' % (sT2, sT2))
        T_.append('s_add_u32 s%d, s%d, 0x%x' % (sT2, sT2, WS_ACT))
        for r in range(8):
            T_.append('v_add_f32 v%d, v%d, v%d' % (D1 + r, D1 + r, D2 + 8 + r))
        for r in range(8):
            T_.append('v_mul_f32 v%d, v%d, v%d' % (D1 + r, D1 + r, LS))
        O = 160
        for r in range(4):
            T_.append('v_cvt_pk_bf16_f32 v%d, v%d, v%d' % (O + r, D1 + 2 * r, D1 + 2 * r + 1))
        out += [(t, None) for t in T_]
        out.append(('buffer_store_dwordx4 %s, v%d, %s, s%d offen%s' % (vr(O, 4), self.vL16, sr(S_WS, 4), sT2, self.sc), 'st'))
        k = int(ENV('MARKAT', '130'))
        out.insert(k, ('MARK', 4))
        out.insert(k + 1, ('MARK', 6))
        return out

    def attn_pass2(self):
        if self.MERGE:
            return self.attn_pass2_merge()
        a = self.a
        out = []
        D1, D2 = 216, 232
        CB = self.CB
        SB = lambda j: 160 + 16 * (j & 1)

        def qk(j, dst=None):
            dst = SB(j) if dst is None else dst
            def f():
                if j >= 1:
                    L = self.lab('cs')
                    a.raw('    s_cmp_lg_u32 s%d, %d' % (sQB, 8 - j))
                    a.raw('    s_cbranch_scc1 ' + L)
                    a.raw('    s_nop 7')
                    for r in range(16):
                        a.raw('    v_mov_b32 v%d, v%d' % (CB + r, self.aM))
                    a.raw('    s_nop 1')
                    a.raw(L + ':')
                a('v_mfma_f32_32x32x16_bf16 %s, %s, %s, %s' % (vr(dst, 16), vr(self.KR(j), 4), vr(self.AQ, 4), vr(CB, 16)))
            return f
        P = 84

        def pv(j, m):
            D = D2 if m else D1
            o = []
            if m == 0:
                o.append(lambda: a.wait_vm(('v', j)))
                o += self.v_split(j)
            o.append(('v_mfma_f32_32x32x16_bf16 %s, %s, %s, %s' % (vr(D, 16), vr(self.VR(j, m), 4), vr(P + 4 * m, 4), '0' if j == 0 else vr(D, 16)), None))
            if m == 1 and j == 2:
                o.append(self.h_flag_issue)
            if m == 1 and j in (4, 6):
                o.append(('MARK', j))
            return o
        P8 = (self.KR(0), self.KR(8))
        b0, b8 = SB(0), SB(1)
        out.append(qk(0))
        out.append(('v_mfma_f32_32x32x16_bf16 %s, %s, %s, 0' % (vr(b8, 16), vr(self.KR(8), 4), vr(self.AQ, 4)), None))
        out.append(('v_mov_b32 v%d, 0xffff' % self.vFFFF, None))
        out.append(('v_mov_b32 v%d, s%d' % (self.vONE, sONES), None))
        out.append(('s_mov_b32 s%d, 0xffff' % self.sRM, None))
        out.append(('s_mov_b32 s%d, 0xffff' % (self.sRM + 1), None))
        for r in range(16):
            out.append(('v_add_f32 v%d, v%d, v%d' % (b8 + r, b8 + r, self.aM), None))
        out += [(t, None) for t in self.merge_ops(b8, b0, True)]
        SJ = lambda j: SB(j + 1)
        qk2 = lambda j: qk(j, SJ(j))
        out.append(qk2(1))
        for r in range(16):
            out.append(('v_exp_f32 v%d, v%d' % (b8 + r, b8 + r), None))
        for r in range(8):
            out.append(('v_cvt_pk_bf16_f32 v%d, v%d, v%d' % (P + r, b8 + 2 * r, b8 + 2 * r + 1), None))
        for r in range(8):
            out.append(('v_and_b32 v%d, v%d, v%d' % (P8[r >> 2] + (r & 3), P + r, self.MK[r]), None))
        for r in range(8):
            out.append(('v_xor_b32 v%d, v%d, v%d' % (P + r, P + r, P8[r >> 2] + (r & 3)), None))
        pv8 = [lambda: (a.wait_vm(('v', 8)), [a(t[0]) for t in self.v_split(8)])]
        for m in range(2):
            D = D2 if m else D1
            pv8.append(('v_mfma_f32_32x32x16_bf16 %s, %s, %s, %s' % (vr(D, 16), vr(self.VR(8, m), 4), vr(P8[m], 4), vr(D, 16)), None))
        for j in range(1, 8):
            b = SJ(j)
            for r in range(16):
                out.append(('v_exp_f32 v%d, v%d' % (b + r, b + r), None))
                if r == 1:
                    out += pv(j - 1, 0)
                if r == 5:
                    out += pv(j - 1, 1)
                if r == 9 and j < 7:
                    out.append(qk2(j + 1))
                if r == 13 and j == 1:
                    out += pv8[:2]
                if r == 13 and j == 2:
                    out += pv8[2:]
            for r in range(8):
                out.append(('v_cvt_pk_bf16_f32 v%d, v%d, v%d' % (P + r, b + 2 * r, b + 2 * r + 1), None))
        out += pv(7, 0) + pv(7, 1)
        T_ = []
        LS = D1 + 8
        T_.append('s_mul_i32 s%d, s%d, %d' % (sT2, sQB, NACT))
        T_.append('s_add_u32 s%d, s%d, s%d' % (sT2, sT2, sHEAD))
        T_.append('s_add_u32 s%d, s%d, 112' % (sT2, sT2))
        T_.append('s_lshl_b32 s%d, s%d, 10' % (sT2, sT2))
        T_.append('s_add_u32 s%d, s%d, 0x%x' % (sT2, sT2, WS_ACT))
        T_.append('v_add_f32 v%d, v%d, v%d' % (LS, LS, D2))
        T_.append('v_rcp_f32 v%d, v%d' % (LS, LS))
        for r in range(8):
            T_.append('v_add_f32 v%d, v%d, v%d' % (D1 + r, D1 + r, D2 + 8 + r))
        for r in range(8):
            T_.append('v_mul_f32 v%d, v%d, v%d' % (D1 + r, D1 + r, LS))
        O = 160
        for r in range(4):
            T_.append('v_cvt_pk_bf16_f32 v%d, v%d, v%d' % (O + r, D1 + 2 * r, D1 + 2 * r + 1))
        out += [(t, None) for t in T_]
        out.append(('buffer_store_dwordx4 %s, v%d, %s, s%d offen%s' % (vr(O, 4), self.vL16, sr(S_WS, 4), sT2, self.sc), 'st'))
        return out

    v3D = 252

    def p3_setup_dma(self):
        a = self.a
        ROW, P_, S_ = self.vFL, self.vFL + 1, 253
        a('s_and_b32 s%d, s%d, 3' % (sKQ, sW))
        a('s_lshr_b32 s%d, s%d, 2' % (sTH, sW))
        a('v_lshrrev_b32 v%d, 7, v%d' % (ROW, self.vL16))
        a('v_bfe_u32 v%d, v%d, 4, 3' % (P_, self.vL16))
        a('v_bfe_u32 v%d, v%d, 1, 1' % (S_, ROW))
        a('v_lshlrev_b32 v%d, 2, v%d' % (S_, S_))
        a('v_xor_b32 v%d, v%d, v%d' % (P_, P_, S_))
        a('v_lshlrev_b32 v%d, 4, v%d' % (P_, P_))
        a('v_lshrrev_b32 v%d, 2, v%d' % (S_, ROW))
        a('v_and_b32 v%d, 3, v%d' % (ROW, ROW))
        a('v_lshl_add_u32 v%d, v%d, 3, v%d' % (ROW, S_, ROW))
        a('v_lshl_add_u32 v%d, v%d, 10, v%d' % (self.v3D, ROW, P_))
        a('s_lshl_b32 s%d, s%d, 7' % (sT0, sNB))
        a('s_lshl_b32 s%d, s%d, 5' % (sT1, sTH))
        a('s_mul_i32 s%d, s%d, 448' % (sT2, sKQ))
        a('s_add_u32 s%d, s%d, s%d' % (sT2, sT2, sT1))
        a('s_lshl_b32 s%d, s%d, 10' % (sT2, sT2))
        a('s_add_u32 s%d, s%d, s%d' % (sWD, sT2, sT0))
        a('s_lshl_b32 s%d, s%d, 7' % (sT2, sKQ))
        a('s_add_u32 s%d, s%d, s%d' % (sT2, sT2, sT1))
        a('s_lshl_b32 s%d, s%d, 10' % (sT2, sT2))
        a('s_add_u32 s%d, s%d, s%d' % (sWOo, sT2, sT0))
        a('s_lshl_b32 s%d, s%d, 13' % (sT2, sKQ))
        a('s_lshl_b32 s%d, s%d, 12' % (sT1, sTH))
        a('s_add_u32 s%d, s%d, s%d' % (sWB3, sT2, sT1))

    def p3_stage_fn(self, st):
        def f(slot, gs):
            out = []
            for j in range(4):
                base, srd, s_ = (sWD, S_DOWN, st) if st < 7 else (sWOo, S_WO, st - 7)
                so = (64 * s_ + 16 * (j >> 1) + 4 * (j & 1)) * 1024
                out.append((['s_add_u32 s%d, s%d, 0x%x' % (sT0, base, so),
                             's_add_u32 m0, s%d, 0x%x' % (sWB3, slot * 32768 + 1024 * j),
                             'buffer_load_dwordx4 v%d, %s, s%d offen lds' % (self.v3D, sr(srd, 4), sT0)], ('dma', gs)))
            return out
        return f

    def act_touch(self, isO, vt, vd):
        a = self.a
        per_wg, per_w, base = (64, 8, 112 * 1024) if isO else (224, 28, 0)
        a('s_lshr_b32 s%d, s%d, 2' % (sT2, sNB))
        a('s_lshl_b32 s%d, s%d, 1' % (sT3, sTB))
        a('s_add_u32 s%d, s%d, s%d' % (sT2, sT2, sT3))
        a('s_mul_i32 s%d, s%d, %d' % (sT2, sT2, NACT * 1024))
        a('s_and_b32 s%d, s%d, 3' % (sT3, sNB))
        a('s_mul_i32 s%d, s%d, %d' % (sT3, sT3, per_wg * 128))
        a('s_add_u32 s%d, s%d, s%d' % (sT2, sT2, sT3))
        a('s_mul_i32 s%d, s%d, %d' % (sT3, sW, per_w * 128))
        a('s_add_u32 s%d, s%d, s%d' % (sT2, sT2, sT3))
        a('s_add_u32 s%d, s%d, 0x%x' % (sT2, sT2, WS_ACT + base))
        a('v_lshlrev_b32 v%d, 3, v%d' % (vt, self.vL16))
        a('s_mov_b64 exec, 0x%x' % ((1 << per_w) - 1))
        a('buffer_load_dword v%d, v%d, %s, s%d offen%s' % (vd, vt, sr(S_WS, 4), sT2, self.sc), tag='warm')
        a('s_mov_b64 exec, -1')

    def phase3(self, gs0, dma_issued):
        a = self.a
        ACC, AB, PB = 0, 32, 80
        NP, LA = 4, 3
        vL16 = self.vL16
        TRa, vO, XR = 96, 102, 104
        att = self.attn_pass2()
        ATR = int(ENV('ATR', '14'))
        self.stamp(0, self.vST)
        a('s_lshl_b32 s%d, s%d, 1' % (sT0, sTB))
        a('s_add_u32 s%d, s%d, s%d' % (sT0, sT0, sTH))
        a('s_mul_i32 s%d, s%d, %d' % (sT1, sT0, NACT))
        a('s_mul_i32 s%d, s%d, 28' % (sT2, sKQ))
        a('s_add_u32 s%d, s%d, s%d' % (sT2, sT2, sT1))
        a('s_lshl_b32 s%d, s%d, 10' % (sT2, sT2))
        a('s_add_u32 s%d, s%d, 0x%x' % (sACT, sT2, WS_ACT))
        a('s_lshl_b32 s%d, s%d, 3' % (sT2, sKQ))
        a('s_add_u32 s%d, s%d, s%d' % (sT2, sT2, sT1))
        a('s_add_u32 s%d, s%d, 112' % (sT2, sT2))
        a('s_lshl_b32 s%d, s%d, 10' % (sT2, sT2))
        a('s_add_u32 s%d, s%d, 0x%x' % (sACTO, sT2, WS_ACT))

        def act_loads(st):
            base, off = (sACT, st * 4096) if st < 7 else (sACTO, (st - 7) * 4096)
            out = [('s_add_u32 s%d, s%d, 0x%x' % (sT1, base, off), None)]
            for j in range(4):
                out.append(('buffer_load_dwordx4 %s, v%d, %s, s%d offen offset:%d%s' % (
                    vr(AB + 16 * (st % 3) + 4 * j, 4), vL16, sr(S_WS, 4), sT1, 1024 * j, self.sc), ('act', st, j)))
            return out

        NS = self.NS
        stages = {gs0 + st: self.p3_stage_fn(st)((gs0 + st) % NS, gs0 + st) for st in range(9)}

        def pop_att(cnt):
            for _ in range(cnt):
                if not att:
                    return
                e = att.pop(0)
                if callable(e):
                    e()
                elif e[0] == 'MARK':
                    if e[1] == 4:
                        self.flag_wait('hflag')
                    for tx, tg in act_loads(0 if e[1] == 4 else 1):
                        a(tx, tag=tg)
                else:
                    a(e[0], tag=e[1])

        A_, B_, C_ = 80, 81, 82
        a('v_lshrrev_b32 v%d, 9, v%d' % (A_, vL16))
        a('v_bfe_u32 v%d, v%d, 6, 2' % (B_, vL16))
        a('v_lshl_add_u32 v%d, v%d, 3, v%d' % (B_, A_, B_))
        a('v_lshlrev_b32 v%d, 7, v%d' % (B_, B_))
        a('v_bfe_u32 v%d, v%d, 8, 1' % (C_, vL16))
        a('v_lshl_add_u32 v%d, v%d, 5, v%d' % (B_, C_, B_))
        a('v_bfe_u32 v%d, v%d, 4, 2' % (C_, vL16))
        a('v_lshl_add_u32 v%d, v%d, 3, v%d' % (B_, C_, B_))
        a('s_lshl_b32 s%d, s%d, 13' % (sT0, sKQ))
        a('v_add_u32 v%d, s%d, v%d' % (B_, sT0, B_))
        a('v_bfe_u32 v%d, v%d, 7, 1' % (C_, vL16))
        a('v_lshl_add_u32 v%d, v%d, 6, v%d' % (TRa, C_, B_))
        a('v_xor_b32 v%d, 1, v%d' % (C_, C_))
        a('v_lshl_add_u32 v%d, v%d, 6, v%d' % (TRa + 1, C_, B_))
        a('v_add_u32 v%d, 0x10000, v%d' % (TRa + 2, TRa))
        a('v_add_u32 v%d, 0x10000, v%d' % (TRa + 3, TRa + 1))
        a('v_add_u32 v%d, 0x20000, v%d' % (TRa + 4, TRa))
        a('v_add_u32 v%d, 0x20000, v%d' % (TRa + 5, TRa + 1))
        a('s_lshl_b32 s%d, s%d, 1' % (sT0, sTB))
        a('s_add_u32 s%d, s%d, s%d' % (sT0, sT0, sTH))
        a('s_lshl_b32 s%d, s%d, 5' % (sT0, sT0))
        a('v_bfe_u32 v%d, v%d, 4, 5' % (B_, vL16))
        a('v_add_u32 v%d, s%d, v%d' % (B_, sT0, B_))
        a('v_lshlrev_b32 v%d, 10, v%d' % (B_, B_))
        a('v_lshl_add_u32 v%d, v%d, 4, v%d' % (B_, A_, B_))
        a('s_lshl_b32 s%d, s%d, 7' % (sT0, sNB))
        a('s_lshl_b32 s%d, s%d, 5' % (sT1, sKQ))
        a('s_add_u32 s%d, s%d, s%d' % (sT0, sT0, sT1))
        a('v_add_u32 v%d, s%d, v%d' % (vO, sT0, B_))

        items = [(st, j, ft) for st in range(9) for j in range(4) for ft in range(2)]
        n = len(items)
        bg = []

        def issue_reads(k):
            st, j, ft = items[k]
            slot = (gs0 + st) % NS
            off = (slot & 1) * 32768 + j * 2048
            addr = TRa + ft + 2 * (slot >> 1)
            dst = PB + 4 * (k % NP)
            a('ds_read_b64_tr_b16 %s, v%d offset:%d' % (vr(dst, 2), addr, off), tag=('f', k))
            a('ds_read_b64_tr_b16 %s, v%d offset:%d' % (vr(dst + 2, 2), addr, off + 512), tag=('f', k))

        def pop_bg(cnt):
            for _ in range(cnt):
                if not bg:
                    return
                tt = bg.pop(0)
                if isinstance(tt[0], list):
                    self.emit_group(tt)
                else:
                    a(tt[0], tag=tt[1])

        pop_att(int(ENV('ATPRE', '160' if self.MERGE else '9999')))
        if self.STAMP2:
            self.stamp(28, self.vST)
        pop_att(int(ENV('ATPRE2', '30')))
        a.wait_vm(('dma', gs0 + 1))
        a('s_barrier')
        for tx, tg in act_loads(2):
            a(tx, tag=tg)
        for st in range(dma_issued, NS):
            for grp in stages[gs0 + st]:
                self.emit_group(grp)
        self.stamp(1, self.vST)
        issued, cur = 0, 0
        opub = None
        for k in range(n):
            st, j, ft = items[k]
            if st != cur:
                cur = st
                if st + 1 < 9:
                    a.wait_vm(('dma', gs0 + st + 1))
                if opub is None and not att:
                    a.wait_vm('st')
                if self.STAMP2:
                    self.stamp(8 + 2 * st, self.vST)
                a('s_barrier')
                if self.STAMP2:
                    self.stamp(9 + 2 * st, self.vST)
                if opub is None and not att:
                    opub = st
                    self.publish(2, self.vPUB)
                    self.stamp(5, self.vST)
                dm = list(stages[gs0 + st + NS - 1]) if st + NS - 1 < 9 else []
                if st == 7:
                    self.epoch_chk_issue()
                if st == 5:
                    assert opub is not None
                    self.flag_issue(2, sTB, 0, 'oflag', shr=1)
                if st == 6:
                    self.flag_wait('oflag')
                    self.stamp(6, self.vST)
                al = []
                if st + 2 < 7:
                    al = act_loads(st + 2)
                elif st == 6:
                    al = act_loads(7) + act_loads(8)[0:]
                if st == 6:
                    bg.extend(al)
                else:
                    bg.extend(al[:1])
                    al = al[1:]
                    for q in range(4):
                        bg.extend(al[q:q + 1])
                        bg.extend(dm[q:q + 1])
                if st == 6:
                    bg.append(('buffer_load_dwordx4 %s, v%d, %s, 0 offen' % (vr(XR, 4), vO, sr(S_X, 4)), 'xr'))
            while issued < n and issued <= k + LA:
                issue_reads(issued)
                issued += 1
            a.wait_vm(('act', st, j))
            a.wait_lg(('f', k))
            acc = ACC + 16 * ft
            c = '0' if (st == 0 and j == 0) else vr(acc, 16)
            a('v_mfma_f32_32x32x16_bf16 %s, %s, %s, %s' % (vr(acc, 16), vr(PB + 4 * (k % NP), 4),
                                                         vr(AB + 16 * (st % 3) + 4 * j, 4), c))
            pop_att(ATR)
            while bg:
                isvm = isinstance(bg[0][0], list) or bg[0][1] is not None
                pop_bg(1)
                if isvm:
                    break
        pop_bg(10 ** 6)
        self.stamp(2, self.vST)
        last = (gs0 + 8) % NS
        rb = 0 if last >= 2 else 65536
        vW = A_
        a('s_mul_i32 s%d, s%d, 24576' % (sT0, sTH))
        a('s_add_u32 s%d, s%d, %d' % (sT0, sT0, rb))
        a('v_add_u32 v%d, s%d, v%d' % (vW, sT0, vL16))
        LBL = [self.lab('red%d' % q) for q in range(4)]
        LE = self.lab('rede')
        for q in range(1, 4):
            a('s_cmp_eq_u32 s%d, %d' % (sKQ, q))
            a.branch('s_cbranch_scc1 ' + LBL[q])
        RES = 64
        assert not att
        for q in range(4):
            if q:
                a.label(LBL[q])
            for o in range(4):
                if o == q:
                    continue
                off = o * 6144 + ((q - o - 1) & 3) * 2048
                a('ds_write_b128 v%d, %s offset:%d' % (vW, vr(ACC + 8 * o, 4), off))
                a('ds_write_b128 v%d, %s offset:%d' % (vW, vr(ACC + 8 * o + 4, 4), off + 1024))
            for e in range(8):
                a('v_mov_b32 v%d, v%d' % (RES + e, ACC + 8 * q + e))
            if q < 3:
                a.branch('s_branch ' + LE)
        a.label(LE)
        a('s_mul_i32 s%d, s%d, 6144' % (sT0, sKQ))
        a('v_add_u32 v%d, s%d, v%d' % (vW, sT0, vW))
        a.wait_lg0()
        a('s_barrier')
        RB = 32
        for sl in range(3):
            a('ds_read_b128 %s, v%d offset:%d' % (vr(RB + 8 * sl, 4), vW, sl * 2048), tag=('r', sl))
            a('ds_read_b128 %s, v%d offset:%d' % (vr(RB + 8 * sl + 4, 4), vW, sl * 2048 + 1024), tag=('r', sl))
        for sl in range(3):
            a.wait_lg(('r', sl))
            for e in range(8):
                a('v_add_f32 v%d, v%d, v%d' % (RES + e, RES + e, RB + 8 * sl + e))
        for e in range(4):
            a('v_permlane32_swap_b32 v%d, v%d' % (RES + e, RES + 4 + e))
        a.wait_vm('xr')
        for e in range(4):
            a('v_lshlrev_b32 v%d, 16, v%d' % (RB + 2 * e, XR + e))
            a('v_and_b32 v%d, s%d, v%d' % (RB + 2 * e + 1, sMASKHI, XR + e))
        for e in range(8):
            a('v_add_f32 v%d, v%d, v%d' % (RES + e, RES + e, RB + e))
        for e in range(4):
            a('v_cvt_pk_bf16_f32 v%d, v%d, v%d' % (RB + 8 + e, RES + 2 * e, RES + 2 * e + 1))
        a('buffer_store_dwordx4 %s, v%d, %s, 0 offen' % (vr(RB + 8, 4), vO, sr(S_OUT, 4)), tag='st')
        self.epoch_clear()
        self.stamp(3, self.vST)
        if self.STAMPS:
            a.wait_vm0()
            self.stamp(4, self.vST)


HEADER = open('cdna_kernels/%s.s.ref' % NAME).read().split('; Override launch geometry')[0]

KD = '''.section .rodata,"a"
.p2align 6
.amdhsa_kernel %s
  .amdhsa_next_free_vgpr 256
  .amdhsa_next_free_sgpr 102
  .amdhsa_accum_offset 256
  .amdhsa_group_segment_fixed_size 0
  .amdhsa_kernarg_size 80
  .amdhsa_user_sgpr_count 2
  .amdhsa_user_sgpr_kernarg_segment_ptr 1
  .amdhsa_system_sgpr_workgroup_id_x 1
.end_amdhsa_kernel
'''


def build():
    g = Gen()
    g.prologue()
    g.phase1([g.p3_stage_fn(st) for st in range(g.NS - 1)])
    g.KIDX = 1
    g.attn_pass1()
    g.KIDX = 2
    g.phase3(10, g.NS - 1)
    g.a.label('L_end')
    g.a('s_endpgm')
    g.a.raw('L_kend:')
    out = HEADER
    out += '; @launch grid=(256,1,1) block=(512,1,1) lds=163840\n'
    out += '.amdgcn_target "amdgcn-amd-amdhsa--gfx950"\n'
    out += '.text\n.globl %s\n.p2align 8\n.type %s,@function\n%s:\n' % (KNAME, KNAME, KNAME)
    out += g.a.text() + KD % KNAME
    return out


if __name__ == '__main__':
    dst = sys.argv[1] if len(sys.argv) > 1 else 'cdna_kernels/%s.s' % NAME
    txt = build()
    if ENV('ALIGN', '4') != '0':
        from alignpass import align
        txt, nn = align(txt, int(ENV('ALIGN', '4')))
        print('alignment nops:', nn)
    open(dst, 'w').write(txt)
    print('wrote', dst, len(txt), 'bytes')
```
